```python
import torch

def _softmax(x, axis=-1):
    return torch.softmax(x, dim=axis)
def _gelu(x):
    return torch.nn.functional.gelu(x, approximate="tanh")
def _silu(x):
    return torch.nn.functional.silu(x)
def _sigmoid(x):
    return torch.sigmoid(x)
def _layernorm(x, axis=-1, eps=1e-5):
    m = x.mean(dim=axis, keepdim=True)
    v = x.var(dim=axis, keepdim=True, unbiased=False)
    return (x - m) / torch.sqrt(v + eps)
def _scatter_add(tgt, idx, src, axis=0):
    return tgt.clone().index_add_(axis, idx, src)
def _segment_sum(src, seg, n):
    out = torch.zeros((n,) + src.shape[1:], dtype=src.dtype)
    return out.index_add_(0, seg, src)
def _pad(x, pw):
    flat = tuple(v for pair in reversed(pw) for v in pair)
    return torch.nn.functional.pad(x, flat)

kernel_name = 'sequential_preLN__softmax_full_mha__dense_activation_mish__prompt'

def setup_inputs():

    _w = (lambda a: (lambda t: t.to(torch.bfloat16) if t.is_floating_point() else t)(torch.as_tensor(a)))
    def _A_setup():
        B, S, D = 1, 2048, 512
        return {
            "x": _w((lambda *s: torch.randn(*s, dtype=torch.bfloat16) * 0.05)(B, S, D)),
            "wqkv": _w((lambda *s: torch.randn(*s, dtype=torch.bfloat16) * 0.05)(D, 3 * D)),
            "wo": _w((lambda *s: torch.randn(*s, dtype=torch.bfloat16) * 0.05)(D, D)),
        }
    _A_in = _A_setup()

    def _B_setup():
        B, S, D, F = 1, 2048, 512, 1792
        return {
            "x": _w((lambda *s: torch.randn(*s, dtype=torch.bfloat16) * 0.05)(B, S, D)),
            "w1": _w((lambda *s: torch.randn(*s, dtype=torch.bfloat16) * 0.8)(D, F) * (D ** -0.5)),
            "b1": _w((lambda *s: torch.randn(*s, dtype=torch.bfloat16) * 0.4)(F)),
            "w2": _w((lambda *s: torch.randn(*s, dtype=torch.bfloat16) * 0.2)(F, D) * (F ** -0.5)),
        }
    _B_in = _B_setup()

    return {
        "A_x": _A_in["x"],
        "A_wqkv": _A_in["wqkv"],
        "A_wo": _A_in["wo"],
        "B_x": _B_in["x"],
        "B_w1": _B_in["w1"],
        "B_b1": _B_in["b1"],
        "B_w2": _B_in["w2"],
    }

def reference(A_x, A_wqkv, A_wo, B_x, B_w1, B_b1, B_w2):
    def _A_ref(x, wqkv, wo):
        B, S, D = x.shape
        H = 32; Dh = D // H
        qkv = (lambda x, *d: x.permute(*d))((x @ wqkv).reshape(B, S, 3, H, Dh), 2, 0, 3, 1, 4)
        q, k, v = qkv[0], qkv[1], qkv[2]
        scale = Dh ** -0.5
        scores = torch.einsum("bhqd,bhkd->bhqk", q, k) * scale
        p = _softmax(scores, axis=-1)
        o = torch.einsum("bhqk,bhkd->bhqd", p, v)
        return (lambda x, *d: x.permute(*d))(o, 0, 2, 1, 3).reshape(B, S, D) @ wo

    def _B_ref(x, w1, b1, w2):
        h = torch.einsum("bsd,df->bsf", x, w1) + b1
        sp = torch.log1p(torch.exp(-torch.abs(h))) + torch.where(h > 0, h, torch.zeros_like(h))
        act = h * torch.tanh(sp)
        return torch.einsum("bsf,fd->bsd", act, w2)

    x = A_x
    h = x + _A_ref(_layernorm(x, axis=-1), A_wqkv, A_wo)
    h2 = h + _B_ref(_layernorm(h, axis=-1), B_w1, B_b1, B_w2)
    return h2
```

```python
import os, struct, sys
NAME = "sequential_preLN__softmax_full_mha__dense_activation_mish__prompt"
STAMP = int(os.environ.get("STAMP", "0"))
E = lambda n, d: int(os.environ.get(n, str(d)))

WS_QF = 0
WS_KV = 2 << 20
WS_OF = 6 << 20
WS_HF = 8 << 20
WS_ST = 10 << 20
WS_C1 = (10 << 20) + (512 << 10)
WS_FL = 11 << 20
WS_AF = 12 << 20
WS_SIZE = 20 << 20
WS_DBG = 24 << 20
LOG2E = 1.4426950408889634
LN2 = 0.6931471805599453
LDS_TOTAL = 163840
def f32(x): return "0x%08x" % struct.unpack("<I", struct.pack("<f", x))[0]
def vr(a, n=1): return f"v{a}" if n == 1 else f"v[{a}:{a+n-1}]"

PX, PWQKV, PWO, PW1, PB1, PW2, POUT, PDBG, PWS = 64, 66, 68, 72, 74, 76, 78, 80, 82
LANE, HH, L16, MM = 0, 1, 2, 3
HSAVE = 160
HO = "sc1"
HOL = os.environ.get("HOL", "sc1")

class K:
    def __init__(self):
        self.L = []
        self.bars = 0
        self.uid = 0
    def __call__(self, s):
        for line in s.strip("\n").split("\n"):
            line = line.strip()
            if line: self.L.append("    " + line)
    def label(self, l): self.L.append(f"{l}:")
    def new(self, p):
        self.uid += 1
        return f"L{p}_{self.uid}"
    def bar(self, n=1):
        self("s_barrier"); self.bars += n
    def mark(self, i):
        if STAMP:
            self(f"s_memrealtime s[86:87]\ns_waitcnt lgkmcnt(0)\ns_mov_b32 s{88+i}, s86")
    def srd(self, d, base, nbytes):
        self(f"s_mov_b32 s{d}, s{base}\ns_mov_b32 s{d+1}, s{base+1}\ns_mov_b32 s{d+2}, {nbytes}\ns_mov_b32 s{d+3}, 0x00020000")
    def mfma_s(self, d, a, b, c=None):
        cs = vr(d, 16) if c is None else (c if isinstance(c, str) else vr(c, 16))
        return f"v_mfma_f32_32x32x16_bf16 {vr(d,16)}, {vr(a,4)}, {vr(b,4)}, {cs}"
    def mfma(self, d, a, b, c=None): self(self.mfma_s(d, a, b, c))
    def idle_bars(self, n):
        if n == 0: return
        l = self.new("idle")
        self(f"s_mov_b32 s34, {n}")
        self.label(l)
        self(f"s_barrier\ns_sub_u32 s34, s34, 1\ns_cmp_lg_u32 s34, 0\ns_cbranch_scc1 {l}")
        self.bars += n

def xhalf_sum(k, x, tmp):
    k(f"v_mov_b32 v{tmp}, v{x}\ns_nop 1\nv_permlane32_swap_b32 v{x}, v{tmp}\ns_nop 1\nv_add_f32 v{x}, v{x}, v{tmp}")
def split_hilo(k, x, hi, lo, tmp):
    k(f"v_cvt_pk_bf16_f32 v{tmp}, v{x}, v{x}\nv_and_b32 v{hi}, 0xffff0000, v{tmp}\nv_sub_f32 v{lo}, v{x}, v{hi}")

def w_tr_addr(k, dst, tmp, tmp2, half_sgpr, hstride, base):
    k(f"""
    v_mul_u32_u24 v{dst}, {hstride}, v{HH}
    v_bfe_u32 v{tmp}, v0, 2, 2
    v_lshl_add_u32 v{dst}, v{tmp}, 7, v{dst}
    v_bfe_u32 v{tmp}, v0, 4, 1
    v_lshlrev_b32 v{tmp}, 5, v{tmp}
    v_and_b32 v{tmp2}, 3, v0
    v_lshl_add_u32 v{tmp}, v{tmp2}, 3, v{tmp}
    v_add_u32 v{tmp}, s{half_sgpr}, v{tmp}
    v_bfe_u32 v{tmp2}, v0, 3, 1
    v_lshlrev_b32 v{tmp2}, 6, v{tmp2}
    v_xor_b32 v{tmp}, v{tmp}, v{tmp2}
    v_add_u32 v{dst}, v{dst}, v{tmp}
    """)
    if base: k(f"v_add_u32 v{dst}, {base}, v{dst}")

def w_dma_voff(k, dst, tmp, tmp2, pitch, row_sgpr, col_sgpr):
    k(f"""
    v_lshrrev_b32 v{tmp}, 3, v0
    v_add_u32 v{tmp}, s{row_sgpr}, v{tmp}
    v_mul_u32_u24 v{dst}, {pitch}, v{tmp}
    v_and_b32 v{tmp}, 7, v0
    v_bfe_u32 v{tmp2}, v0, 4, 1
    v_lshlrev_b32 v{tmp2}, 2, v{tmp2}
    v_xor_b32 v{tmp}, v{tmp}, v{tmp2}
    v_lshl_add_u32 v{dst}, v{tmp}, 4, v{dst}
    v_add_u32 v{dst}, s{col_sgpr}, v{dst}
    """)

def x_dma_voff(k, dst0, dst1, tmp, tmp2, row0_sgpr, col_sgpr):
    k(f"""
    v_lshrrev_b32 v{tmp}, 3, v0
    v_add_u32 v{tmp}, s{row0_sgpr}, v{tmp}
    v_lshlrev_b32 v{dst0}, 10, v{tmp}
    v_add_u32 v{dst0}, s{col_sgpr}, v{dst0}
    v_add_u32 v{dst1}, 8192, v{dst0}
    v_and_b32 v{tmp}, 7, v0
    v_lshrrev_b32 v{tmp2}, 4, v0
    v_xor_b32 v{tmp}, v{tmp}, v{tmp2}
    v_lshl_add_u32 v{dst0}, v{tmp}, 4, v{dst0}
    v_xor_b32 v{tmp}, 4, v{tmp}
    v_lshl_add_u32 v{dst1}, v{tmp}, 4, v{dst1}
    """)

class Ops:
    def __init__(self, k): self.k = k; self.ops = []
    def add(self, tag, n): self.ops += [tag] * n
    def wait(self, tags):
        idx = [i for i, t in enumerate(self.ops) if t in tags]
        if not idx: return
        n = len(self.ops) - 1 - max(idx)
        assert n <= 63, n
        self.k(f"s_waitcnt vmcnt({n})")

def interleave(mf, rd):
    out = []
    n, m = len(mf), len(rd)
    j = 0
    for i, x in enumerate(mf):
        out.append(x)
        tgt = (m * (i + 1) + n - 1) // n
        while j < tgt:
            out.append(rd[j]); j += 1
    return out

def compute_loop(k, S, SPS, reads, work, addr_update, sctr, pair=False, pre_first=None, hook=None, front=0):
    assert S % 2 == 0 and S >= 4
    if E("AB_NOMFMA", 0):
        work0 = work
        work = lambda ks, st: ["s_nop 0"] * len(work0(ks, st))
    if E("AB_NOREAD", 0):
        reads0 = reads
        reads = lambda ks, st: reads0(ks, st)[:1]
    R = len(reads(0, 0))
    def emit(lst, out=0):
        for x in lst:
            if x.startswith("ds_"):
                if out >= 15:
                    k("s_waitcnt lgkmcnt(12)"); out = 12
                out += 1
            k(x)
    allreads = lambda b: [x for ks in range(SPS) for x in reads(ks, b)]
    allwork = lambda b: [x for ks in range(SPS) for x in work(ks, b)]
    def body(b):
        w = allwork(1-b)
        n = len(w) - 1 if not front else len(w) // front
        emit(interleave(w[:n], allreads(b)) + w[n:])
    k.bar()
    if pre_first: pre_first()
    emit(allreads(0))
    if not pair: addr_update()
    k(f"s_mov_b32 s{sctr}, {(S-2)//2}")
    l = k.new("cl")
    k.label(l)
    k("s_waitcnt lgkmcnt(0)")
    if not pair: k("s_barrier")
    body(1)
    addr_update()
    k(f"s_sub_u32 s{sctr}, s{sctr}, 1")
    k("s_waitcnt lgkmcnt(0)")
    k("s_barrier")
    body(0)
    if hook: hook()
    if not pair: addr_update()
    k(f"s_cmp_lg_u32 s{sctr}, 0\ns_cbranch_scc1 {l}")
    k.bars += (S-2)//2 * (1 if pair else 2)
    if pair:
        k("s_waitcnt lgkmcnt(0)")
        body(1)
    else:
        for ks in range(SPS):
            k(f"s_waitcnt lgkmcnt({min(15, (SPS-ks-1)*R)})")
            for x in work(ks, 0): k(x)
        k.bar()
        emit(allreads(1))
    for ks in range(SPS):
        k(f"s_waitcnt lgkmcnt({min(15, (SPS-ks-1)*R)})")
        for x in work(ks, 1): k(x)

def ring_loader_main(k, ops, S, DA, DW, LA, issueA, issueW, na, nw, extra_need=None, after_bar=None, ldsw=False, LA2=None, bmark=0):
    while na < min(LA, S, DA):
        issueA(na); na += 1
    for s in range(S):
        need = {("A", s), ("W", s)} | set((extra_need or {}).get(s, []))
        ops.wait(need)
        if ldsw and s >= DW: k("s_waitcnt lgkmcnt(0)")
        if bmark == 1: k.mark(s+1)
        k.bar()
        if bmark == 2: k.mark(s+1)
        for rep in range(2 if LA2 else 1):
            if na < S and (na < DA or na - DA <= s - 1) and na <= s + (LA2 or LA) and (rep == 0 or s >= 1):
                issueA(na); na += 1
        if nw < S and (nw < DW or nw - DW <= s - 1):
            issueW(nw); nw += 1
        if after_bar and s in after_bar: after_bar[s]()
    assert na == S and nw == S, (na, nw)

def ring_step(k, s, size, total):
    k(f"s_add_u32 s{s}, s{s}, {size}\ns_cmp_eq_u32 s{s}, {total}\ns_cselect_b32 s{s}, 0, s{s}")

def signal_and_wait(k, out_arr, out_line_sgpr, in_arr, in_line_sgpr, n_in):
    if out_arr is not None:
        k(f"""
        s_lshl_b32 s44, s{out_line_sgpr}, 7
        s_add_u32 s44, s44, {WS_FL + out_arr*32768}
        v_mov_b32 v4, s84
        v_mov_b32 v5, s85
        v_mov_b32 v6, 0
        s_mov_b64 exec, 1
        buffer_store_dwordx2 v[4:5], v6, s[12:15], s44 offen {HO}
        s_mov_b64 exec, -1
        """)
    if in_arr is None: return
    lp, done = k.new("poll"), k.new("polld")
    if n_in > 0:
        k(f"""
        s_lshl_b32 s44, s{in_line_sgpr}, 7
        s_add_u32 s44, s44, {WS_FL + in_arr*32768}
        v_min_u32 v6, {n_in-1}, v0
        v_lshlrev_b32 v6, 7, v6
        s_mov_b32 s45, 30000
        """)
    else:
        k(f"""
        s_mov_b32 s44, {WS_FL}
        v_and_b32 v6, 15, v0
        v_add_u32 v6, s{in_line_sgpr}, v6
        v_add_u32 v6, {in_arr*256}, v6
        s_lshl_b32 s45, s27, 1
        v_bfe_u32 v7, v0, 3, 1
        v_add_u32 v7, s45, v7             ; idx
        v_lshrrev_b32 v8, 2, v7
        v_lshlrev_b32 v8, 5, v8
        v_and_b32 v7, 3, v7
        v_add_u32 v8, v8, v7
        v_and_b32 v7, 7, v0
        v_lshl_add_u32 v8, v7, 2, v8
        v_add_u32 v8, 256, v8
        v_lshrrev_b32 v7, 4, v0
        v_cmp_eq_u32 vcc, 1, v7
        s_mov_b32 s45, 30000
        s_nop 0
        v_cndmask_b32 v6, v6, v8, vcc
        v_lshlrev_b32 v6, 7, v6
        """)
    k.label(lp)
    k(f"""
    buffer_load_dwordx2 v[8:9], v6, s[12:15], s44 offen {HO}
    s_waitcnt vmcnt(0)
    v_cmp_ne_u64 vcc, s[84:85], v[8:9]
    s_cbranch_vccz {done}
    s_sub_u32 s45, s45, 1
    s_cmp_lg_u32 s45, 0
    s_cbranch_scc1 {lp}
    """)
    k.label(done)
```

```python
import sys
from fz import *

A_DP = 3
A_SUB = 12288
XBLK = 528; XSUB = 64*XBLK; A_RS = 2*XSUB; A_WB = 68096
assert A_WB + A_DP*2*A_SUB <= LDS_TOTAL
B_SLAB = 141312
ONESB = 131072
C_W, C_A, C_X = 0, 65536, 149504
D_DW, D_DA = E("D_DW", 5), E("D_DA", 4)
D_W, D_A, D_ST = 0, D_DW*16384, (D_DW+D_DA)*16384
assert D_ST + 16384 <= LDS_TOTAL
E_DW, E_DA = E("E_DW", 12), E("E_DA", 8)
E_W, E_A = 0, E_DW*8192
assert (E_DW+E_DA)*8192 <= LDS_TOTAL
STG = 24
MT64, NT8, HEAD, QB, MT128, NT14 = 22, 23, 24, 25, 26, 27
MTA, NTA = 56, 57

def stamp_out(k):
    if not STAMP: return
    k(f"""
    s_waitcnt vmcnt(0) lgkmcnt(0)
    s_memrealtime s[60:61]
    s_memtime s[86:87]
    s_lshl_b32 s44, s2, 4
    s_add_u32 s44, s44, s3
    s_lshl_b32 s44, s44, 6
    s_add_u32 s44, s44, {WS_DBG}
    s_waitcnt lgkmcnt(0)
    s_sub_u32 s86, s86, s62
    s_mov_b64 exec, 1
    v_mov_b32 v0, s44
    v_mov_b32 v4, s63
    v_mov_b32 v5, s60
    v_mov_b32 v6, s86
    v_mov_b32 v7, 0
    global_store_dwordx4 v0, v[4:7], s[82:83]
    """)
    for j in range(3):
        for i in range(4): k(f"v_mov_b32 v{8+4*j+i}, s{88+4*j+i}")
        k(f"global_store_dwordx4 v0, v[{8+4*j}:{11+4*j}], s[82:83] offset:{16+16*j}")

def loader(k):
    cnt = {}
    ops = Ops(k)
    if E("CODEPF", 1):
        lnp = k.new("ncp")
        k(f"""
        s_getpc_b64 s[40:41]
        v_lshlrev_b32 v5, 7, v0
        s_lshl_b32 s42, s3, 13
        v_add_u32 v5, s42, v5
        v_min_u32 v5, CODE_SPAN, v5
        global_load_dword v6, v5, s[40:41]
        """)
    k(f"""
    s_add_u32 s28, s{MTA}, s{NTA}
    s_and_b32 s28, s28, 7
    s_mul_i32 s28, s28, {64*3072}
    s_lshl_b32 s29, s3, 3            ; 8*w rows
    s_lshl_b32 s30, s{NTA}, 7
    s_lshl_b32 s33, s3, 10           ; w*1024
    s_lshl_b32 s35, s3, 11           ; w*2048
    s_mul_i32 s31, s3, 3072
    s_add_u32 s31, s31, {A_WB}
    """)
    w_dma_voff(k, 4, 9, 10, 3072, 29, 30)
    k("s_waitcnt lgkmcnt(0)")
    k.srd(16, PWQKV, 512*1536*2)
    k.srd(12, PWS, WS_SIZE)
    k.bar()
    def issueW_A(p):
        b = (p % A_DP) * 2*A_SUB
        k(f"s_add_u32 m0, s31, {b}\ns_add_u32 s32, s28, {32*3072}")
        for pn in range(3): k(f"buffer_load_dwordx4 v4, s[16:19], s28 offen offset:{pn*1024} lds")
        k(f"s_add_u32 m0, s31, {b + A_SUB}")
        ring_step(k, 28, 64*3072, 512*3072)
        for pn in range(3): k(f"buffer_load_dwordx4 v4, s[16:19], s32 offen offset:{pn*1024} lds")
        ops.add(("W", p), 6)
    for p in range(A_DP): issueW_A(p)
    k.mark(0)
    ring_loader_main(k, ops, 8, 99, A_DP, 99, None, issueW_A, 8, A_DP, bmark=E("AMARK", 0))
    if E("AMARK", 0): k.mark = lambda i: None
    k.mark(1)
    k(f"""
    s_lshl_b32 s28, s{HEAD}, 17
    s_add_u32 s28, s28, s33
    s_add_u32 s28, s28, {WS_KV}
    s_mov_b32 m0, s33
    """)
    k.bar()
    k.bar()
    cnt['A'] = k.bars
    k.mark(2)
    def rounds(n):
        l = k.new("rd")
        k(f"s_mov_b32 s30, {n}")
        k.label(l)
        k(f"""
        buffer_load_dwordx4 v{L16}, s[12:15], s28 offen {HOL} lds
        s_add_u32 m0, m0, 4096
        s_add_u32 s28, s28, 4096
        s_sub_u32 s30, s30, 1
        s_cmp_lg_u32 s30, 0
        s_cbranch_scc1 {l}
        """)
    if E("LPRIO", 3): k(f"s_setprio {E('LPRIO', 3)}")
    rounds(4)
    k("s_waitcnt vmcnt(3)")
    k.bar()
    rounds(4)
    k("s_waitcnt vmcnt(4)")
    k.bar()
    rounds(8)
    k("s_waitcnt vmcnt(0)")
    k.bar()
    rounds(16)
    k("s_waitcnt vmcnt(0)")
    k.bar()
    k.srd(16, PWO, 512*1024)
    k.srd(36, PW1, 512*3584)
    k.srd(48, PW2, 1792*1024)
    k.srd(52, PX, 2048*1024)
    k(f"""
    s_lshl_b32 s29, s3, 4            ; 16w
    s_lshl_b32 s30, s{NT8}, 7
    s_lshl_b32 s31, s{MT64}, 6
    s_add_u32 s31, s31, s29
    s_lshl_b32 s32, s{NT14}, 8
    s_lshl_b32 s34, s3, 3            ; 8w
    """)
    w_dma_voff(k, 4, 5, 6, 1024, 29, 30)
    x_dma_voff(k, 7, 8, 5, 6, 31, 30)
    w_dma_voff(k, 9, 5, 6, 3584, 29, 32)
    k(f"""
    v_lshlrev_b32 v5, 7, v0
    v_lshrrev_b32 v11, 4, v0
    v_mul_u32_u24 v11, 3584, v11
    v_and_b32 v12, 15, v0
    v_min_u32 v12, 13, v12
    v_lshl_add_u32 v11, v12, 7, v11
    s_lshl_b32 s41, s21, 2
    s_add_u32 s41, s41, s3
    s_lshl_b32 s42, s41, 13          ; j*8KB
    s_add_u32 s43, s42, {128*8192}
    s_mul_i32 s44, s41, {4*3584}
    s_lshr_b32 s45, s20, 2
    s_mul_i32 s45, s45, 1792
    s_add_u32 s44, s44, s45
    buffer_load_dword v14, v5, s[16:19], s42 offen
    buffer_load_dword v15, v11, s[36:39], s44 offen
    buffer_load_dword v16, v5, s[48:51], s42 offen
    buffer_load_dword v17, v5, s[48:51], s43 offen
    """)
    for e in range(2):
        k(f"s_add_u32 m0, s35, {C_X + e*1024}\ns_nop 0")
        k(f"buffer_load_dwordx4 v{7+e}, s[52:55], 0 offen lds")
    lns = k.new("nosl")
    k(f"s_cmp_lg_u32 s3, 0\ns_cbranch_scc1 {lns}\ns_cmp_ge_u32 s2, 224\ns_cbranch_scc1 {lns}")
    k(f"s_lshl_b32 s44, s20, 6\ns_lshl_b32 s45, s21, 7")
    w_dma_voff(k, 18, 19, 20, 3584, 44, 45)
    k(f"s_mov_b32 s44, 0\ns_mov_b32 m0, {B_SLAB}\ns_mov_b32 s45, 8")
    lsl = k.new("sl")
    k.label(lsl)
    k(f"""
    buffer_load_dwordx4 v18, s[36:39], s44 offen lds
    s_add_u32 m0, m0, 1024
    s_add_u32 s44, s44, {8*3584}
    s_sub_u32 s45, s45, 1
    s_cmp_lg_u32 s45, 0
    s_cbranch_scc1 {lsl}
    """)
    w_tr_addr(k, 18, 19, 20, 45, 512, B_SLAB)
    k("v_xor_b32 v19, 64, v18")
    for i in range(4): k(f"v_mov_b32 v{24+i}, 0x3f803f80")
    k(f"""
    s_mul_i32 s44, s20, {1792*4}
    s_lshl_b32 s45, s21, 8
    s_add_u32 s44, s44, s45
    s_add_u32 s44, s44, {WS_C1}
    v_lshlrev_b32 v20, 2, v{MM}
    s_waitcnt vmcnt(0)
    """)
    for hf in range(2):
        for ks in range(4):
            for t in range(2):
                k(f"ds_read_b64_tr_b16 {vr(28+4*ks+2*t,2)}, v{18+hf} offset:{ks*2048 + t*1024}")
        k("s_waitcnt lgkmcnt(0)")
        for ks in range(4):
            k.mfma(48+16*hf, 24, 28+4*ks, "0" if ks == 0 else None)
    k(f"""
    s_nop 15
    s_mov_b64 exec, 0xffffffff
    buffer_store_dword v48, v20, s[12:15], s44 offen {HO}
    buffer_store_dword v64, v20, s[12:15], s44 offen offset:128 {HO}
    s_mov_b64 exec, -1
    """)
    k.label(lns)
    k("s_waitcnt vmcnt(0)")
    ops.ops = []
    k.mark(3)
    k.bar()
    k.mark(4)
    def issueW64(wsrd, b):
        for e in range(2):
            k(f"s_add_u32 m0, s35, {b + e*1024}\ns_add_u32 s32, s40, {e*8192}")
            k(f"buffer_load_dwordx4 v4, s[{wsrd}:{wsrd+3}], s32 offen lds")
        k("s_add_u32 s40, s40, 65536")
    def issueA64(b, KS):
        k(f"s_add_u32 m0, s33, {b}\ns_add_u32 s32, s41, {KS*1024}")
        k(f"buffer_load_dwordx4 v{L16}, s[12:15], s41 offen {HOL} lds")
        k(f"s_add_u32 m0, s33, {b + 4096}\ns_add_u32 s41, s41, 4096")
        k(f"buffer_load_dwordx4 v{L16}, s[12:15], s32 offen {HOL} lds")
    def setup64(KS, ACT):
        k(f"""
        s_mov_b32 s40, 0
        s_mul_i32 s41, s{MT64}, {2*KS*1024}
        s_add_u32 s41, s41, s33
        s_add_u32 s41, s41, {ACT}
        """)
    setup64(32, WS_OF)
    if E("PRESLEEP", 2): k(f"s_sleep {E('PRESLEEP', 2)}")
    for s in range(8):
        issueW64(16, C_W + s*8192); ops.add(("W", s), 2)
    k.bar()
    cnt['B'] = k.bars
    k.mark(5)
    def iAC(s):
        issueA64(C_A + s*8192, 32); ops.add(("A", s), 2)
    ring_loader_main(k, ops, 8, 8, 8, E("C_LA", 6), iAC, None, 0, 8)
    k.bar()
    ops.ops = []
    lE = k.new("ldE")
    k(f"""
    s_lshl_b32 s46, s21, 2
    s_add_u32 s46, s46, s3
    s_add_u32 s46, s46, {E("PFB", 96)}
    s_lshl_b32 s46, s46, 13
    """)
    lE0 = k.new("ldE0")
    k(f"s_cmp_ge_u32 s2, 224\ns_cbranch_scc1 {lE0}")
    b0 = k.bars
    k(f"""
    s_mov_b32 s40, 0
    s_lshl_b32 s41, s{MT128}, 2
    s_add_u32 s41, s41, s3
    s_lshl_b32 s43, s41, 12
    s_add_u32 s43, s43, {WS_ST}
    s_lshl_b32 s41, s41, 15
    s_add_u32 s41, s41, {WS_HF}
    s_lshl_b32 s42, s3, 12           ; w*4096
    """)
    def issueW_D(s):
        b = D_W + (s % D_DW) * 16384
        for i in range(4):
            pn, e = i >> 1, i & 1
            k(f"s_add_u32 m0, s35, {b + pn*8192 + e*1024}\ns_add_u32 s32, s40, {e*8*3584 + pn*128}")
            k("buffer_load_dwordx4 v9, s[36:39], s32 offen lds")
        k(f"s_add_u32 s40, s40, {64*3584}")
        ops.add(("W", s), 4)
    def issueA_D(s):
        k(f"s_add_u32 m0, s42, {D_A + (s % D_DA) * 16384}\ns_nop 0")
        for i in range(4):
            k(f"buffer_load_dwordx4 v{L16}, s[12:15], s41 offen offset:{i*1024} {HOL} lds")
        k("s_add_u32 s41, s41, 4096")
        ops.add(("A", s), 4)
    def issue_stats():
        k(f"s_add_u32 m0, s42, {D_ST}\ns_nop 0")
        for i in range(4):
            k(f"buffer_load_dwordx4 v{L16}, s[12:15], s43 offen offset:{i*1024} {HOL} lds")
        ops.add(("ST", 0), 4)
    for s in range(D_DW): issueW_D(s)
    if E("PFC", 0):
        k("buffer_load_dword v17, v5, s[48:51], s46 offen"); ops.add(("PF", 0), 1)
    k.bar()
    k.bar()
    k.mark(6)
    ring_loader_main(k, ops, 8, D_DA, D_DW, E("D_LA", 3), issueA_D, issueW_D, 0, D_DW,
                     extra_need={3: [("ST", 0)]}, after_bar={0: issue_stats})
    k.bar()
    cnt['Dextra'] = k.bars - b0
    ops.ops = []
    k(f"s_branch {lE}")
    k.label(lE0)
    if E("PFC", 0): k("buffer_load_dword v17, v5, s[48:51], s46 offen")
    k.label(lE)
    k.mark(7)
    setup64(112, WS_AF)
    EP1 = E("E_PRE1", 4)
    for s in range(EP1):
        issueW64(48, E_W + s*8192); ops.add(("W", s), 2)
    k.bar()
    if E("PRESLEEP", 2): k(f"s_sleep {E('PRESLEEP', 2)}")
    for s in range(EP1, E_DW):
        issueW64(48, E_W + s*8192); ops.add(("W", s), 2)
        if E("E_PREWIN", 4): k(f"s_waitcnt vmcnt({E('E_PREWIN', 4)})")
    k.bar()
    k.mark(8)
    def iAE(s):
        if E("AB_E_NOA", 0): return
        issueA64(E_A + (s % E_DA)*8192, 112); ops.add(("A", s), 2)
    def iWE(mm):
        issueW64(48, E_W + (mm % E_DW)*8192); ops.add(("W", mm), 2)
    ring_loader_main(k, ops, 28, E_DA, E_DW, E("E_LA", 6), iAE, iWE, 0, E_DW)
    cnt['total'] = k.bars
    k.mark(9)
    stamp_out(k)
    k("s_endpgm")
    return cnt

def compute(k):
    cnt = {}
    CW = 28
    k(f"s_sub_u32 s{CW}, s3, 4")
    X, T = 64, 128
    ACC = 16
    k(f"""
    s_lshl_b32 s29, s{MTA}, 6
    s_lshl_b32 s30, s{CW}, 3
    s_add_u32 s29, s29, s30          ; row0
    v_lshrrev_b32 v6, 3, v0
    v_add_u32 v7, s29, v6
    v_lshlrev_b32 v7, 10, v7
    v_and_b32 v8, 7, v0
    v_lshl_add_u32 v7, v8, 4, v7
    s_waitcnt lgkmcnt(0)
    """)
    k.srd(16, PX, 2048*1024)
    for i in range(8):
        k(f"buffer_load_dwordx4 {vr(X+4*i,4)}, v7, s[16:19], 0 offen offset:{i*128}")
    k.bar()
    k.srd(12, PWS, WS_SIZE)
    k(f"""
    s_lshr_b32 s29, s{CW}, 2
    s_mul_i32 s29, s29, {XSUB}
    s_and_b32 s30, s{CW}, 3
    s_lshl_b32 s30, s30, 7
    s_add_u32 s29, s29, s30
    v_mul_u32_u24 v9, {XBLK}, v8
    v_lshl_add_u32 v9, v6, 4, v9
    v_add_u32 v9, s29, v9
    s_lshl_b32 s30, s{CW}, 5
    s_add_u32 s30, s30, {A_RS}
    v_lshlrev_b32 v10, 2, v6
    v_add_u32 v10, s30, v10
    v_mov_b32 v{T}, 0x3f803f80
    v_mov_b32 v{T+1}, 0x00003f80
    v_mov_b32 v{T+2}, 0x3f800000
    s_and_b32 s29, s{CW}, 1          ; ms
    s_bfe_u32 s30, s{CW}, 0x10001    ; nh
    s_lshl_b32 s31, s30, 6
    """)
    AX, AW, CX, CWA = 4, 5, 11, 12
    w_tr_addr(k, AW, 13, 14, 31, 3072, A_WB)
    k(f"""
    s_mul_i32 s32, s29, {XSUB}
    v_mul_u32_u24 v{AX}, {XBLK}, v{HH}
    v_lshl_add_u32 v{AX}, v{MM}, 4, v{AX}
    v_add_u32 v{AX}, s32, v{AX}
    """)
    for i in range(48): k(f"v_mov_b32 v{ACC+i}, 0")
    def red8(r):
        for ctl in ("quad_perm:[1,0,3,2]", "quad_perm:[2,3,0,1]", "row_half_mirror"):
            k(f"s_nop 1\nv_add_f32_dpp v{r}, v{r}, v{r} {ctl} row_mask:0xf bank_mask:0xf")
    SA, SB, NM, TM = T+4, T+5, T+6, T+8
    k(f"v_mov_b32 v{SA}, 0\nv_mov_b32 v{SB}, 0")
    for i in range(8):
        k(f"s_waitcnt vmcnt({7-i})")
        for j in range(4):
            a = SA if j % 2 == 0 else SB
            k(f"v_dot2_f32_bf16 v{a}, v{X+4*i+j}, v{T}, v{a}")
    k.mark(0)
    k(f"s_nop 2\nv_add_f32 v{SA}, v{SA}, v{SB}")
    red8(SA)
    k(f"v_mul_f32 v{NM}, {f32(-1.0/512)}, v{SA}\nv_mov_b32 v{SA}, 0\nv_mov_b32 v{SB}, 0")
    for i in range(8):
        for j in range(4):
            k(f"v_dot2_f32_bf16 v{TM+2*j}, v{X+4*i+j}, v{T+1}, v{NM}")
            k(f"v_dot2_f32_bf16 v{TM+2*j+1}, v{X+4*i+j}, v{T+2}, v{NM}")
        if i > 0:
            for j in range(4):
                a = SA if j % 2 == 0 else SB
                k(f"v_dot2_f32_bf16 v{a}, v{X+4*(i-1)+j}, v{X+4*(i-1)+j}, v{a}")
        else:
            k("s_nop 2")
        for j in range(4):
            k(f"v_cvt_pk_bf16_f32 v{X+4*i+j}, v{TM+2*j}, v{TM+2*j+1}")
        k(f"ds_write_b128 v9, {vr(X+4*i,4)} offset:{i*8*XBLK}")
    for j in range(4):
        a = SA if j % 2 == 0 else SB
        k(f"v_dot2_f32_bf16 v{a}, v{X+28+j}, v{X+28+j}, v{a}")
    k(f"s_nop 2\nv_add_f32 v{SA}, v{SA}, v{SB}")
    red8(SA)
    k(f"""
    v_mov_b32 v{SB}, {f32(1e-5)}
    v_fmac_f32 v{SB}, {f32(1.0/512)}, v{SA}
    v_rsq_f32 v{SB}, v{SB}
    s_nop 0
    ds_write_b32 v10, v{SB}
    """)
    lhiA, lendA = k.new("hiA"), k.new("endA")
    k(f"s_waitcnt lgkmcnt(0)")
    k.mark(1)
    k(f"s_cmp_ge_u32 s{CW}, 4\ns_cbranch_scc1 {lhiA}")
    b0 = k.bars
    k(f"""
    s_add_u32 s33, s{MTA}, s{NTA}
    s_and_b32 s33, s33, 7
    s_mul_i32 s33, s33, {8*XBLK}
    v_add_u32 v{CX}, s33, v{AX}
    v_mov_b32 v{CWA}, v{AW}
    s_mov_b32 s35, 0
    s_lshl_b32 s36, s29, 7
    s_add_u32 s36, s36, {A_RS}
    v_lshlrev_b32 v13, 2, v{MM}
    v_add_u32 v13, s36, v13
    v_lshlrev_b32 v14, 4, v{HH}
    v_add_u32 v14, s36, v14
    """)
    RSTD, RF, BUF = T+3, T+16, X
    def pre_first():
        k(f"ds_read_b32 v{RSTD}, v13")
        for g in range(4): k(f"ds_read_b128 {vr(RF+4*g,4)}, v14 offset:{g*32}")
        k("s_waitcnt lgkmcnt(0)")
    def reads(ks, st):
        b = BUF + 16*ks + 32*st
        r = [f"ds_read_b128 {vr(b,4)}, v{CX} offset:{(2*st+ks)*2*XBLK}"]
        for pn in range(3):
            for t in range(2):
                r.append(f"ds_read_b64_tr_b16 {vr(b+4+4*pn+2*t,2)}, v{CWA} offset:{st*A_SUB + ks*6144 + pn*1024 + t*512}")
        return r
    def work(ks, st):
        b = BUF + 16*ks + 32*st
        return [k.mfma_s(ACC, b+4, b), k.mfma_s(ACC+16, b+8, b), k.mfma_s(ACC+32, b, b+12)]
    def addr_update():
        ring_step(k, 33, 8*XBLK, 64*XBLK)
        ring_step(k, 35, 2*A_SUB, A_DP*2*A_SUB)
        k(f"v_add_u32 v{CX}, s33, v{AX}\nv_add_u32 v{CWA}, s35, v{AW}")
    compute_loop(k, 16, 2, reads, work, addr_update, 34, pair=True, pre_first=pre_first)
    k.mark(2)
    k(f"""
    v_mul_f32 v{T+2}, {f32(0.25*LOG2E)}, v{RSTD}
    s_lshl_b32 s32, s{NTA}, 2
    s_lshl_b32 s33, s30, 1
    s_add_u32 s32, s32, s33            ; head0
    s_lshl_b32 s33, s{MTA}, 1
    s_add_u32 s33, s33, s29
    s_lshl_b32 s35, s32, 16
    s_lshl_b32 s36, s33, 10
    s_add_u32 s35, s35, s36
    s_add_u32 s35, s35, {WS_QF}
    s_add_u32 s36, s35, 65536
    s_lshl_b32 s37, s32, 17
    s_lshl_b32 s38, s33, 11
    s_add_u32 s37, s37, s38
    s_add_u32 s37, s37, {WS_KV}
    s_add_u32 s38, s37, 131072
    v_and_b32 v{T+5}, 15, v0
    v_lshlrev_b32 v{T+5}, 4, v{T+5}
    v_lshl_add_u32 v{T+5}, v{HH}, 8, v{T+5}
    v_bfe_u32 v{T+6}, v0, 4, 1
    v_lshl_add_u32 v{T+5}, v{T+6}, 17, v{T+5}
    """)
    P = X
    for (a, sc, st) in ((ACC+16, None, [(f"v{L16}", "s37", ""), (f"v{L16}", "s38", "")]),
                        (ACC+32, "rf", [(f"v{T+5}", "s37", "offset:1024"), (f"v{T+5}", "s37", "offset:1536")]),
                        (ACC, "q", [(f"v{L16}", "s35", ""), (f"v{L16}", "s36", "")])):
        for i in range(16):
            m = f"v{RSTD}" if sc is None else (f"v{RF+i}" if sc == "rf" else f"v{T+2}")
            k(f"v_mul_f32 v{a+i}, v{a+i}, {m}")
        for i in range(8):
            k(f"v_cvt_pk_bf16_f32 v{P+i}, v{a+2*i}, v{a+2*i+1}")
        for j in range(2):
            k(f"buffer_store_dwordx4 {vr(P+4*j,4)}, {st[j][0]}, s[12:15], {st[j][1]} offen {st[j][2]} {HO}")
        P += 8
    nA = k.bars - b0
    k(f"s_branch {lendA}")
    k.label(lhiA)
    k.bars = b0
    lnn, ltp, lnt = k.new("nn"), k.new("tp"), k.new("nt")
    k.srd(16, PDBG, 256)
    k(f"""
    v_mov_b32 v10, 0
    s_cmp_lg_u32 s{CW}, 7
    s_cbranch_scc1 {lnt}
    s_cmp_lg_u32 s2, 0
    s_cbranch_scc1 {lnn}
    s_memrealtime s[84:85]
    s_waitcnt lgkmcnt(0)
    s_or_b32 s84, s84, 1
    v_mov_b32 v8, s84
    v_mov_b32 v9, s85
    s_mov_b64 exec, 1
    buffer_store_dwordx2 v[8:9], v10, s[16:19], 0 offen {HO}
    s_mov_b64 exec, -1
    """)
    k.label(lnn)
    k.idle_bars(nA)
    k("s_mov_b32 s45, 30000")
    k.label(ltp)
    k(f"""
    buffer_load_dwordx2 v[8:9], v10, s[16:19], 0 offen {HO}
    s_waitcnt vmcnt(0)
    v_readfirstlane_b32 s84, v8
    v_readfirstlane_b32 s85, v9
    s_nop 3
    s_cmp_lg_u32 s84, 0
    s_cbranch_scc1 {lendA}
    s_sub_u32 s45, s45, 1
    s_cmp_lg_u32 s45, 0
    s_cbranch_scc1 {ltp}
    s_branch {lendA}
    """)
    k.label(lnt)
    k.bars = b0
    k.idle_bars(nA)
    k.label(lendA)
    def end_phase(out_arr, out_line, in_arr, in_line, n_in, between=None):
        k("s_waitcnt vmcnt(0)")
        k.bar()
        ls = k.new("ns")
        k(f"s_cmp_lg_u32 s{CW}, 7\ns_cbranch_scc1 {ls}")
        out_line()
        signal_and_wait(k, out_arr, 46, None, 47, n_in)
        k.label(ls)
        if between: between()
        ls = k.new("np")
        k(f"s_cmp_lg_u32 s{CW}, 7\ns_cbranch_scc1 {ls}")
        in_line()
        signal_and_wait(k, None, 46, in_arr, 47, n_in)
        k.label(ls)
        k.bar()
    AK, AV, Q, KF, VF, P, C, O, S0, M, T = 10, 11, 12, 16, 24, 40, 48, 64, 80, 112, 113
    AV0, AVS = 118, 119
    NIT = 16
    SW = E("SW", 13)
    def zero_state():
        for i in range(16): k(f"v_mov_b32 v{O+i}, 0")
        for i in range(4): k(f"v_mov_b32 v{P+4+i}, 0\nv_mov_b32 v{VF+12+i}, 0")
    def b_setup():
        lp = k.new("pr")
        k(f"""
        s_lshl_b32 s29, s{QB}, 3
        s_add_u32 s29, s29, s{CW}
        s_lshl_b32 s30, s{HEAD}, 16
        s_lshl_b32 s31, s29, 10
        s_add_u32 s30, s30, s31
        s_add_u32 s30, s30, {WS_QF}
        v_and_b32 v{T+1}, 11, v0
        v_cmp_eq_u32 vcc, 0, v{T+1}
        v_mov_b32 v{T+2}, 0x3f803f80
        s_lshl_b32 s31, s{CW}, 10
        s_add_u32 s31, s31, {ONESB}
        v_cndmask_b32 v{S0}, 0, v{T+2}, vcc
        v_add_u32 v{T+1}, s31, v{L16}
        v_mov_b32 v{S0+1}, v{S0}
        v_mov_b32 v{S0+2}, v{S0}
        v_mov_b32 v{S0+3}, v{S0}
        ds_write_b128 v{T+1}, {vr(S0,4)}
        ds_write_b128 v{T+1}, {vr(S0,4)} offset:2048
        v_and_b32 v{AV0}, 15, v0
        v_lshlrev_b32 v{AV0}, 4, v{AV0}
        v_lshl_add_u32 v{AV0}, v{HH}, 8, v{AV0}
        v_and_b32 v{T+1}, 16, v0
        v_cmp_eq_u32 vcc, 0, v{T+1}
        v_mov_b32 v{T+1}, {ONESB}
        v_mov_b32 v{T+2}, 1024
        v_mov_b32 v{T+3}, 8192
        v_cndmask_b32 v{T+1}, v{T+1}, v{T+2}, vcc
        v_cndmask_b32 v{AVS}, 0, v{T+3}, vcc
        v_add_u32 v{AV0}, v{AV0}, v{T+1}
        s_mov_b32 s36, 0
        s_mov_b32 s39, 1
        s_lshl_b32 s29, s29, 15
        s_lshl_b32 s31, s{HEAD}, 10
        s_add_u32 s29, s29, s31
        s_add_u32 s29, s29, {WS_OF}
        s_setprio 1
        s_cmp_lt_u32 s{CW}, 4
        s_cbranch_scc1 {lp}
        s_setprio 2
        """)
        k.label(lp)
        zero_state()
        k("s_waitcnt lgkmcnt(0)")
    k.mark(3)
    end_phase(0, lambda: k(f"s_lshl_b32 s46, s{NTA}, 5\ns_add_u32 s46, s46, s{MTA}"),
              0, lambda: k(f"s_lshr_b32 s47, s{HEAD}, 2\ns_lshl_b32 s47, s47, 5"), 32, between=b_setup)
    cnt['A'] = k.bars
    k.mark(4)
    k(f"buffer_load_dwordx4 {vr(Q,4)}, v{L16}, s[12:15], s30 offen {HO}")
    k("s_waitcnt vmcnt(0)")
    k.bar()
    k(f"ds_read_b128 {vr(KF,4)}, v{L16}\ns_waitcnt lgkmcnt(0)")
    k.mfma(S0, KF, Q, "0")
    k("s_nop 15")
    def max16(src, dst, first):
        if first:
            k(f"v_max3_f32 v{dst}, v{src}, v{src+1}, v{src+2}\nv_max_f32 v{dst}, v{dst}, v{src+3}")
            rng = range(4, 16, 2)
        else: rng = range(0, 16, 2)
        for i in rng: k(f"v_max3_f32 v{dst}, v{dst}, v{src+i}, v{src+i+1}")
    max16(S0, M, True)
    lhave, lnob, lloop, lswp, ldone, lmax, lfin = [k.new(x) for x in ("have","nobar","aloop","swp","adone","maxl","afin")]
    k.label(lhave)
    k(f"""
    v_mov_b32 v{T+1}, v{M}
    v_mov_b32 v{AK}, v{L16}
    v_mov_b32 v{AV}, v{AV0}
    v_permlane32_swap_b32 v{M}, v{T+1}
    ds_read_b128 {vr(KF,4)}, v{AK}
    ds_read_b128 {vr(KF+4,4)}, v{AK} offset:2048
    ds_read_b128 {vr(VF,4)}, v{AV}
    ds_read_b128 {vr(VF+4,4)}, v{AV} offset:512
    v_max_f32 v{M}, v{M}, v{T+1}
    """)
    for i in range(16): k(f"v_sub_f32 v{C+i}, 0, v{M}")
    k("s_waitcnt lgkmcnt(3)\ns_mov_b32 s37, 0")
    k.mfma(S0, KF, Q, C)
    k(f"s_cmp_lg_u32 s36, 0\ns_cbranch_scc1 {lnob}")
    k.bar()
    k.label(lnob)
    k("s_nop 7")
    k.label(lloop)
    for t in range(4):
        sb = S0 + 16*(t & 1); sn = S0 + 16*((t+1) & 1)
        kn = KF + 4*((t+1) & 1); kf = KF + 4*(t & 1)
        vc = VF + 8*(t & 1); vn = VF + 8*((t+1) & 1)
        ex = lambda i: k(f"v_exp_f32 v{sb+i}, v{sb+i}")
        cv = lambda i: k(f"v_cvt_pk_bf16_f32 v{P+i}, v{sb+2*i}, v{sb+2*i+1}")
        k("s_waitcnt lgkmcnt(2)")
        k.mfma(sn, kn, Q, C)
        ex(0)
        k(f"ds_read_b128 {vr(kf,4)}, v{AK} offset:{(t+2)*2048}")
        ex(1); ex(2); ex(3)
        k.mfma(O, vn+4, P+4)
        ex(4)
        k(f"ds_read_b128 {vr(vn,4)}, v{AV} offset:{(t+1)*2048}")
        ex(5)
        k(f"ds_read_b128 {vr(vn+4,4)}, v{AV} offset:{(t+1)*2048+512}")
        ex(6); ex(7)
        for i in range(4): cv(i)
        ex(8)
        k("s_waitcnt lgkmcnt(3)")
        ex(9)
        k.mfma(O, vc, P)
        for i in range(10, 16):
            ex(i)
            if t == 3 and i == 10: k("s_add_u32 s37, s37, 1")
            if t == 3 and i == 11: k("s_cmp_lt_u32 s37, s39")
        if t == 3:
            k(f"v_add_u32 v{AK}, 8192, v{AK}\nv_add_u32 v{AV}, v{AVS}, v{AV}")
        for i in range(4, 8): cv(i)
    CP2 = E("CP2", 3)
    k(f"""
    s_cbranch_scc1 {lloop}
    s_cmp_eq_u32 s37, {NIT}
    s_cbranch_scc1 {ldone}
    s_cmp_gt_u32 s37, {CP2}
    s_cbranch_scc1 {lswp}
    s_barrier
    s_cmp_eq_u32 s37, 1
    s_cselect_b32 s39, {CP2}, {SW}
    s_branch {lloop}
    """)
    k.bars += 2
    k.label(lswp)
    k(f"""
    s_mov_b32 s39, {NIT}
    s_cmp_lt_u32 s{CW}, 4
    s_cbranch_scc1 {lloop}
    s_setprio 0
    s_branch {lloop}
    """)
    k.label(ldone)
    k.mfma(O, VF+12, P+4)
    k(f"""
    s_waitcnt lgkmcnt(0)
    s_mov_b32 s38, {f32(2.0**60)}
    s_nop 13
    v_cmp_nlt_f32 vcc, v{O+8}, s38
    v_rcp_f32 v{T+3}, v{O+8}
    s_cmp_lg_u32 s36, 0
    s_cbranch_scc1 {lfin}
    s_cbranch_vccz {lfin}
    s_mov_b32 s36, 1
    s_mov_b32 s37, 0
    v_mov_b32 v{AK}, v{L16}
    v_mov_b32 v{M}, 0xff800000
    """)
    zero_state()
    k.label(lmax)
    k(f"ds_read_b128 {vr(KF,4)}, v{AK}\ns_waitcnt lgkmcnt(0)")
    k.mfma(S0, KF, Q, "0")
    k("s_nop 15")
    max16(S0, M, False)
    k(f"""
    v_add_u32 v{AK}, 2048, v{AK}
    s_add_u32 s37, s37, 1
    s_cmp_lt_u32 s37, 64
    s_cbranch_scc1 {lmax}
    s_branch {lhave}
    """)
    k.label(lfin)
    for i in range(8): k(f"v_mul_f32 v{O+i}, v{O+i}, v{T+3}")
    for i in range(4): k(f"v_cvt_pk_bf16_f32 v{P+i}, v{O+2*i}, v{O+2*i+1}")
    k(f"buffer_store_dwordx4 {vr(P,4)}, v{L16}, s[12:15], s29 offen {HO}")
    k("s_setprio 0")
    k.mark(5)
    AA, AW, CA, CWA = 10, 11, 12, 13
    ACC, BUF, T = 16, 32, 96
    def c_setup():
        k(f"""
        s_and_b32 s29, s{CW}, 1          ; ms
        s_bfe_u32 s30, s{CW}, 0x10001    ; nh
        s_lshl_b32 s31, s30, 6
        s_lshl_b32 s32, s29, 12
        v_add_u32 v{AA}, s32, v{L16}
        s_lshl_b32 s36, s{MT64}, 1
        s_add_u32 s36, s36, s29          ; mt32
        s_lshl_b32 s37, s{NT8}, 2
        s_lshl_b32 s38, s30, 1
        s_add_u32 s37, s37, s38          ; 2*nt32
        """)
        w_tr_addr(k, AW, 14, 15, 31, 512, 0)
    def c_between():
        c_setup()
        k(f"""
        v_add_u32 v{CA}, {C_A}, v{AA}
        v_mov_b32 v{CWA}, v{AW}
        v_lshlrev_b32 v14, 7, v{MM}
        v_add_u32 v14, s32, v14
        v_lshl_add_u32 v14, v{HH}, 3, v14
        v_add_u32 v14, {C_X}, v14
        v_bfe_u32 v15, v0, 1, 3
        v_lshlrev_b32 v15, 4, v15
        v_xor_b32 v15, s31, v15
        """)
        for g in range(4):
            k(f"v_xor_b32 v{T+16+g}, {g*16}, v15\nv_add_u32 v{T+16+g}, v{T+16+g}, v14")
    end_phase(1, lambda: k(f"s_lshl_b32 s46, s{QB}, 5\ns_add_u32 s46, s46, s{HEAD}"),
              1, lambda: k(f"s_lshr_b32 s47, s{MT64}, 2\ns_lshl_b32 s47, s47, 5"), 32, between=c_between)
    cnt['B'] = k.bars
    k.mark(6)
    def reads64(ks, st):
        b = BUF + 8*ks + 32*st
        return [f"ds_read_b128 {vr(b,4)}, v{CA} offset:{ks*1024}"] + \
               [f"ds_read_b64_tr_b16 {vr(b+4+2*t,2)}, v{CWA} offset:{ks*2048 + t*1024}" for t in range(2)]
    def work64(ks, st):
        b = BUF + 8*ks + 32*st
        return [k.mfma_s(ACC, b+4, b)]
    lhi, lend, lend2 = k.new("hiC"), k.new("endC"), k.new("endC2")
    k(f"s_cmp_ge_u32 s{CW}, 4\ns_cbranch_scc1 {lhi}")
    b0 = k.bars
    def c_first():
        for g in range(4): k(f"ds_read_b64 {vr(T+4+2*g,2)}, v{T+16+g}")
        k("s_waitcnt lgkmcnt(0)")
        for i in range(8):
            k(f"v_lshlrev_b32 v{ACC+2*i}, 16, v{T+4+i}\nv_and_b32 v{ACC+2*i+1}, 0xffff0000, v{T+4+i}")
    compute_loop(k, 8, 4, reads64, work64, lambda: k(f"v_add_u32 v{CA}, 8192, v{CA}\nv_add_u32 v{CWA}, 8192, v{CWA}"), 34, pre_first=c_first)
    k.bar()
    k(f"""
    v_mov_b32 v{T+12}, 0x3f803f80
    v_mov_b32 v{T+14}, 0
    v_mov_b32 v{T+15}, 0
    s_lshl_b32 s38, s36, 15
    s_lshl_b32 s39, s37, 10
    s_add_u32 s38, s38, s39
    s_add_u32 s38, s38, {WS_HF}
    s_lshl_b32 s39, s36, 12
    s_lshl_b32 s40, s37, 7
    s_add_u32 s39, s39, s40
    s_add_u32 s39, s39, {WS_ST}
    v_lshlrev_b32 v{T+13}, 3, v{MM}
    s_nop 1
    """)
    for i in range(8): k(f"v_cvt_pk_bf16_f32 v{HSAVE+i}, v{ACC+2*i}, v{ACC+2*i+1}")
    k(f"buffer_store_dwordx4 {vr(HSAVE,4)}, v{L16}, s[12:15], s38 offen {HO}")
    k(f"buffer_store_dwordx4 {vr(HSAVE+4,4)}, v{L16}, s[12:15], s38 offen offset:1024 {HO}")
    for i in range(8):
        k(f"v_dot2_f32_bf16 v{T+14}, v{HSAVE+i}, v{T+12}, v{T+14}")
        k(f"v_dot2_f32_bf16 v{T+15}, v{HSAVE+i}, v{HSAVE+i}, v{T+15}")
    k("s_nop 2")
    xhalf_sum(k, T+14, T+16)
    xhalf_sum(k, T+15, T+16)
    k(f"s_mov_b64 exec, 0xffffffff\nbuffer_store_dwordx2 {vr(T+14,2)}, v{T+13}, s[12:15], s39 offen {HO}\ns_mov_b64 exec, -1")
    nC = k.bars - b0
    k(f"s_branch {lend}")
    k.label(lhi)
    k.bars = b0
    k.idle_bars(nC)
    k.label(lend)
    k.mark(7)
    f3_out = lambda: k(f"s_lshl_b32 s46, s{MT64}, 3\ns_add_u32 s46, s46, s{NT8}")
    f4_in = lambda: k(f"s_lshr_b32 s47, s{MT64}, 1\ns_lshl_b32 s47, s47, 4")
    def e_between():
        c_setup()
        k(f"""
        v_add_u32 v{AA}, {E_A}, v{AA}
        v_mov_b32 v{CA}, v{AA}
        v_mov_b32 v{CWA}, v{AW}
        s_mov_b32 s33, 0
        s_mov_b32 s35, 0
        """)
        for i in range(8):
            k(f"v_lshlrev_b32 v{16+2*i}, 16, v{HSAVE+i}\nv_and_b32 v{16+2*i+1}, 0xffff0000, v{HSAVE+i}")
    lD, lE = k.new("phD"), k.new("phE")
    k(f"s_cmp_lt_u32 s2, 224\ns_cbranch_scc1 {lD}")
    b0 = k.bars
    end_phase(2, f3_out, 3, f4_in, 14, between=e_between)
    k(f"s_branch {lE}")
    bskip = k.bars - b0
    k.bars = b0
    k.label(lD)
    DACC, DBUF, DT = 16, 48, 136
    RS, BB, CS = 8, 14, 15
    def d_between():
        k(f"""
        s_and_b32 s29, s{CW}, 1          ; mp
        s_lshr_b32 s30, s{CW}, 1         ; nq
        s_and_b32 s31, s30, 1
        s_lshl_b32 s31, s31, 6
        s_lshr_b32 s32, s30, 1
        s_lshl_b32 s32, s32, 13
        s_lshl_b32 s33, s29, 13
        s_add_u32 s33, s33, {D_A}
        v_add_u32 v{AA}, s33, v{L16}
        s_lshl_b32 s36, s{MT128}, 2
        s_lshl_b32 s37, s29, 1
        s_add_u32 s36, s36, s37
        s_lshl_b32 s37, s{NT14}, 2
        s_add_u32 s37, s37, s30          ; nt32 (0..55)
        s_lshl_b32 s38, s37, 6
        v_lshlrev_b32 v{DT}, 1, v{MM}
        s_lshl_b32 s39, s37, 7
        s_add_u32 s39, s39, {WS_C1}
        s_add_u32 s40, s39, {2*1792*4}
        v_mul_u32_u24 v{DT+1}, {4*1792*4}, v{HH}
        v_lshl_add_u32 v{DT+1}, v{MM}, 2, v{DT+1}
        v_add_u32 v{DT+2}, {1792*4}, v{DT+1}
        """)
        k.srd(16, PB1, 3584)
        k(f"""
        buffer_load_ushort v{BB}, v{DT}, s[16:19], s38 offen
        """)
        w_tr_addr(k, AW, DT+8, DT+9, 31, 512, D_W)
        k(f"""
        v_add_u32 v{AW}, s32, v{AW}
        v_mov_b32 v{CA}, v{AA}
        v_mov_b32 v{CWA}, v{AW}
        s_mov_b32 s33, 0
        s_mov_b32 s35, 0
        s_lshr_b32 s41, s{CW}, 2
        s_lshl_b32 s41, s41, {E("HOOKSH", 1)}
        s_sub_u32 s41, 4, s41
        s_lshl_b32 s38, s29, 13
        s_add_u32 s38, s38, {D_ST}
        v_lshlrev_b32 v{DT+3}, 3, v0
        v_add_u32 v{DT+3}, s38, v{DT+3}
        """)
        for i in range(32): k(f"v_mov_b32 v{DACC+i}, 0")
    end_phase(2, f3_out, 2, lambda: k(f"s_lshl_b32 s47, s{MT128}, 4"), -1, between=d_between)
    k.mark(8)
    def d_first():
        k(f"""
        buffer_load_dword v{DT+4}, v{DT+1}, s[12:15], s39 offen {HO}
        buffer_load_dword v{DT+5}, v{DT+2}, s[12:15], s39 offen {HO}
        buffer_load_dword v{DT+6}, v{DT+1}, s[12:15], s40 offen {HO}
        buffer_load_dword v{DT+7}, v{DT+2}, s[12:15], s40 offen {HO}
        """)
    def readsD(ks, st):
        b = DBUF + 12*ks + 24*st
        kk = 2*st + ks
        return [f"ds_read_b64_tr_b16 {vr(b+8+2*t,2)}, v{CWA} offset:{kk*2048 + t*1024}" for t in range(2)] + \
               [f"ds_read_b128 {vr(b,4)}, v{CA} offset:{kk*1024}", f"ds_read_b128 {vr(b+4,4)}, v{CA} offset:{4096+kk*1024}"]
    def workD(ks, st):
        b = DBUF + 12*ks + 24*st
        return [k.mfma_s(DACC, b+8, b), k.mfma_s(DACC+16, b+8, b+4)]
    def updD():
        ring_step(k, 33, 16384, D_DA*16384)
        ring_step(k, 35, 16384, D_DW*16384)
        k(f"v_add_u32 v{CA}, s33, v{AA}\nv_add_u32 v{CWA}, s35, v{AW}")
    def hookD():
        ln = k.new("nohk")
        k(f"s_cmp_lg_u32 s34, s41\ns_cbranch_scc1 {ln}")
        SL = DBUF + 48
        OA, MB = DT+8, SL+32
        k("s_waitcnt lgkmcnt(0)")
        for ms in range(2):
            for i in range(8):
                if ms == 1 and i == 4: k("s_waitcnt lgkmcnt(8)")
                k(f"ds_read_b64 {vr(SL+16*ms+2*i,2)}, v{DT+3} offset:{ms*4096 + i*512}")
        k(f"""
        s_waitcnt vmcnt(0)
        v_cmp_gt_u32 vcc, 32, v0
        v_add_f32 v{DT+4}, v{DT+4}, v{DT+5}
        v_add_f32 v{DT+6}, v{DT+6}, v{DT+7}
        v_cndmask_b32 v{BB}, 0, v{BB}, vcc
        v_add_f32 v{CS}, v{DT+4}, v{DT+6}
        """)
        split_hilo(k, CS, DT+4, DT+5, DT+6)
        k(f"""
        v_cvt_pk_bf16_f32 v{OA}, v{DT+4}, v{DT+4}
        v_cvt_pk_bf16_f32 v{OA+1}, v{DT+5}, 0
        v_lshl_or_b32 v{OA+1}, v{BB}, 16, v{OA+1}
        v_mov_b32 v{OA+2}, v{BB}
        v_mov_b32 v{OA+3}, 0
        s_waitcnt lgkmcnt(0)
        """)
        for ms in range(2):
            b = SL + 16*ms
            for i in range(1, 8):
                k(f"v_add_f32 v{b}, v{b}, v{b+2*i}\nv_add_f32 v{b+1}, v{b+1}, v{b+2*i+1}")
            xhalf_sum(k, b, DT+4)
            xhalf_sum(k, b+1, DT+4)
            mb = MB + 4*ms
            k(f"""
            v_mul_f32 v{b}, {f32(-1.0/512)}, v{b}
            v_mul_f32 v{b+1}, {f32(1.0/512)}, v{b+1}
            v_fma_f32 v{b+1}, -v{b}, v{b}, v{b+1}
            v_max_f32 v{b+1}, 0, v{b+1}
            v_add_f32 v{b+1}, {f32(1e-5)}, v{b+1}
            v_rsq_f32 v{RS+ms}, v{b+1}
            s_nop 0
            v_mul_f32 v{b+1}, v{b+1}, v{RS+ms}
            v_mul_f32 v{RS+ms}, {f32(LOG2E)}, v{RS+ms}
            """)
            split_hilo(k, b, DT+4, DT+5, DT+6)
            k(f"v_cvt_pk_bf16_f32 v{mb}, v{DT+4}, v{DT+5}")
            split_hilo(k, b+1, DT+7, DT+5, DT+6)
            k(f"v_cvt_pk_bf16_f32 v{mb+1}, v{DT+4}, v{DT+7}\nv_cvt_pk_bf16_f32 v{mb+2}, v{DT+5}, 0\nv_mov_b32 v{mb+3}, 0")
        k("s_nop 1")
        k.mfma(DACC, OA, MB)
        k.mfma(DACC+16, OA, MB+4)
        k.label(ln)
    compute_loop(k, 16, 2, readsD, workD, updD, 34, pair=True, pre_first=d_first, hook=hookD)
    k.bar()
    k.mark(9)
    k(f"""
    s_mul_i32 s38, s36, {112*1024}
    s_lshl_b32 s39, s37, 11
    s_add_u32 s38, s38, s39
    s_add_u32 s38, s38, {WS_AF}
    s_add_u32 s39, s38, {112*1024}
    v_mov_b32 v{DT+12}, {f32(-2*LN2)}
    s_nop 5
    """)
    U, PP = DBUF, DBUF+16
    for ms in range(2):
        a = DACC + 16*ms
        for i in range(16): k(f"v_mul_f32 v{a+i}, v{a+i}, v{RS+ms}")
        for i in range(16): k(f"v_exp_f32 v{U+i}, v{a+i}")
        for i in range(16): k(f"v_add_f32 v{U+i}, 1.0, v{U+i}")
        for i in range(16): k(f"v_fma_f32 v{U+i}, v{U+i}, v{U+i}, 1.0")
        for i in range(16): k(f"v_rcp_f32 v{U+i}, v{U+i}")
        for i in range(16): k(f"v_fmaak_f32 v{U+i}, v{U+i}, v{DT+12}, {f32(LN2)}")
        for i in range(16): k(f"v_mul_f32 v{a+i}, v{a+i}, v{U+i}")
        for i in range(8): k(f"v_cvt_pk_bf16_f32 v{PP+8*ms+i}, v{a+2*i}, v{a+2*i+1}")
        so = "s38" if ms == 0 else "s39"
        k(f"buffer_store_dwordx4 {vr(PP+8*ms,4)}, v{L16}, s[12:15], {so} offen {HO}")
        k(f"buffer_store_dwordx4 {vr(PP+8*ms+4,4)}, v{L16}, s[12:15], {so} offen offset:1024 {HO}")
    k.mark(10)
    end_phase(3, lambda: k(f"s_lshl_b32 s46, s{MT128}, 4\ns_add_u32 s46, s46, s{NT14}"), 3, f4_in, 14, between=e_between)
    cnt['Dextra'] = k.bars - b0 - bskip
    k.label(lE)
    k.mark(11)
    lhi = k.new("hiE")
    k(f"s_cmp_ge_u32 s{CW}, 4\ns_cbranch_scc1 {lhi}")
    b0 = k.bars
    def updE():
        ring_step(k, 33, 8192, E_DA*8192)
        ring_step(k, 35, 8192, E_DW*8192)
        k(f"v_add_u32 v{CA}, s33, v{AA}\nv_add_u32 v{CWA}, s35, v{AW}")
    compute_loop(k, 28, 4, reads64, work64, updE, 34)
    cnt['total'] = k.bars
    k.srd(16, POUT, 2048*1024)
    PQ = T+4
    k(f"""
    s_lshl_b32 s38, s36, 15
    s_lshl_b32 s39, s37, 5
    s_add_u32 s38, s38, s39
    v_lshlrev_b32 v{T+13}, 10, v{MM}
    v_lshl_add_u32 v{T+13}, v{HH}, 4, v{T+13}
    s_nop 4
    """)
    for i in range(8): k(f"v_cvt_pk_bf16_f32 v{PQ+i}, v{ACC+2*i}, v{ACC+2*i+1}")
    k("s_nop 1")
    for p in range(2):
        k(f"v_permlane32_swap_b32 v{PQ+4*p}, v{PQ+4*p+2}\nv_permlane32_swap_b32 v{PQ+4*p+1}, v{PQ+4*p+3}")
    k(f"buffer_store_dwordx4 {vr(PQ,4)}, v{T+13}, s[16:19], s38 offen")
    k(f"buffer_store_dwordx4 {vr(PQ+4,4)}, v{T+13}, s[16:19], s38 offen offset:32")
    k.label(lhi)
    stamp_out(k)
    k("s_endpgm")
    return cnt

def build(path):
    k = K()
    if STAMP:
        k("s_memrealtime s[60:61]\ns_memtime s[62:63]\ns_waitcnt lgkmcnt(0)\ns_mov_b32 s63, s60")
        for i in range(12): k(f"s_mov_b32 s{88+i}, 0")
    k(f"""
    s_cmp_ge_u32 s2, 256
    s_cbranch_scc1 Lexit
    s_load_dwordx16 s[64:79], s[0:1], 0
    s_load_dwordx4 s[80:83], s[0:1], 64
    v_lshrrev_b32 v1, 6, v0
    v_and_b32 v0, 63, v0
    s_and_b32 s20, s2, 7
    v_readfirstlane_b32 s3, v1
    s_lshr_b32 s21, s2, 3
    v_lshrrev_b32 v{HH}, 5, v0
    v_lshlrev_b32 v{L16}, 4, v0
    v_and_b32 v{MM}, 31, v0
    s_and_b32 s28, s20, 3
    s_lshr_b32 s29, s20, 2
    s_lshl_b32 s{MTA}, s28, 3
    s_and_b32 s30, s21, 7
    s_add_u32 s{MTA}, s{MTA}, s30
    s_lshl_b32 s{NTA}, s29, 2
    s_lshr_b32 s30, s21, 3
    s_add_u32 s{NTA}, s{NTA}, s30
    s_lshl_b32 s{HEAD}, s20, 2
    s_and_b32 s30, s21, 3
    s_add_u32 s{HEAD}, s{HEAD}, s30
    s_lshr_b32 s{QB}, s21, 2
    s_mov_b32 s{MT64}, s{HEAD}
    s_mov_b32 s{NT8}, s{QB}
    s_lshl_b32 s{MT128}, s28, 2
    s_add_u32 s{MT128}, s{MT128}, s30
    s_mul_i32 s{NT14}, s29, 7
    s_add_u32 s{NT14}, s{NT14}, s{QB}
    s_cmp_ge_u32 s3, 4
    s_cbranch_scc1 Lcompute
    """)
    k.bars = 0
    c1 = loader(k)
    k.label("Lcompute")
    k.bars = 0
    c2 = compute(k)
    assert c1 == c2, (c1, c2)
    k.label("Lexit")
    k("s_endpgm")
    ref = open(f"cdna_kernels/{NAME}.s.ref").read().split("\n")
    head = [l for l in ref if l.startswith(";") and "@launch" not in l]
    out = "\n".join(head) + f"\n; @launch grid=(256,1,1) block=(768,1,1) lds={LDS_TOTAL}\n"
    out += f'.amdgcn_target "amdgcn-amd-amdhsa--gfx950"\n.text\n.globl {NAME}_kernel\n.p2align 8\n.type {NAME}_kernel,@function\n{NAME}_kernel:\n'
    out += "\n".join(k.L).replace("CODE_SPAN", f"Lexit - {NAME}_kernel - 512") + "\n"
    out += f""".section .rodata,"a"
.p2align 6
.amdhsa_kernel {NAME}_kernel
  .amdhsa_next_free_vgpr 168
  .amdhsa_next_free_sgpr 102
  .amdhsa_accum_offset 168
  .amdhsa_group_segment_fixed_size 0
  .amdhsa_kernarg_size 80
  .amdhsa_user_sgpr_count 2
  .amdhsa_user_sgpr_kernarg_segment_ptr 1
  .amdhsa_system_sgpr_workgroup_id_x 1
.end_amdhsa_kernel
"""
    open(path, "w").write(out)
    print("barriers", c1, "lines", len(k.L))
if __name__ == "__main__":
    build(sys.argv[1])
```

```python
import sys
from fz import *

A_DP = 3
A_SUB = 12288
XBLK = 528; XSUB = 64*XBLK; A_RS = 2*XSUB; A_WB = 68096
assert A_WB + A_DP*2*A_SUB <= LDS_TOTAL
B_SLAB = 141312
ONESB = 131072
C_W, C_A, C_X = 0, 65536, 149504
D_DW, D_DA = E("D_DW", 5), E("D_DA", 4)
D_W, D_A, D_ST = 0, D_DW*16384, (D_DW+D_DA)*16384
assert D_ST + 16384 <= LDS_TOTAL
E_DW, E_DA = E("E_DW", 12), E("E_DA", 8)
E_W, E_A = 0, E_DW*8192
assert (E_DW+E_DA)*8192 <= LDS_TOTAL
STG = 24
MT64, NT8, HEAD, QB, MT128, NT14 = 22, 23, 24, 25, 26, 27
MTA, NTA = 56, 57

def stamp_out(k):
    if not STAMP: return
    k(f"""
    s_waitcnt vmcnt(0) lgkmcnt(0)
    s_memrealtime s[60:61]
    s_memtime s[86:87]
    s_lshl_b32 s44, s2, 4
    s_add_u32 s44, s44, s3
    s_lshl_b32 s44, s44, 6
    s_add_u32 s44, s44, {WS_DBG}
    s_waitcnt lgkmcnt(0)
    s_sub_u32 s86, s86, s62
    s_mov_b64 exec, 1
    v_mov_b32 v0, s44
    v_mov_b32 v4, s63
    v_mov_b32 v5, s60
    v_mov_b32 v6, s86
    v_mov_b32 v7, 0
    global_store_dwordx4 v0, v[4:7], s[82:83]
    """)
    for j in range(3):
        for i in range(4): k(f"v_mov_b32 v{8+4*j+i}, s{88+4*j+i}")
        k(f"global_store_dwordx4 v0, v[{8+4*j}:{11+4*j}], s[82:83] offset:{16+16*j}")

def loader(k):
    cnt = {}
    ops = Ops(k)
    if E("CODEPF", 1):
        lnp = k.new("ncp")
        k(f"""
        s_getpc_b64 s[40:41]
        v_lshlrev_b32 v5, 7, v0
        s_lshl_b32 s42, s3, 13
        v_add_u32 v5, s42, v5
        v_min_u32 v5, CODE_SPAN, v5
        global_load_dword v6, v5, s[40:41]
        """)
    k(f"""
    s_add_u32 s28, s{MTA}, s{NTA}
    s_and_b32 s28, s28, 7
    s_mul_i32 s28, s28, {64*3072}
    s_lshl_b32 s29, s3, 3            ; 8*w rows
    s_lshl_b32 s30, s{NTA}, 7
    s_lshl_b32 s33, s3, 10           ; w*1024
    s_lshl_b32 s35, s3, 11           ; w*2048
    s_mul_i32 s31, s3, 3072
    s_add_u32 s31, s31, {A_WB}
    """)
    w_dma_voff(k, 4, 9, 10, 3072, 29, 30)
    k("s_waitcnt lgkmcnt(0)")
    k.srd(16, PWQKV, 512*1536*2)
    k.srd(12, PWS, WS_SIZE)
    k.bar()
    def issueW_A(p):
        b = (p % A_DP) * 2*A_SUB
        k(f"s_add_u32 m0, s31, {b}\ns_add_u32 s32, s28, {32*3072}")
        for pn in range(3): k(f"buffer_load_dwordx4 v4, s[16:19], s28 offen offset:{pn*1024} lds")
        k(f"s_add_u32 m0, s31, {b + A_SUB}")
        ring_step(k, 28, 64*3072, 512*3072)
        for pn in range(3): k(f"buffer_load_dwordx4 v4, s[16:19], s32 offen offset:{pn*1024} lds")
        ops.add(("W", p), 6)
    for p in range(A_DP): issueW_A(p)
    k.mark(0)
    ring_loader_main(k, ops, 8, 99, A_DP, 99, None, issueW_A, 8, A_DP, bmark=E("AMARK", 0))
    if E("AMARK", 0): k.mark = lambda i: None
    k.mark(1)
    k(f"""
    s_lshl_b32 s28, s{HEAD}, 17
    s_add_u32 s28, s28, s33
    s_add_u32 s28, s28, {WS_KV}
    s_mov_b32 m0, s33
    """)
    k.bar()
    k.bar()
    cnt['A'] = k.bars
    k.mark(2)
    def rounds(n):
        l = k.new("rd")
        k(f"s_mov_b32 s30, {n}")
        k.label(l)
        k(f"""
        buffer_load_dwordx4 v{L16}, s[12:15], s28 offen {HOL} lds
        s_add_u32 m0, m0, 4096
        s_add_u32 s28, s28, 4096
        s_sub_u32 s30, s30, 1
        s_cmp_lg_u32 s30, 0
        s_cbranch_scc1 {l}
        """)
    if E("LPRIO", 3): k(f"s_setprio {E('LPRIO', 3)}")
    rounds(4)
    k("s_waitcnt vmcnt(3)")
    k.bar()
    rounds(4)
    k("s_waitcnt vmcnt(4)")
    k.bar()
    rounds(8)
    k("s_waitcnt vmcnt(0)")
    k.bar()
    rounds(16)
    k("s_waitcnt vmcnt(0)")
    k.bar()
    k.srd(16, PWO, 512*1024)
    k.srd(36, PW1, 512*3584)
    k.srd(48, PW2, 1792*1024)
    k.srd(52, PX, 2048*1024)
    k(f"""
    s_lshl_b32 s29, s3, 4            ; 16w
    s_lshl_b32 s30, s{NT8}, 7
    s_lshl_b32 s31, s{MT64}, 6
    s_add_u32 s31, s31, s29
    s_lshl_b32 s32, s{NT14}, 8
    s_lshl_b32 s34, s3, 3            ; 8w
    """)
    w_dma_voff(k, 4, 5, 6, 1024, 29, 30)
    x_dma_voff(k, 7, 8, 5, 6, 31, 30)
    w_dma_voff(k, 9, 5, 6, 3584, 29, 32)
    k(f"""
    v_lshlrev_b32 v5, 7, v0
    v_lshrrev_b32 v11, 4, v0
    v_mul_u32_u24 v11, 3584, v11
    v_and_b32 v12, 15, v0
    v_min_u32 v12, 13, v12
    v_lshl_add_u32 v11, v12, 7, v11
    s_lshl_b32 s41, s21, 2
    s_add_u32 s41, s41, s3
    s_lshl_b32 s42, s41, 13          ; j*8KB
    s_add_u32 s43, s42, {128*8192}
    s_mul_i32 s44, s41, {4*3584}
    s_lshr_b32 s45, s20, 2
    s_mul_i32 s45, s45, 1792
    s_add_u32 s44, s44, s45
    buffer_load_dword v14, v5, s[16:19], s42 offen
    buffer_load_dword v15, v11, s[36:39], s44 offen
    buffer_load_dword v16, v5, s[48:51], s42 offen
    buffer_load_dword v17, v5, s[48:51], s43 offen
    """)
    for e in range(2):
        k(f"s_add_u32 m0, s35, {C_X + e*1024}\ns_nop 0")
        k(f"buffer_load_dwordx4 v{7+e}, s[52:55], 0 offen lds")
    lns = k.new("nosl")
    k(f"s_cmp_lg_u32 s3, 0\ns_cbranch_scc1 {lns}\ns_cmp_ge_u32 s2, 224\ns_cbranch_scc1 {lns}")
    k(f"s_lshl_b32 s44, s20, 6\ns_lshl_b32 s45, s21, 7")
    w_dma_voff(k, 18, 19, 20, 3584, 44, 45)
    k(f"s_mov_b32 s44, 0\ns_mov_b32 m0, {B_SLAB}\ns_mov_b32 s45, 8")
    lsl = k.new("sl")
    k.label(lsl)
    k(f"""
    buffer_load_dwordx4 v18, s[36:39], s44 offen lds
    s_add_u32 m0, m0, 1024
    s_add_u32 s44, s44, {8*3584}
    s_sub_u32 s45, s45, 1
    s_cmp_lg_u32 s45, 0
    s_cbranch_scc1 {lsl}
    """)
    w_tr_addr(k, 18, 19, 20, 45, 512, B_SLAB)
    k("v_xor_b32 v19, 64, v18")
    for i in range(4): k(f"v_mov_b32 v{24+i}, 0x3f803f80")
    k(f"""
    s_mul_i32 s44, s20, {1792*4}
    s_lshl_b32 s45, s21, 8
    s_add_u32 s44, s44, s45
    s_add_u32 s44, s44, {WS_C1}
    v_lshlrev_b32 v20, 2, v{MM}
    s_waitcnt vmcnt(0)
    """)
    for hf in range(2):
        for ks in range(4):
            for t in range(2):
                k(f"ds_read_b64_tr_b16 {vr(28+4*ks+2*t,2)}, v{18+hf} offset:{ks*2048 + t*1024}")
        k("s_waitcnt lgkmcnt(0)")
        for ks in range(4):
            k.mfma(48+16*hf, 24, 28+4*ks, "0" if ks == 0 else None)
    k(f"""
    s_nop 15
    s_mov_b64 exec, 0xffffffff
    buffer_store_dword v48, v20, s[12:15], s44 offen {HO}
    buffer_store_dword v64, v20, s[12:15], s44 offen offset:128 {HO}
    s_mov_b64 exec, -1
    """)
    k.label(lns)
    k("s_waitcnt vmcnt(0)")
    ops.ops = []
    k.mark(3)
    k.bar()
    k.mark(4)
    def issueW64(wsrd, b):
        for e in range(2):
            k(f"s_add_u32 m0, s35, {b + e*1024}\ns_add_u32 s32, s40, {e*8192}")
            k(f"buffer_load_dwordx4 v4, s[{wsrd}:{wsrd+3}], s32 offen lds")
        k("s_add_u32 s40, s40, 65536")
    def issueA64(b, KS):
        k(f"s_add_u32 m0, s33, {b}\ns_add_u32 s32, s41, {KS*1024}")
        k(f"buffer_load_dwordx4 v{L16}, s[12:15], s41 offen {HOL} lds")
        k(f"s_add_u32 m0, s33, {b + 4096}\ns_add_u32 s41, s41, 4096")
        k(f"buffer_load_dwordx4 v{L16}, s[12:15], s32 offen {HOL} lds")
    def setup64(KS, ACT):
        k(f"""
        s_mov_b32 s40, 0
        s_mul_i32 s41, s{MT64}, {2*KS*1024}
        s_add_u32 s41, s41, s33
        s_add_u32 s41, s41, {ACT}
        """)
    setup64(32, WS_OF)
    if E("PRESLEEP", 2): k(f"s_sleep {E('PRESLEEP', 2)}")
    for s in range(8):
        issueW64(16, C_W + s*8192); ops.add(("W", s), 2)
    k.bar()
    cnt['B'] = k.bars
    k.mark(5)
    def iAC(s):
        issueA64(C_A + s*8192, 32); ops.add(("A", s), 2)
    ring_loader_main(k, ops, 8, 8, 8, E("C_LA", 6), iAC, None, 0, 8)
    k.bar()
    ops.ops = []
    lE = k.new("ldE")
    k(f"""
    s_lshl_b32 s46, s21, 2
    s_add_u32 s46, s46, s3
    s_add_u32 s46, s46, {E("PFB", 96)}
    s_lshl_b32 s46, s46, 13
    """)
    lE0 = k.new("ldE0")
    k(f"s_cmp_ge_u32 s2, 224\ns_cbranch_scc1 {lE0}")
    b0 = k.bars
    k(f"""
    s_mov_b32 s40, 0
    s_lshl_b32 s41, s{MT128}, 2
    s_add_u32 s41, s41, s3
    s_lshl_b32 s43, s41, 12
    s_add_u32 s43, s43, {WS_ST}
    s_lshl_b32 s41, s41, 15
    s_add_u32 s41, s41, {WS_HF}
    s_lshl_b32 s42, s3, 12           ; w*4096
    """)
    def issueW_D(s):
        b = D_W + (s % D_DW) * 16384
        for i in range(4):
            pn, e = i >> 1, i & 1
            k(f"s_add_u32 m0, s35, {b + pn*8192 + e*1024}\ns_add_u32 s32, s40, {e*8*3584 + pn*128}")
            k("buffer_load_dwordx4 v9, s[36:39], s32 offen lds")
        k(f"s_add_u32 s40, s40, {64*3584}")
        ops.add(("W", s), 4)
    def issueA_D(s):
        k(f"s_add_u32 m0, s42, {D_A + (s % D_DA) * 16384}\ns_nop 0")
        for i in range(4):
            k(f"buffer_load_dwordx4 v{L16}, s[12:15], s41 offen offset:{i*1024} {HOL} lds")
        k("s_add_u32 s41, s41, 4096")
        ops.add(("A", s), 4)
    def issue_stats():
        k(f"s_add_u32 m0, s42, {D_ST}\ns_nop 0")
        for i in range(4):
            k(f"buffer_load_dwordx4 v{L16}, s[12:15], s43 offen offset:{i*1024} {HOL} lds")
        ops.add(("ST", 0), 4)
    for s in range(D_DW): issueW_D(s)
    if E("PFC", 0):
        k("buffer_load_dword v17, v5, s[48:51], s46 offen"); ops.add(("PF", 0), 1)
    k.bar()
    k.bar()
    k.mark(6)
    ring_loader_main(k, ops, 8, D_DA, D_DW, E("D_LA", 3), issueA_D, issueW_D, 0, D_DW,
                     extra_need={3: [("ST", 0)]}, after_bar={0: issue_stats})
    k.bar()
    cnt['Dextra'] = k.bars - b0
    ops.ops = []
    k(f"s_branch {lE}")
    k.label(lE0)
    if E("PFC", 0): k("buffer_load_dword v17, v5, s[48:51], s46 offen")
    k.label(lE)
    k.mark(7)
    setup64(112, WS_AF)
    EP1 = E("E_PRE1", 4)
    for s in range(EP1):
        issueW64(48, E_W + s*8192); ops.add(("W", s), 2)
    k.bar()
    if E("PRESLEEP", 2): k(f"s_sleep {E('PRESLEEP', 2)}")
    for s in range(EP1, E_DW):
        issueW64(48, E_W + s*8192); ops.add(("W", s), 2)
        if E("E_PREWIN", 4): k(f"s_waitcnt vmcnt({E('E_PREWIN', 4)})")
    k.bar()
    k.mark(8)
    def iAE(s):
        if E("AB_E_NOA", 0): return
        issueA64(E_A + (s % E_DA)*8192, 112); ops.add(("A", s), 2)
    def iWE(mm):
        issueW64(48, E_W + (mm % E_DW)*8192); ops.add(("W", mm), 2)
    ring_loader_main(k, ops, 28, E_DA, E_DW, E("E_LA", 6), iAE, iWE, 0, E_DW)
    cnt['total'] = k.bars
    k.mark(9)
    stamp_out(k)
    k("s_endpgm")
    return cnt

def compute(k):
    cnt = {}
    CW = 28
    k(f"s_sub_u32 s{CW}, s3, 4")
    X, T = 64, 128
    ACC = 16
    k(f"""
    s_lshl_b32 s29, s{MTA}, 6
    s_lshl_b32 s30, s{CW}, 3
    s_add_u32 s29, s29, s30          ; row0
    v_lshrrev_b32 v6, 3, v0
    v_add_u32 v7, s29, v6
    v_lshlrev_b32 v7, 10, v7
    v_and_b32 v8, 7, v0
    v_lshl_add_u32 v7, v8, 4, v7
    s_waitcnt lgkmcnt(0)
    """)
    k.srd(16, PX, 2048*1024)
    for i in range(8):
        k(f"buffer_load_dwordx4 {vr(X+4*i,4)}, v7, s[16:19], 0 offen offset:{i*128}")
    k.bar()
    k.srd(12, PWS, WS_SIZE)
    k(f"""
    s_lshr_b32 s29, s{CW}, 2
    s_mul_i32 s29, s29, {XSUB}
    s_and_b32 s30, s{CW}, 3
    s_lshl_b32 s30, s30, 7
    s_add_u32 s29, s29, s30
    v_mul_u32_u24 v9, {XBLK}, v8
    v_lshl_add_u32 v9, v6, 4, v9
    v_add_u32 v9, s29, v9
    s_lshl_b32 s30, s{CW}, 5
    s_add_u32 s30, s30, {A_RS}
    v_lshlrev_b32 v10, 2, v6
    v_add_u32 v10, s30, v10
    v_mov_b32 v{T}, 0x3f803f80
    v_mov_b32 v{T+1}, 0x00003f80
    v_mov_b32 v{T+2}, 0x3f800000
    s_and_b32 s29, s{CW}, 1          ; ms
    s_bfe_u32 s30, s{CW}, 0x10001    ; nh
    s_lshl_b32 s31, s30, 6
    """)
    AX, AW, CX, CWA = 4, 5, 11, 12
    w_tr_addr(k, AW, 13, 14, 31, 3072, A_WB)
    k(f"""
    s_mul_i32 s32, s29, {XSUB}
    v_mul_u32_u24 v{AX}, {XBLK}, v{HH}
    v_lshl_add_u32 v{AX}, v{MM}, 4, v{AX}
    v_add_u32 v{AX}, s32, v{AX}
    """)
    for i in range(48): k(f"v_mov_b32 v{ACC+i}, 0")
    def red8(r):
        for ctl in ("quad_perm:[1,0,3,2]", "quad_perm:[2,3,0,1]", "row_half_mirror"):
            k(f"s_nop 1\nv_add_f32_dpp v{r}, v{r}, v{r} {ctl} row_mask:0xf bank_mask:0xf")
    SA, SB, NM, TM = T+4, T+5, T+6, T+8
    k(f"v_mov_b32 v{SA}, 0\nv_mov_b32 v{SB}, 0")
    for i in range(8):
        k(f"s_waitcnt vmcnt({7-i})")
        for j in range(4):
            a = SA if j % 2 == 0 else SB
            k(f"v_dot2_f32_bf16 v{a}, v{X+4*i+j}, v{T}, v{a}")
    k.mark(0)
    k(f"s_nop 2\nv_add_f32 v{SA}, v{SA}, v{SB}")
    red8(SA)
    k(f"v_mul_f32 v{NM}, {f32(-1.0/512)}, v{SA}\nv_mov_b32 v{SA}, 0\nv_mov_b32 v{SB}, 0")
    for i in range(8):
        for j in range(4):
            k(f"v_dot2_f32_bf16 v{TM+2*j}, v{X+4*i+j}, v{T+1}, v{NM}")
            k(f"v_dot2_f32_bf16 v{TM+2*j+1}, v{X+4*i+j}, v{T+2}, v{NM}")
        if i > 0:
            for j in range(4):
                a = SA if j % 2 == 0 else SB
                k(f"v_dot2_f32_bf16 v{a}, v{X+4*(i-1)+j}, v{X+4*(i-1)+j}, v{a}")
        else:
            k("s_nop 2")
        for j in range(4):
            k(f"v_cvt_pk_bf16_f32 v{X+4*i+j}, v{TM+2*j}, v{TM+2*j+1}")
        k(f"ds_write_b128 v9, {vr(X+4*i,4)} offset:{i*8*XBLK}")
    for j in range(4):
        a = SA if j % 2 == 0 else SB
        k(f"v_dot2_f32_bf16 v{a}, v{X+28+j}, v{X+28+j}, v{a}")
    k(f"s_nop 2\nv_add_f32 v{SA}, v{SA}, v{SB}")
    red8(SA)
    k(f"""
    v_mov_b32 v{SB}, {f32(1e-5)}
    v_fmac_f32 v{SB}, {f32(1.0/512)}, v{SA}
    v_rsq_f32 v{SB}, v{SB}
    s_nop 0
    ds_write_b32 v10, v{SB}
    """)
    lhiA, lendA = k.new("hiA"), k.new("endA")
    k(f"s_waitcnt lgkmcnt(0)")
    k.mark(1)
    k(f"s_cmp_ge_u32 s{CW}, 4\ns_cbranch_scc1 {lhiA}")
    b0 = k.bars
    k(f"""
    s_add_u32 s33, s{MTA}, s{NTA}
    s_and_b32 s33, s33, 7
    s_mul_i32 s33, s33, {8*XBLK}
    v_add_u32 v{CX}, s33, v{AX}
    v_mov_b32 v{CWA}, v{AW}
    s_mov_b32 s35, 0
    s_lshl_b32 s36, s29, 7
    s_add_u32 s36, s36, {A_RS}
    v_lshlrev_b32 v13, 2, v{MM}
    v_add_u32 v13, s36, v13
    v_lshlrev_b32 v14, 4, v{HH}
    v_add_u32 v14, s36, v14
    """)
    RSTD, RF, BUF = T+3, T+16, X
    def pre_first():
        k(f"ds_read_b32 v{RSTD}, v13")
        for g in range(4): k(f"ds_read_b128 {vr(RF+4*g,4)}, v14 offset:{g*32}")
        k("s_waitcnt lgkmcnt(0)")
    def reads(ks, st):
        b = BUF + 16*ks + 32*st
        r = [f"ds_read_b128 {vr(b,4)}, v{CX} offset:{(2*st+ks)*2*XBLK}"]
        for pn in range(3):
            for t in range(2):
                r.append(f"ds_read_b64_tr_b16 {vr(b+4+4*pn+2*t,2)}, v{CWA} offset:{st*A_SUB + ks*6144 + pn*1024 + t*512}")
        return r
    def work(ks, st):
        b = BUF + 16*ks + 32*st
        return [k.mfma_s(ACC, b+4, b), k.mfma_s(ACC+16, b+8, b), k.mfma_s(ACC+32, b, b+12)]
    def addr_update():
        ring_step(k, 33, 8*XBLK, 64*XBLK)
        ring_step(k, 35, 2*A_SUB, A_DP*2*A_SUB)
        k(f"v_add_u32 v{CX}, s33, v{AX}\nv_add_u32 v{CWA}, s35, v{AW}")
    compute_loop(k, 16, 2, reads, work, addr_update, 34, pair=True, pre_first=pre_first)
    k.mark(2)
    k(f"""
    v_mul_f32 v{T+2}, {f32(0.25*LOG2E)}, v{RSTD}
    s_lshl_b32 s32, s{NTA}, 2
    s_lshl_b32 s33, s30, 1
    s_add_u32 s32, s32, s33            ; head0
    s_lshl_b32 s33, s{MTA}, 1
    s_add_u32 s33, s33, s29
    s_lshl_b32 s35, s32, 16
    s_lshl_b32 s36, s33, 10
    s_add_u32 s35, s35, s36
    s_add_u32 s35, s35, {WS_QF}
    s_add_u32 s36, s35, 65536
    s_lshl_b32 s37, s32, 17
    s_lshl_b32 s38, s33, 11
    s_add_u32 s37, s37, s38
    s_add_u32 s37, s37, {WS_KV}
    s_add_u32 s38, s37, 131072
    v_and_b32 v{T+5}, 15, v0
    v_lshlrev_b32 v{T+5}, 4, v{T+5}
    v_lshl_add_u32 v{T+5}, v{HH}, 8, v{T+5}
    v_bfe_u32 v{T+6}, v0, 4, 1
    v_lshl_add_u32 v{T+5}, v{T+6}, 17, v{T+5}
    """)
    P = X
    for (a, sc, st) in ((ACC+16, None, [(f"v{L16}", "s37", ""), (f"v{L16}", "s38", "")]),
                        (ACC+32, "rf", [(f"v{T+5}", "s37", "offset:1024"), (f"v{T+5}", "s37", "offset:1536")]),
                        (ACC, "q", [(f"v{L16}", "s35", ""), (f"v{L16}", "s36", "")])):
        for i in range(16):
            m = f"v{RSTD}" if sc is None else (f"v{RF+i}" if sc == "rf" else f"v{T+2}")
            k(f"v_mul_f32 v{a+i}, v{a+i}, {m}")
        for i in range(8):
            k(f"v_cvt_pk_bf16_f32 v{P+i}, v{a+2*i}, v{a+2*i+1}")
        for j in range(2):
            k(f"buffer_store_dwordx4 {vr(P+4*j,4)}, {st[j][0]}, s[12:15], {st[j][1]} offen {st[j][2]} {HO}")
        P += 8
    nA = k.bars - b0
    k(f"s_branch {lendA}")
    k.label(lhiA)
    k.bars = b0
    lnn, ltp, lnt = k.new("nn"), k.new("tp"), k.new("nt")
    k.srd(16, PDBG, 256)
    k(f"""
    v_mov_b32 v10, 0
    s_cmp_lg_u32 s{CW}, 7
    s_cbranch_scc1 {lnt}
    s_cmp_lg_u32 s2, 0
    s_cbranch_scc1 {lnn}
    s_memrealtime s[84:85]
    s_waitcnt lgkmcnt(0)
    s_or_b32 s84, s84, 1
    v_mov_b32 v8, s84
    v_mov_b32 v9, s85
    s_mov_b64 exec, 1
    buffer_store_dwordx2 v[8:9], v10, s[16:19], 0 offen {HO}
    s_mov_b64 exec, -1
    """)
    k.label(lnn)
    k.idle_bars(nA)
    k("s_mov_b32 s45, 30000")
    k.label(ltp)
    k(f"""
    buffer_load_dwordx2 v[8:9], v10, s[16:19], 0 offen {HO}
    s_waitcnt vmcnt(0)
    v_readfirstlane_b32 s84, v8
    v_readfirstlane_b32 s85, v9
    s_nop 3
    s_cmp_lg_u32 s84, 0
    s_cbranch_scc1 {lendA}
    s_sub_u32 s45, s45, 1
    s_cmp_lg_u32 s45, 0
    s_cbranch_scc1 {ltp}
    s_branch {lendA}
    """)
    k.label(lnt)
    k.bars = b0
    k.idle_bars(nA)
    k.label(lendA)
    def end_phase(out_arr, out_line, in_arr, in_line, n_in, between=None):
        k("s_waitcnt vmcnt(0)")
        k.bar()
        ls = k.new("ns")
        k(f"s_cmp_lg_u32 s{CW}, 7\ns_cbranch_scc1 {ls}")
        out_line()
        signal_and_wait(k, out_arr, 46, None, 47, n_in)
        k.label(ls)
        if between: between()
        ls = k.new("np")
        k(f"s_cmp_lg_u32 s{CW}, 7\ns_cbranch_scc1 {ls}")
        in_line()
        signal_and_wait(k, None, 46, in_arr, 47, n_in)
        k.label(ls)
        k.bar()
    AK, AV, Q, KF, VF, P, C, O, S0, M, T = 10, 11, 12, 16, 24, 40, 48, 64, 80, 112, 113
    AV0, AVS = 118, 119
    NIT = 16
    SW = E("SW", 13)
    def zero_state():
        for i in range(16): k(f"v_mov_b32 v{O+i}, 0")
        for i in range(4): k(f"v_mov_b32 v{P+4+i}, 0\nv_mov_b32 v{VF+12+i}, 0")
    def b_setup():
        lp = k.new("pr")
        k(f"""
        s_lshl_b32 s29, s{QB}, 3
        s_add_u32 s29, s29, s{CW}
        s_lshl_b32 s30, s{HEAD}, 16
        s_lshl_b32 s31, s29, 10
        s_add_u32 s30, s30, s31
        s_add_u32 s30, s30, {WS_QF}
        v_and_b32 v{T+1}, 11, v0
        v_cmp_eq_u32 vcc, 0, v{T+1}
        v_mov_b32 v{T+2}, 0x3f803f80
        s_lshl_b32 s31, s{CW}, 10
        s_add_u32 s31, s31, {ONESB}
        v_cndmask_b32 v{S0}, 0, v{T+2}, vcc
        v_add_u32 v{T+1}, s31, v{L16}
        v_mov_b32 v{S0+1}, v{S0}
        v_mov_b32 v{S0+2}, v{S0}
        v_mov_b32 v{S0+3}, v{S0}
        ds_write_b128 v{T+1}, {vr(S0,4)}
        ds_write_b128 v{T+1}, {vr(S0,4)} offset:2048
        v_and_b32 v{AV0}, 15, v0
        v_lshlrev_b32 v{AV0}, 4, v{AV0}
        v_lshl_add_u32 v{AV0}, v{HH}, 8, v{AV0}
        v_and_b32 v{T+1}, 16, v0
        v_cmp_eq_u32 vcc, 0, v{T+1}
        v_mov_b32 v{T+1}, {ONESB}
        v_mov_b32 v{T+2}, 1024
        v_mov_b32 v{T+3}, 8192
        v_cndmask_b32 v{T+1}, v{T+1}, v{T+2}, vcc
        v_cndmask_b32 v{AVS}, 0, v{T+3}, vcc
        v_add_u32 v{AV0}, v{AV0}, v{T+1}
        s_mov_b32 s36, 0
        s_mov_b32 s39, 1
        s_lshl_b32 s29, s29, 15
        s_lshl_b32 s31, s{HEAD}, 10
        s_add_u32 s29, s29, s31
        s_add_u32 s29, s29, {WS_OF}
        s_setprio 1
        s_cmp_lt_u32 s{CW}, 4
        s_cbranch_scc1 {lp}
        s_setprio 2
        """)
        k.label(lp)
        zero_state()
        k("s_waitcnt lgkmcnt(0)")
    k.mark(3)
    end_phase(0, lambda: k(f"s_lshl_b32 s46, s{NTA}, 5\ns_add_u32 s46, s46, s{MTA}"),
              0, lambda: k(f"s_lshr_b32 s47, s{HEAD}, 2\ns_lshl_b32 s47, s47, 5"), 32, between=b_setup)
    cnt['A'] = k.bars
    k.mark(4)
    k(f"buffer_load_dwordx4 {vr(Q,4)}, v{L16}, s[12:15], s30 offen {HO}")
    k("s_waitcnt vmcnt(0)")
    k.bar()
    k(f"ds_read_b128 {vr(KF,4)}, v{L16}\ns_waitcnt lgkmcnt(0)")
    k.mfma(S0, KF, Q, "0")
    k("s_nop 15")
    def max16(src, dst, first):
        if first:
            k(f"v_max3_f32 v{dst}, v{src}, v{src+1}, v{src+2}\nv_max_f32 v{dst}, v{dst}, v{src+3}")
            rng = range(4, 16, 2)
        else: rng = range(0, 16, 2)
        for i in rng: k(f"v_max3_f32 v{dst}, v{dst}, v{src+i}, v{src+i+1}")
    max16(S0, M, True)
    lhave, lnob, lloop, lswp, ldone, lmax, lfin = [k.new(x) for x in ("have","nobar","aloop","swp","adone","maxl","afin")]
    k.label(lhave)
    k(f"""
    v_mov_b32 v{T+1}, v{M}
    v_mov_b32 v{AK}, v{L16}
    v_mov_b32 v{AV}, v{AV0}
    v_permlane32_swap_b32 v{M}, v{T+1}
    ds_read_b128 {vr(KF,4)}, v{AK}
    ds_read_b128 {vr(KF+4,4)}, v{AK} offset:2048
    ds_read_b128 {vr(VF,4)}, v{AV}
    ds_read_b128 {vr(VF+4,4)}, v{AV} offset:512
    v_max_f32 v{M}, v{M}, v{T+1}
    """)
    for i in range(16): k(f"v_sub_f32 v{C+i}, 0, v{M}")
    k("s_waitcnt lgkmcnt(3)\ns_mov_b32 s37, 0")
    k.mfma(S0, KF, Q, C)
    k(f"s_cmp_lg_u32 s36, 0\ns_cbranch_scc1 {lnob}")
    k.bar()
    k.label(lnob)
    k("s_nop 7")
    k.label(lloop)
    for t in range(4):
        sb = S0 + 16*(t & 1); sn = S0 + 16*((t+1) & 1)
        kn = KF + 4*((t+1) & 1); kf = KF + 4*(t & 1)
        vc = VF + 8*(t & 1); vn = VF + 8*((t+1) & 1)
        ex = lambda i: k(f"v_exp_f32 v{sb+i}, v{sb+i}")
        cv = lambda i: k(f"v_cvt_pk_bf16_f32 v{P+i}, v{sb+2*i}, v{sb+2*i+1}")
        k("s_waitcnt lgkmcnt(2)")
        k.mfma(sn, kn, Q, C)
        ex(0)
        k(f"ds_read_b128 {vr(kf,4)}, v{AK} offset:{(t+2)*2048}")
        ex(1); ex(2); ex(3)
        k.mfma(O, vn+4, P+4)
        ex(4)
        k(f"ds_read_b128 {vr(vn,4)}, v{AV} offset:{(t+1)*2048}")
        ex(5)
        k(f"ds_read_b128 {vr(vn+4,4)}, v{AV} offset:{(t+1)*2048+512}")
        ex(6); ex(7)
        for i in range(4): cv(i)
        ex(8)
        k("s_waitcnt lgkmcnt(3)")
        ex(9)
        k.mfma(O, vc, P)
        for i in range(10, 16):
            ex(i)
            if t == 3 and i == 10: k("s_add_u32 s37, s37, 1")
            if t == 3 and i == 11: k("s_cmp_lt_u32 s37, s39")
        if t == 3:
            k(f"v_add_u32 v{AK}, 8192, v{AK}\nv_add_u32 v{AV}, v{AVS}, v{AV}")
        for i in range(4, 8): cv(i)
    CP2 = E("CP2", 3)
    k(f"""
    s_cbranch_scc1 {lloop}
    s_cmp_eq_u32 s37, {NIT}
    s_cbranch_scc1 {ldone}
    s_cmp_gt_u32 s37, {CP2}
    s_cbranch_scc1 {lswp}
    s_barrier
    s_cmp_eq_u32 s37, 1
    s_cselect_b32 s39, {CP2}, {SW}
    s_branch {lloop}
    """)
    k.bars += 2
    k.label(lswp)
    k(f"""
    s_mov_b32 s39, {NIT}
    s_cmp_lt_u32 s{CW}, 4
    s_cbranch_scc1 {lloop}
    s_setprio 0
    s_branch {lloop}
    """)
    k.label(ldone)
    k.mfma(O, VF+12, P+4)
    k(f"""
    s_waitcnt lgkmcnt(0)
    s_mov_b32 s38, {f32(2.0**60)}
    s_nop 13
    v_cmp_nlt_f32 vcc, v{O+8}, s38
    v_rcp_f32 v{T+3}, v{O+8}
    s_cmp_lg_u32 s36, 0
    s_cbranch_scc1 {lfin}
    s_cbranch_vccz {lfin}
    s_mov_b32 s36, 1
    s_mov_b32 s37, 0
    v_mov_b32 v{AK}, v{L16}
    v_mov_b32 v{M}, 0xff800000
    """)
    zero_state()
    k.label(lmax)
    k(f"ds_read_b128 {vr(KF,4)}, v{AK}\ns_waitcnt lgkmcnt(0)")
    k.mfma(S0, KF, Q, "0")
    k("s_nop 15")
    max16(S0, M, False)
    k(f"""
    v_add_u32 v{AK}, 2048, v{AK}
    s_add_u32 s37, s37, 1
    s_cmp_lt_u32 s37, 64
    s_cbranch_scc1 {lmax}
    s_branch {lhave}
    """)
    k.label(lfin)
    for i in range(8): k(f"v_mul_f32 v{O+i}, v{O+i}, v{T+3}")
    for i in range(4): k(f"v_cvt_pk_bf16_f32 v{P+i}, v{O+2*i}, v{O+2*i+1}")
    k(f"buffer_store_dwordx4 {vr(P,4)}, v{L16}, s[12:15], s29 offen {HO}")
    k("s_setprio 0")
    k.mark(5)
    AA, AW, CA, CWA = 10, 11, 12, 13
    ACC, BUF, T = 16, 32, 96
    def c_setup():
        k(f"""
        s_and_b32 s29, s{CW}, 1          ; ms
        s_bfe_u32 s30, s{CW}, 0x10001    ; nh
        s_lshl_b32 s31, s30, 6
        s_lshl_b32 s32, s29, 12
        v_add_u32 v{AA}, s32, v{L16}
        s_lshl_b32 s36, s{MT64}, 1
        s_add_u32 s36, s36, s29          ; mt32
        s_lshl_b32 s37, s{NT8}, 2
        s_lshl_b32 s38, s30, 1
        s_add_u32 s37, s37, s38          ; 2*nt32
        """)
        w_tr_addr(k, AW, 14, 15, 31, 512, 0)
    def c_between():
        c_setup()
        k(f"""
        v_add_u32 v{CA}, {C_A}, v{AA}
        v_mov_b32 v{CWA}, v{AW}
        v_lshlrev_b32 v14, 7, v{MM}
        v_add_u32 v14, s32, v14
        v_lshl_add_u32 v14, v{HH}, 3, v14
        v_add_u32 v14, {C_X}, v14
        v_bfe_u32 v15, v0, 1, 3
        v_lshlrev_b32 v15, 4, v15
        v_xor_b32 v15, s31, v15
        """)
        for g in range(4):
            k(f"v_xor_b32 v{T+16+g}, {g*16}, v15\nv_add_u32 v{T+16+g}, v{T+16+g}, v14")
    end_phase(1, lambda: k(f"s_lshl_b32 s46, s{QB}, 5\ns_add_u32 s46, s46, s{HEAD}"),
              1, lambda: k(f"s_lshr_b32 s47, s{MT64}, 2\ns_lshl_b32 s47, s47, 5"), 32, between=c_between)
    cnt['B'] = k.bars
    k.mark(6)
    def reads64(ks, st):
        b = BUF + 8*ks + 32*st
        return [f"ds_read_b128 {vr(b,4)}, v{CA} offset:{ks*1024}"] + \
               [f"ds_read_b64_tr_b16 {vr(b+4+2*t,2)}, v{CWA} offset:{ks*2048 + t*1024}" for t in range(2)]
    def work64(ks, st):
        b = BUF + 8*ks + 32*st
        return [k.mfma_s(ACC, b+4, b)]
    lhi, lend, lend2 = k.new("hiC"), k.new("endC"), k.new("endC2")
    k(f"s_cmp_ge_u32 s{CW}, 4\ns_cbranch_scc1 {lhi}")
    b0 = k.bars
    def c_first():
        for g in range(4): k(f"ds_read_b64 {vr(T+4+2*g,2)}, v{T+16+g}")
        k("s_waitcnt lgkmcnt(0)")
        for i in range(8):
            k(f"v_lshlrev_b32 v{ACC+2*i}, 16, v{T+4+i}\nv_and_b32 v{ACC+2*i+1}, 0xffff0000, v{T+4+i}")
    compute_loop(k, 8, 4, reads64, work64, lambda: k(f"v_add_u32 v{CA}, 8192, v{CA}\nv_add_u32 v{CWA}, 8192, v{CWA}"), 34, pre_first=c_first)
    k.bar()
    k(f"""
    v_mov_b32 v{T+12}, 0x3f803f80
    v_mov_b32 v{T+14}, 0
    v_mov_b32 v{T+15}, 0
    s_lshl_b32 s38, s36, 15
    s_lshl_b32 s39, s37, 10
    s_add_u32 s38, s38, s39
    s_add_u32 s38, s38, {WS_HF}
    s_lshl_b32 s39, s36, 12
    s_lshl_b32 s40, s37, 7
    s_add_u32 s39, s39, s40
    s_add_u32 s39, s39, {WS_ST}
    v_lshlrev_b32 v{T+13}, 3, v{MM}
    s_nop 1
    """)
    for i in range(8): k(f"v_cvt_pk_bf16_f32 v{HSAVE+i}, v{ACC+2*i}, v{ACC+2*i+1}")
    k(f"buffer_store_dwordx4 {vr(HSAVE,4)}, v{L16}, s[12:15], s38 offen {HO}")
    k(f"buffer_store_dwordx4 {vr(HSAVE+4,4)}, v{L16}, s[12:15], s38 offen offset:1024 {HO}")
    for i in range(8):
        k(f"v_dot2_f32_bf16 v{T+14}, v{HSAVE+i}, v{T+12}, v{T+14}")
        k(f"v_dot2_f32_bf16 v{T+15}, v{HSAVE+i}, v{HSAVE+i}, v{T+15}")
    k("s_nop 2")
    xhalf_sum(k, T+14, T+16)
    xhalf_sum(k, T+15, T+16)
    k(f"s_mov_b64 exec, 0xffffffff\nbuffer_store_dwordx2 {vr(T+14,2)}, v{T+13}, s[12:15], s39 offen {HO}\ns_mov_b64 exec, -1")
    nC = k.bars - b0
    k(f"s_branch {lend}")
    k.label(lhi)
    k.bars = b0
    k.idle_bars(nC)
    k.label(lend)
    k.mark(7)
    f3_out = lambda: k(f"s_lshl_b32 s46, s{MT64}, 3\ns_add_u32 s46, s46, s{NT8}")
    f4_in = lambda: k(f"s_lshr_b32 s47, s{MT64}, 1\ns_lshl_b32 s47, s47, 4")
    def e_between():
        c_setup()
        k(f"""
        v_add_u32 v{AA}, {E_A}, v{AA}
        v_mov_b32 v{CA}, v{AA}
        v_mov_b32 v{CWA}, v{AW}
        s_mov_b32 s33, 0
        s_mov_b32 s35, 0
        """)
        for i in range(8):
            k(f"v_lshlrev_b32 v{16+2*i}, 16, v{HSAVE+i}\nv_and_b32 v{16+2*i+1}, 0xffff0000, v{HSAVE+i}")
    lD, lE = k.new("phD"), k.new("phE")
    k(f"s_cmp_lt_u32 s2, 224\ns_cbranch_scc1 {lD}")
    b0 = k.bars
    end_phase(2, f3_out, 3, f4_in, 14, between=e_between)
    k(f"s_branch {lE}")
    bskip = k.bars - b0
    k.bars = b0
    k.label(lD)
    DACC, DBUF, DT = 16, 48, 136
    RS, BB, CS = 8, 14, 15
    def d_between():
        k(f"""
        s_and_b32 s29, s{CW}, 1          ; mp
        s_lshr_b32 s30, s{CW}, 1         ; nq
        s_and_b32 s31, s30, 1
        s_lshl_b32 s31, s31, 6
        s_lshr_b32 s32, s30, 1
        s_lshl_b32 s32, s32, 13
        s_lshl_b32 s33, s29, 13
        s_add_u32 s33, s33, {D_A}
        v_add_u32 v{AA}, s33, v{L16}
        s_lshl_b32 s36, s{MT128}, 2
        s_lshl_b32 s37, s29, 1
        s_add_u32 s36, s36, s37
        s_lshl_b32 s37, s{NT14}, 2
        s_add_u32 s37, s37, s30          ; nt32 (0..55)
        s_lshl_b32 s38, s37, 6
        v_lshlrev_b32 v{DT}, 1, v{MM}
        s_lshl_b32 s39, s37, 7
        s_add_u32 s39, s39, {WS_C1}
        s_add_u32 s40, s39, {2*1792*4}
        v_mul_u32_u24 v{DT+1}, {4*1792*4}, v{HH}
        v_lshl_add_u32 v{DT+1}, v{MM}, 2, v{DT+1}
        v_add_u32 v{DT+2}, {1792*4}, v{DT+1}
        """)
        k.srd(16, PB1, 3584)
        k(f"""
        buffer_load_ushort v{BB}, v{DT}, s[16:19], s38 offen
        """)
        w_tr_addr(k, AW, DT+8, DT+9, 31, 512, D_W)
        k(f"""
        v_add_u32 v{AW}, s32, v{AW}
        v_mov_b32 v{CA}, v{AA}
        v_mov_b32 v{CWA}, v{AW}
        s_mov_b32 s33, 0
        s_mov_b32 s35, 0
        s_lshr_b32 s41, s{CW}, 2
        s_lshl_b32 s41, s41, {E("HOOKSH", 1)}
        s_sub_u32 s41, 4, s41
        s_lshl_b32 s38, s29, 13
        s_add_u32 s38, s38, {D_ST}
        v_lshlrev_b32 v{DT+3}, 3, v0
        v_add_u32 v{DT+3}, s38, v{DT+3}
        """)
        for i in range(32): k(f"v_mov_b32 v{DACC+i}, 0")
    end_phase(2, f3_out, 2, lambda: k(f"s_lshl_b32 s47, s{MT128}, 4"), -1, between=d_between)
    k.mark(8)
    def d_first():
        k(f"""
        buffer_load_dword v{DT+4}, v{DT+1}, s[12:15], s39 offen {HO}
        buffer_load_dword v{DT+5}, v{DT+2}, s[12:15], s39 offen {HO}
        buffer_load_dword v{DT+6}, v{DT+1}, s[12:15], s40 offen {HO}
        buffer_load_dword v{DT+7}, v{DT+2}, s[12:15], s40 offen {HO}
        """)
    def readsD(ks, st):
        b = DBUF + 12*ks + 24*st
        kk = 2*st + ks
        return [f"ds_read_b64_tr_b16 {vr(b+8+2*t,2)}, v{CWA} offset:{kk*2048 + t*1024}" for t in range(2)] + \
               [f"ds_read_b128 {vr(b,4)}, v{CA} offset:{kk*1024}", f"ds_read_b128 {vr(b+4,4)}, v{CA} offset:{4096+kk*1024}"]
    def workD(ks, st):
        b = DBUF + 12*ks + 24*st
        return [k.mfma_s(DACC, b+8, b), k.mfma_s(DACC+16, b+8, b+4)]
    def updD():
        ring_step(k, 33, 16384, D_DA*16384)
        ring_step(k, 35, 16384, D_DW*16384)
        k(f"v_add_u32 v{CA}, s33, v{AA}\nv_add_u32 v{CWA}, s35, v{AW}")
    def hookD():
        ln = k.new("nohk")
        k(f"s_cmp_lg_u32 s34, s41\ns_cbranch_scc1 {ln}")
        SL = DBUF + 48
        OA, MB = DT+8, SL+32
        k("s_waitcnt lgkmcnt(0)")
        for ms in range(2):
            for i in range(8):
                if ms == 1 and i == 4: k("s_waitcnt lgkmcnt(8)")
                k(f"ds_read_b64 {vr(SL+16*ms+2*i,2)}, v{DT+3} offset:{ms*4096 + i*512}")
        k(f"""
        s_waitcnt vmcnt(0)
        v_cmp_gt_u32 vcc, 32, v0
        v_add_f32 v{DT+4}, v{DT+4}, v{DT+5}
        v_add_f32 v{DT+6}, v{DT+6}, v{DT+7}
        v_cndmask_b32 v{BB}, 0, v{BB}, vcc
        v_add_f32 v{CS}, v{DT+4}, v{DT+6}
        """)
        split_hilo(k, CS, DT+4, DT+5, DT+6)
        k(f"""
        v_cvt_pk_bf16_f32 v{OA}, v{DT+4}, v{DT+4}
        v_cvt_pk_bf16_f32 v{OA+1}, v{DT+5}, 0
        v_lshl_or_b32 v{OA+1}, v{BB}, 16, v{OA+1}
        v_mov_b32 v{OA+2}, v{BB}
        v_mov_b32 v{OA+3}, 0
        s_waitcnt lgkmcnt(0)
        """)
        for ms in range(2):
            b = SL + 16*ms
            for i in range(1, 8):
                k(f"v_add_f32 v{b}, v{b}, v{b+2*i}\nv_add_f32 v{b+1}, v{b+1}, v{b+2*i+1}")
            xhalf_sum(k, b, DT+4)
            xhalf_sum(k, b+1, DT+4)
            mb = MB + 4*ms
            k(f"""
            v_mul_f32 v{b}, {f32(-1.0/512)}, v{b}
            v_mul_f32 v{b+1}, {f32(1.0/512)}, v{b+1}
            v_fma_f32 v{b+1}, -v{b}, v{b}, v{b+1}
            v_max_f32 v{b+1}, 0, v{b+1}
            v_add_f32 v{b+1}, {f32(1e-5)}, v{b+1}
            v_rsq_f32 v{RS+ms}, v{b+1}
            s_nop 0
            v_mul_f32 v{b+1}, v{b+1}, v{RS+ms}
            v_mul_f32 v{RS+ms}, {f32(LOG2E)}, v{RS+ms}
            """)
            split_hilo(k, b, DT+4, DT+5, DT+6)
            k(f"v_cvt_pk_bf16_f32 v{mb}, v{DT+4}, v{DT+5}")
            split_hilo(k, b+1, DT+7, DT+5, DT+6)
            k(f"v_cvt_pk_bf16_f32 v{mb+1}, v{DT+4}, v{DT+7}\nv_cvt_pk_bf16_f32 v{mb+2}, v{DT+5}, 0\nv_mov_b32 v{mb+3}, 0")
        k("s_nop 1")
        k.mfma(DACC, OA, MB)
        k.mfma(DACC+16, OA, MB+4)
        k.label(ln)
    compute_loop(k, 16, 2, readsD, workD, updD, 34, pair=True, pre_first=d_first, hook=hookD)
    k.bar()
    k.mark(9)
    k(f"""
    s_mul_i32 s38, s36, {112*1024}
    s_lshl_b32 s39, s37, 11
    s_add_u32 s38, s38, s39
    s_add_u32 s38, s38, {WS_AF}
    s_add_u32 s39, s38, {112*1024}
    v_mov_b32 v{DT+12}, {f32(-2*LN2)}
    s_nop 5
    """)
    U, PP = DBUF, DBUF+16
    for ms in range(2):
        a = DACC + 16*ms
        for i in range(16): k(f"v_mul_f32 v{a+i}, v{a+i}, v{RS+ms}")
        for i in range(16): k(f"v_exp_f32 v{U+i}, v{a+i}")
        for i in range(16): k(f"v_add_f32 v{U+i}, 1.0, v{U+i}")
        for i in range(16): k(f"v_fma_f32 v{U+i}, v{U+i}, v{U+i}, 1.0")
        for i in range(16): k(f"v_rcp_f32 v{U+i}, v{U+i}")
        for i in range(16): k(f"v_fmaak_f32 v{U+i}, v{U+i}, v{DT+12}, {f32(LN2)}")
        for i in range(16): k(f"v_mul_f32 v{a+i}, v{a+i}, v{U+i}")
        for i in range(8): k(f"v_cvt_pk_bf16_f32 v{PP+8*ms+i}, v{a+2*i}, v{a+2*i+1}")
        so = "s38" if ms == 0 else "s39"
        k(f"buffer_store_dwordx4 {vr(PP+8*ms,4)}, v{L16}, s[12:15], {so} offen {HO}")
        k(f"buffer_store_dwordx4 {vr(PP+8*ms+4,4)}, v{L16}, s[12:15], {so} offen offset:1024 {HO}")
    k.mark(10)
    end_phase(3, lambda: k(f"s_lshl_b32 s46, s{MT128}, 4\ns_add_u32 s46, s46, s{NT14}"), 3, f4_in, 14, between=e_between)
    cnt['Dextra'] = k.bars - b0 - bskip
    k.label(lE)
    k.mark(11)
    lhi = k.new("hiE")
    k(f"s_cmp_ge_u32 s{CW}, 4\ns_cbranch_scc1 {lhi}")
    b0 = k.bars
    def updE():
        ring_step(k, 33, 8192, E_DA*8192)
        ring_step(k, 35, 8192, E_DW*8192)
        k(f"v_add_u32 v{CA}, s33, v{AA}\nv_add_u32 v{CWA}, s35, v{AW}")
    compute_loop(k, 28, 4, reads64, work64, updE, 34)
    cnt['total'] = k.bars
    k.srd(16, POUT, 2048*1024)
    PQ = T+4
    k(f"""
    s_lshl_b32 s38, s36, 15
    s_lshl_b32 s39, s37, 5
    s_add_u32 s38, s38, s39
    v_lshlrev_b32 v{T+13}, 10, v{MM}
    v_lshl_add_u32 v{T+13}, v{HH}, 4, v{T+13}
    s_nop 4
    """)
    for i in range(8): k(f"v_cvt_pk_bf16_f32 v{PQ+i}, v{ACC+2*i}, v{ACC+2*i+1}")
    k("s_nop 1")
    for p in range(2):
        k(f"v_permlane32_swap_b32 v{PQ+4*p}, v{PQ+4*p+2}\nv_permlane32_swap_b32 v{PQ+4*p+1}, v{PQ+4*p+3}")
    k(f"buffer_store_dwordx4 {vr(PQ,4)}, v{T+13}, s[16:19], s38 offen")
    k(f"buffer_store_dwordx4 {vr(PQ+4,4)}, v{T+13}, s[16:19], s38 offen offset:32")
    if E("DBGT", 0):
        k.srd(16, PDBG, 256)
        k("""
        s_waitcnt vmcnt(0)
        s_memrealtime s[44:45]
        v_mov_b32 v4, 0
        buffer_load_dword v5, v4, s[16:19], 0 offen sc1
        s_waitcnt vmcnt(0) lgkmcnt(0)
        v_sub_u32 v5, s44, v5
        s_mov_b64 exec, 1
        buffer_atomic_umax v5, v4, s[16:19], 0 offen offset:16
        """)
    k.label(lhi)
    stamp_out(k)
    k("s_endpgm")
    return cnt

def build(path):
    k = K()
    if STAMP:
        k("s_memrealtime s[60:61]\ns_memtime s[62:63]\ns_waitcnt lgkmcnt(0)\ns_mov_b32 s63, s60")
        for i in range(12): k(f"s_mov_b32 s{88+i}, 0")
    k(f"""
    s_cmp_ge_u32 s2, 256
    s_cbranch_scc1 Lexit
    s_load_dwordx16 s[64:79], s[0:1], 0
    s_load_dwordx4 s[80:83], s[0:1], 64
    v_lshrrev_b32 v1, 6, v0
    v_and_b32 v0, 63, v0
    s_and_b32 s20, s2, 7
    v_readfirstlane_b32 s3, v1
    s_lshr_b32 s21, s2, 3
    v_lshrrev_b32 v{HH}, 5, v0
    v_lshlrev_b32 v{L16}, 4, v0
    v_and_b32 v{MM}, 31, v0
    s_and_b32 s28, s20, 3
    s_lshr_b32 s29, s20, 2
    s_lshl_b32 s{MTA}, s28, 3
    s_and_b32 s30, s21, 7
    s_add_u32 s{MTA}, s{MTA}, s30
    s_lshl_b32 s{NTA}, s29, 2
    s_lshr_b32 s30, s21, 3
    s_add_u32 s{NTA}, s{NTA}, s30
    s_lshl_b32 s{HEAD}, s20, 2
    s_and_b32 s30, s21, 3
    s_add_u32 s{HEAD}, s{HEAD}, s30
    s_lshr_b32 s{QB}, s21, 2
    s_mov_b32 s{MT64}, s{HEAD}
    s_mov_b32 s{NT8}, s{QB}
    s_lshl_b32 s{MT128}, s28, 2
    s_add_u32 s{MT128}, s{MT128}, s30
    s_mul_i32 s{NT14}, s29, 7
    s_add_u32 s{NT14}, s{NT14}, s{QB}
    s_cmp_ge_u32 s3, 4
    s_cbranch_scc1 Lcompute
    """)
    k.bars = 0
    c1 = loader(k)
    k.label("Lcompute")
    k.bars = 0
    c2 = compute(k)
    assert c1 == c2, (c1, c2)
    k.label("Lexit")
    k("s_endpgm")
    ref = open(f"cdna_kernels/{NAME}.s.ref").read().split("\n")
    head = [l for l in ref if l.startswith(";") and "@launch" not in l]
    out = "\n".join(head) + f"\n; @launch grid=(256,1,1) block=(768,1,1) lds={LDS_TOTAL}\n"
    out += f'.amdgcn_target "amdgcn-amd-amdhsa--gfx950"\n.text\n.globl {NAME}_kernel\n.p2align 8\n.type {NAME}_kernel,@function\n{NAME}_kernel:\n'
    out += "\n".join(k.L).replace("CODE_SPAN", f"Lexit - {NAME}_kernel - 512") + "\n"
    out += f""".section .rodata,"a"
.p2align 6
.amdhsa_kernel {NAME}_kernel
  .amdhsa_next_free_vgpr 168
  .amdhsa_next_free_sgpr 102
  .amdhsa_accum_offset 168
  .amdhsa_group_segment_fixed_size 0
  .amdhsa_kernarg_size 80
  .amdhsa_user_sgpr_count 2
  .amdhsa_user_sgpr_kernarg_segment_ptr 1
  .amdhsa_system_sgpr_workgroup_id_x 1
.end_amdhsa_kernel
"""
    open(path, "w").write(out)
    print("barriers", c1, "lines", len(k.L))
if __name__ == "__main__":
    build(sys.argv[1])
```

```python
import sys
from fz import *

A_DP = 3
A_SUB = 12288
XBLK = 528; XSUB = 64*XBLK; A_RS = 2*XSUB; A_WB = 68096
assert A_WB + A_DP*2*A_SUB <= LDS_TOTAL
B_SLAB = 141312
ONESB = 131072
C_W, C_A, C_X = 0, 65536, 149504
D_DW, D_DA = E("D_DW", 5), E("D_DA", 4)
D_W, D_A, D_ST = 0, D_DW*16384, (D_DW+D_DA)*16384
assert D_ST + 16384 <= LDS_TOTAL
E_DW, E_DA = E("E_DW", 12), E("E_DA", 8)
E_W, E_A = 0, E_DW*8192
assert (E_DW+E_DA)*8192 <= LDS_TOTAL
STG = 24
MT64, NT8, HEAD, QB, MT128, NT14 = 22, 23, 24, 25, 26, 27
MTA, NTA = 56, 57

def stamp_out(k):
    if not STAMP: return
    if E("DBGW", 0):
        l = k.new("nodbg")
        k(f"""
        s_cmp_lg_u32 s2, {E("DBGWG", 0)}
        s_cbranch_scc1 {l}
        s_cmp_lg_u32 s3, 4
        s_cbranch_scc1 {l}
        s_waitcnt vmcnt(0) lgkmcnt(0)
        s_memrealtime s[60:61]
        s_memtime s[86:87]
        s_waitcnt lgkmcnt(0)
        s_sub_u32 s86, s86, s62
        s_sub_u32 s60, s60, s63
        s_mov_b64 exec, 1
        v_mov_b32 v0, 0
        v_mov_b32 v4, s60
        v_mov_b32 v5, s86
        global_store_dwordx2 v0, v[4:5], s[80:81] offset:8
        """)
        for j in range(3):
            for i in range(4): k(f"s_sub_u32 s{88+4*j+i}, s{88+4*j+i}, s63\nv_mov_b32 v{8+4*j+i}, s{88+4*j+i}")
            k(f"global_store_dwordx4 v0, v[{8+4*j}:{11+4*j}], s[80:81] offset:{16+16*j}")
        k.label(l)
        return
    k(f"""
    s_waitcnt vmcnt(0) lgkmcnt(0)
    s_memrealtime s[60:61]
    s_memtime s[86:87]
    s_lshl_b32 s44, s2, 4
    s_add_u32 s44, s44, s3
    s_lshl_b32 s44, s44, 6
    s_add_u32 s44, s44, {WS_DBG}
    s_waitcnt lgkmcnt(0)
    s_sub_u32 s86, s86, s62
    s_mov_b64 exec, 1
    v_mov_b32 v0, s44
    v_mov_b32 v4, s63
    v_mov_b32 v5, s60
    v_mov_b32 v6, s86
    v_mov_b32 v7, 0
    global_store_dwordx4 v0, v[4:7], s[82:83]
    """)
    for j in range(3):
        for i in range(4): k(f"v_mov_b32 v{8+4*j+i}, s{88+4*j+i}")
        k(f"global_store_dwordx4 v0, v[{8+4*j}:{11+4*j}], s[82:83] offset:{16+16*j}")

def loader(k):
    cnt = {}
    ops = Ops(k)
    if E("CODEPF", 1):
        lnp = k.new("ncp")
        k(f"""
        s_getpc_b64 s[40:41]
        v_lshlrev_b32 v5, 7, v0
        s_lshl_b32 s42, s3, 13
        v_add_u32 v5, s42, v5
        v_min_u32 v5, CODE_SPAN, v5
        global_load_dword v6, v5, s[40:41]
        """)
    k(f"""
    s_add_u32 s28, s{MTA}, s{NTA}
    s_and_b32 s28, s28, 7
    s_mul_i32 s28, s28, {64*3072}
    s_lshl_b32 s29, s3, 3            ; 8*w rows
    s_lshl_b32 s30, s{NTA}, 7
    s_lshl_b32 s33, s3, 10           ; w*1024
    s_lshl_b32 s35, s3, 11           ; w*2048
    s_mul_i32 s31, s3, 3072
    s_add_u32 s31, s31, {A_WB}
    """)
    w_dma_voff(k, 4, 9, 10, 3072, 29, 30)
    k("s_waitcnt lgkmcnt(0)")
    k.srd(16, PWQKV, 512*1536*2)
    k.srd(12, PWS, WS_SIZE)
    k.bar()
    def issueW_A(p):
        b = (p % A_DP) * 2*A_SUB
        k(f"s_add_u32 m0, s31, {b}\ns_add_u32 s32, s28, {32*3072}")
        for pn in range(3): k(f"buffer_load_dwordx4 v4, s[16:19], s28 offen offset:{pn*1024} lds")
        k(f"s_add_u32 m0, s31, {b + A_SUB}")
        ring_step(k, 28, 64*3072, 512*3072)
        for pn in range(3): k(f"buffer_load_dwordx4 v4, s[16:19], s32 offen offset:{pn*1024} lds")
        ops.add(("W", p), 6)
    for p in range(A_DP): issueW_A(p)
    k.mark(0)
    ring_loader_main(k, ops, 8, 99, A_DP, 99, None, issueW_A, 8, A_DP, bmark=E("AMARK", 0))
    if E("AMARK", 0): k.mark = lambda i: None
    k.mark(1)
    k(f"""
    s_lshl_b32 s28, s{HEAD}, 17
    s_add_u32 s28, s28, s33
    s_add_u32 s28, s28, {WS_KV}
    s_mov_b32 m0, s33
    """)
    k.bar()
    k.bar()
    cnt['A'] = k.bars
    k.mark(2)
    def rounds(n):
        l = k.new("rd")
        k(f"s_mov_b32 s30, {n}")
        k.label(l)
        k(f"""
        buffer_load_dwordx4 v{L16}, s[12:15], s28 offen {HOL} lds
        s_add_u32 m0, m0, 4096
        s_add_u32 s28, s28, 4096
        s_sub_u32 s30, s30, 1
        s_cmp_lg_u32 s30, 0
        s_cbranch_scc1 {l}
        """)
    if E("LPRIO", 3): k(f"s_setprio {E('LPRIO', 3)}")
    rounds(4)
    k("s_waitcnt vmcnt(3)")
    k.bar()
    rounds(4)
    k("s_waitcnt vmcnt(4)")
    k.bar()
    rounds(8)
    k("s_waitcnt vmcnt(0)")
    k.bar()
    rounds(16)
    k("s_waitcnt vmcnt(0)")
    k.bar()
    k.srd(16, PWO, 512*1024)
    k.srd(36, PW1, 512*3584)
    k.srd(48, PW2, 1792*1024)
    k.srd(52, PX, 2048*1024)
    k(f"""
    s_lshl_b32 s29, s3, 4            ; 16w
    s_lshl_b32 s30, s{NT8}, 7
    s_lshl_b32 s31, s{MT64}, 6
    s_add_u32 s31, s31, s29
    s_lshl_b32 s32, s{NT14}, 8
    s_lshl_b32 s34, s3, 3            ; 8w
    """)
    w_dma_voff(k, 4, 5, 6, 1024, 29, 30)
    x_dma_voff(k, 7, 8, 5, 6, 31, 30)
    w_dma_voff(k, 9, 5, 6, 3584, 29, 32)
    k(f"""
    v_lshlrev_b32 v5, 7, v0
    v_lshrrev_b32 v11, 4, v0
    v_mul_u32_u24 v11, 3584, v11
    v_and_b32 v12, 15, v0
    v_min_u32 v12, 13, v12
    v_lshl_add_u32 v11, v12, 7, v11
    s_lshl_b32 s41, s21, 2
    s_add_u32 s41, s41, s3
    s_lshl_b32 s42, s41, 13          ; j*8KB
    s_add_u32 s43, s42, {128*8192}
    s_mul_i32 s44, s41, {4*3584}
    s_lshr_b32 s45, s20, 2
    s_mul_i32 s45, s45, 1792
    s_add_u32 s44, s44, s45
    buffer_load_dword v14, v5, s[16:19], s42 offen
    buffer_load_dword v15, v11, s[36:39], s44 offen
    buffer_load_dword v16, v5, s[48:51], s42 offen
    buffer_load_dword v17, v5, s[48:51], s43 offen
    """)
    for e in range(2):
        k(f"s_add_u32 m0, s35, {C_X + e*1024}\ns_nop 0")
        k(f"buffer_load_dwordx4 v{7+e}, s[52:55], 0 offen lds")
    lns = k.new("nosl")
    k(f"s_cmp_lg_u32 s3, 0\ns_cbranch_scc1 {lns}\ns_cmp_ge_u32 s2, 224\ns_cbranch_scc1 {lns}")
    k(f"s_lshl_b32 s44, s20, 6\ns_lshl_b32 s45, s21, 7")
    w_dma_voff(k, 18, 19, 20, 3584, 44, 45)
    k(f"s_mov_b32 s44, 0\ns_mov_b32 m0, {B_SLAB}\ns_mov_b32 s45, 8")
    lsl = k.new("sl")
    k.label(lsl)
    k(f"""
    buffer_load_dwordx4 v18, s[36:39], s44 offen lds
    s_add_u32 m0, m0, 1024
    s_add_u32 s44, s44, {8*3584}
    s_sub_u32 s45, s45, 1
    s_cmp_lg_u32 s45, 0
    s_cbranch_scc1 {lsl}
    """)
    w_tr_addr(k, 18, 19, 20, 45, 512, B_SLAB)
    k("v_xor_b32 v19, 64, v18")
    for i in range(4): k(f"v_mov_b32 v{24+i}, 0x3f803f80")
    k(f"""
    s_mul_i32 s44, s20, {1792*4}
    s_lshl_b32 s45, s21, 8
    s_add_u32 s44, s44, s45
    s_add_u32 s44, s44, {WS_C1}
    v_lshlrev_b32 v20, 2, v{MM}
    s_waitcnt vmcnt(0)
    """)
    for hf in range(2):
        for ks in range(4):
            for t in range(2):
                k(f"ds_read_b64_tr_b16 {vr(28+4*ks+2*t,2)}, v{18+hf} offset:{ks*2048 + t*1024}")
        k("s_waitcnt lgkmcnt(0)")
        for ks in range(4):
            k.mfma(48+16*hf, 24, 28+4*ks, "0" if ks == 0 else None)
    k(f"""
    s_nop 15
    s_mov_b64 exec, 0xffffffff
    buffer_store_dword v48, v20, s[12:15], s44 offen {HO}
    buffer_store_dword v64, v20, s[12:15], s44 offen offset:128 {HO}
    s_mov_b64 exec, -1
    """)
    k.label(lns)
    k("s_waitcnt vmcnt(0)")
    ops.ops = []
    k.mark(3)
    k.bar()
    k.mark(4)
    def issueW64(wsrd, b):
        for e in range(2):
            k(f"s_add_u32 m0, s35, {b + e*1024}\ns_add_u32 s32, s40, {e*8192}")
            k(f"buffer_load_dwordx4 v4, s[{wsrd}:{wsrd+3}], s32 offen lds")
        k("s_add_u32 s40, s40, 65536")
    def issueA64(b, KS):
        k(f"s_add_u32 m0, s33, {b}\ns_add_u32 s32, s41, {KS*1024}")
        k(f"buffer_load_dwordx4 v{L16}, s[12:15], s41 offen {HOL} lds")
        k(f"s_add_u32 m0, s33, {b + 4096}\ns_add_u32 s41, s41, 4096")
        k(f"buffer_load_dwordx4 v{L16}, s[12:15], s32 offen {HOL} lds")
    def setup64(KS, ACT):
        k(f"""
        s_mov_b32 s40, 0
        s_mul_i32 s41, s{MT64}, {2*KS*1024}
        s_add_u32 s41, s41, s33
        s_add_u32 s41, s41, {ACT}
        """)
    setup64(32, WS_OF)
    if E("PRESLEEP", 2): k(f"s_sleep {E('PRESLEEP', 2)}")
    for s in range(8):
        issueW64(16, C_W + s*8192); ops.add(("W", s), 2)
    k.bar()
    cnt['B'] = k.bars
    k.mark(5)
    def iAC(s):
        issueA64(C_A + s*8192, 32); ops.add(("A", s), 2)
    ring_loader_main(k, ops, 8, 8, 8, E("C_LA", 6), iAC, None, 0, 8)
    k.bar()
    ops.ops = []
    lE = k.new("ldE")
    k(f"""
    s_lshl_b32 s46, s21, 2
    s_add_u32 s46, s46, s3
    s_add_u32 s46, s46, {E("PFB", 96)}
    s_lshl_b32 s46, s46, 13
    """)
    lE0 = k.new("ldE0")
    k(f"s_cmp_ge_u32 s2, 224\ns_cbranch_scc1 {lE0}")
    b0 = k.bars
    k(f"""
    s_mov_b32 s40, 0
    s_lshl_b32 s41, s{MT128}, 2
    s_add_u32 s41, s41, s3
    s_lshl_b32 s43, s41, 12
    s_add_u32 s43, s43, {WS_ST}
    s_lshl_b32 s41, s41, 15
    s_add_u32 s41, s41, {WS_HF}
    s_lshl_b32 s42, s3, 12           ; w*4096
    """)
    def issueW_D(s):
        b = D_W + (s % D_DW) * 16384
        for i in range(4):
            pn, e = i >> 1, i & 1
            k(f"s_add_u32 m0, s35, {b + pn*8192 + e*1024}\ns_add_u32 s32, s40, {e*8*3584 + pn*128}")
            k("buffer_load_dwordx4 v9, s[36:39], s32 offen lds")
        k(f"s_add_u32 s40, s40, {64*3584}")
        ops.add(("W", s), 4)
    def issueA_D(s):
        k(f"s_add_u32 m0, s42, {D_A + (s % D_DA) * 16384}\ns_nop 0")
        for i in range(4):
            k(f"buffer_load_dwordx4 v{L16}, s[12:15], s41 offen offset:{i*1024} {HOL} lds")
        k("s_add_u32 s41, s41, 4096")
        ops.add(("A", s), 4)
    def issue_stats():
        k(f"s_add_u32 m0, s42, {D_ST}\ns_nop 0")
        for i in range(4):
            k(f"buffer_load_dwordx4 v{L16}, s[12:15], s43 offen offset:{i*1024} {HOL} lds")
        ops.add(("ST", 0), 4)
    for s in range(D_DW): issueW_D(s)
    if E("PFC", 0):
        k("buffer_load_dword v17, v5, s[48:51], s46 offen"); ops.add(("PF", 0), 1)
    k.bar()
    k.bar()
    k.mark(6)
    ring_loader_main(k, ops, 8, D_DA, D_DW, E("D_LA", 3), issueA_D, issueW_D, 0, D_DW,
                     extra_need={3: [("ST", 0)]}, after_bar={0: issue_stats})
    k.bar()
    cnt['Dextra'] = k.bars - b0
    ops.ops = []
    k(f"s_branch {lE}")
    k.label(lE0)
    if E("PFC", 0): k("buffer_load_dword v17, v5, s[48:51], s46 offen")
    k.label(lE)
    k.mark(7)
    setup64(112, WS_AF)
    EP1 = E("E_PRE1", 4)
    for s in range(EP1):
        issueW64(48, E_W + s*8192); ops.add(("W", s), 2)
    k.bar()
    if E("PRESLEEP", 2): k(f"s_sleep {E('PRESLEEP', 2)}")
    for s in range(EP1, E_DW):
        issueW64(48, E_W + s*8192); ops.add(("W", s), 2)
        if E("E_PREWIN", 4): k(f"s_waitcnt vmcnt({E('E_PREWIN', 4)})")
    k.bar()
    k.mark(8)
    def iAE(s):
        if E("AB_E_NOA", 0): return
        issueA64(E_A + (s % E_DA)*8192, 112); ops.add(("A", s), 2)
    def iWE(mm):
        issueW64(48, E_W + (mm % E_DW)*8192); ops.add(("W", mm), 2)
    ring_loader_main(k, ops, 28, E_DA, E_DW, E("E_LA", 6), iAE, iWE, 0, E_DW)
    cnt['total'] = k.bars
    k.mark(9)
    stamp_out(k)
    k("s_endpgm")
    return cnt

def compute(k):
    cnt = {}
    CW = 28
    k(f"s_sub_u32 s{CW}, s3, 4")
    X, T = 64, 128
    ACC = 16
    k(f"""
    s_lshl_b32 s29, s{MTA}, 6
    s_lshl_b32 s30, s{CW}, 3
    s_add_u32 s29, s29, s30          ; row0
    v_lshrrev_b32 v6, 3, v0
    v_add_u32 v7, s29, v6
    v_lshlrev_b32 v7, 10, v7
    v_and_b32 v8, 7, v0
    v_lshl_add_u32 v7, v8, 4, v7
    s_waitcnt lgkmcnt(0)
    """)
    k.srd(16, PX, 2048*1024)
    for i in range(8):
        k(f"buffer_load_dwordx4 {vr(X+4*i,4)}, v7, s[16:19], 0 offen offset:{i*128}")
    k.bar()
    k.srd(12, PWS, WS_SIZE)
    k(f"""
    s_lshr_b32 s29, s{CW}, 2
    s_mul_i32 s29, s29, {XSUB}
    s_and_b32 s30, s{CW}, 3
    s_lshl_b32 s30, s30, 7
    s_add_u32 s29, s29, s30
    v_mul_u32_u24 v9, {XBLK}, v8
    v_lshl_add_u32 v9, v6, 4, v9
    v_add_u32 v9, s29, v9
    s_lshl_b32 s30, s{CW}, 5
    s_add_u32 s30, s30, {A_RS}
    v_lshlrev_b32 v10, 2, v6
    v_add_u32 v10, s30, v10
    v_mov_b32 v{T}, 0x3f803f80
    v_mov_b32 v{T+1}, 0x00003f80
    v_mov_b32 v{T+2}, 0x3f800000
    s_and_b32 s29, s{CW}, 1          ; ms
    s_bfe_u32 s30, s{CW}, 0x10001    ; nh
    s_lshl_b32 s31, s30, 6
    """)
    AX, AW, CX, CWA = 4, 5, 11, 12
    w_tr_addr(k, AW, 13, 14, 31, 3072, A_WB)
    k(f"""
    s_mul_i32 s32, s29, {XSUB}
    v_mul_u32_u24 v{AX}, {XBLK}, v{HH}
    v_lshl_add_u32 v{AX}, v{MM}, 4, v{AX}
    v_add_u32 v{AX}, s32, v{AX}
    """)
    for i in range(48): k(f"v_mov_b32 v{ACC+i}, 0")
    def red8(r):
        for ctl in ("quad_perm:[1,0,3,2]", "quad_perm:[2,3,0,1]", "row_half_mirror"):
            k(f"s_nop 1\nv_add_f32_dpp v{r}, v{r}, v{r} {ctl} row_mask:0xf bank_mask:0xf")
    SA, SB, NM, TM = T+4, T+5, T+6, T+8
    k(f"v_mov_b32 v{SA}, 0\nv_mov_b32 v{SB}, 0")
    for i in range(8):
        k(f"s_waitcnt vmcnt({7-i})")
        for j in range(4):
            a = SA if j % 2 == 0 else SB
            k(f"v_dot2_f32_bf16 v{a}, v{X+4*i+j}, v{T}, v{a}")
    k.mark(0)
    k(f"s_nop 2\nv_add_f32 v{SA}, v{SA}, v{SB}")
    red8(SA)
    k(f"v_mul_f32 v{NM}, {f32(-1.0/512)}, v{SA}\nv_mov_b32 v{SA}, 0\nv_mov_b32 v{SB}, 0")
    for i in range(8):
        for j in range(4):
            k(f"v_dot2_f32_bf16 v{TM+2*j}, v{X+4*i+j}, v{T+1}, v{NM}")
            k(f"v_dot2_f32_bf16 v{TM+2*j+1}, v{X+4*i+j}, v{T+2}, v{NM}")
        if i > 0:
            for j in range(4):
                a = SA if j % 2 == 0 else SB
                k(f"v_dot2_f32_bf16 v{a}, v{X+4*(i-1)+j}, v{X+4*(i-1)+j}, v{a}")
        else:
            k("s_nop 2")
        for j in range(4):
            k(f"v_cvt_pk_bf16_f32 v{X+4*i+j}, v{TM+2*j}, v{TM+2*j+1}")
        k(f"ds_write_b128 v9, {vr(X+4*i,4)} offset:{i*8*XBLK}")
    for j in range(4):
        a = SA if j % 2 == 0 else SB
        k(f"v_dot2_f32_bf16 v{a}, v{X+28+j}, v{X+28+j}, v{a}")
    k(f"s_nop 2\nv_add_f32 v{SA}, v{SA}, v{SB}")
    red8(SA)
    k(f"""
    v_mov_b32 v{SB}, {f32(1e-5)}
    v_fmac_f32 v{SB}, {f32(1.0/512)}, v{SA}
    v_rsq_f32 v{SB}, v{SB}
    s_nop 0
    ds_write_b32 v10, v{SB}
    """)
    lhiA, lendA = k.new("hiA"), k.new("endA")
    k(f"s_waitcnt lgkmcnt(0)")
    k.mark(1)
    k(f"s_cmp_ge_u32 s{CW}, 4\ns_cbranch_scc1 {lhiA}")
    b0 = k.bars
    k(f"""
    s_add_u32 s33, s{MTA}, s{NTA}
    s_and_b32 s33, s33, 7
    s_mul_i32 s33, s33, {8*XBLK}
    v_add_u32 v{CX}, s33, v{AX}
    v_mov_b32 v{CWA}, v{AW}
    s_mov_b32 s35, 0
    s_lshl_b32 s36, s29, 7
    s_add_u32 s36, s36, {A_RS}
    v_lshlrev_b32 v13, 2, v{MM}
    v_add_u32 v13, s36, v13
    v_lshlrev_b32 v14, 4, v{HH}
    v_add_u32 v14, s36, v14
    """)
    RSTD, RF, BUF = T+3, T+16, X
    def pre_first():
        k(f"ds_read_b32 v{RSTD}, v13")
        for g in range(4): k(f"ds_read_b128 {vr(RF+4*g,4)}, v14 offset:{g*32}")
        k("s_waitcnt lgkmcnt(0)")
    def reads(ks, st):
        b = BUF + 16*ks + 32*st
        r = [f"ds_read_b128 {vr(b,4)}, v{CX} offset:{(2*st+ks)*2*XBLK}"]
        for pn in range(3):
            for t in range(2):
                r.append(f"ds_read_b64_tr_b16 {vr(b+4+4*pn+2*t,2)}, v{CWA} offset:{st*A_SUB + ks*6144 + pn*1024 + t*512}")
        return r
    def work(ks, st):
        b = BUF + 16*ks + 32*st
        return [k.mfma_s(ACC, b+4, b), k.mfma_s(ACC+16, b+8, b), k.mfma_s(ACC+32, b, b+12)]
    def addr_update():
        ring_step(k, 33, 8*XBLK, 64*XBLK)
        ring_step(k, 35, 2*A_SUB, A_DP*2*A_SUB)
        k(f"v_add_u32 v{CX}, s33, v{AX}\nv_add_u32 v{CWA}, s35, v{AW}")
    compute_loop(k, 16, 2, reads, work, addr_update, 34, pair=True, pre_first=pre_first)
    k.mark(2)
    k(f"""
    v_mul_f32 v{T+2}, {f32(0.25*LOG2E)}, v{RSTD}
    s_lshl_b32 s32, s{NTA}, 2
    s_lshl_b32 s33, s30, 1
    s_add_u32 s32, s32, s33            ; head0
    s_lshl_b32 s33, s{MTA}, 1
    s_add_u32 s33, s33, s29
    s_lshl_b32 s35, s32, 16
    s_lshl_b32 s36, s33, 10
    s_add_u32 s35, s35, s36
    s_add_u32 s35, s35, {WS_QF}
    s_add_u32 s36, s35, 65536
    s_lshl_b32 s37, s32, 17
    s_lshl_b32 s38, s33, 11
    s_add_u32 s37, s37, s38
    s_add_u32 s37, s37, {WS_KV}
    s_add_u32 s38, s37, 131072
    v_and_b32 v{T+5}, 15, v0
    v_lshlrev_b32 v{T+5}, 4, v{T+5}
    v_lshl_add_u32 v{T+5}, v{HH}, 8, v{T+5}
    v_bfe_u32 v{T+6}, v0, 4, 1
    v_lshl_add_u32 v{T+5}, v{T+6}, 17, v{T+5}
    """)
    P = X
    for (a, sc, st) in ((ACC+16, None, [(f"v{L16}", "s37", ""), (f"v{L16}", "s38", "")]),
                        (ACC+32, "rf", [(f"v{T+5}", "s37", "offset:1024"), (f"v{T+5}", "s37", "offset:1536")]),
                        (ACC, "q", [(f"v{L16}", "s35", ""), (f"v{L16}", "s36", "")])):
        for i in range(16):
            m = f"v{RSTD}" if sc is None else (f"v{RF+i}" if sc == "rf" else f"v{T+2}")
            k(f"v_mul_f32 v{a+i}, v{a+i}, {m}")
        for i in range(8):
            k(f"v_cvt_pk_bf16_f32 v{P+i}, v{a+2*i}, v{a+2*i+1}")
        for j in range(2):
            k(f"buffer_store_dwordx4 {vr(P+4*j,4)}, {st[j][0]}, s[12:15], {st[j][1]} offen {st[j][2]} {HO}")
        P += 8
    nA = k.bars - b0
    k(f"s_branch {lendA}")
    k.label(lhiA)
    k.bars = b0
    lnn, ltp, lnt = k.new("nn"), k.new("tp"), k.new("nt")
    k.srd(16, PDBG, 256)
    k(f"""
    v_mov_b32 v10, 0
    s_cmp_lg_u32 s{CW}, 7
    s_cbranch_scc1 {lnt}
    s_cmp_lg_u32 s2, 0
    s_cbranch_scc1 {lnn}
    s_memrealtime s[84:85]
    s_waitcnt lgkmcnt(0)
    s_or_b32 s84, s84, 1
    v_mov_b32 v8, s84
    v_mov_b32 v9, s85
    s_mov_b64 exec, 1
    buffer_store_dwordx2 v[8:9], v10, s[16:19], 0 offen {HO}
    s_mov_b64 exec, -1
    """)
    k.label(lnn)
    k.idle_bars(nA)
    k("s_mov_b32 s45, 30000")
    k.label(ltp)
    k(f"""
    buffer_load_dwordx2 v[8:9], v10, s[16:19], 0 offen {HO}
    s_waitcnt vmcnt(0)
    v_readfirstlane_b32 s84, v8
    v_readfirstlane_b32 s85, v9
    s_nop 3
    s_cmp_lg_u32 s84, 0
    s_cbranch_scc1 {lendA}
    s_sub_u32 s45, s45, 1
    s_cmp_lg_u32 s45, 0
    s_cbranch_scc1 {ltp}
    s_branch {lendA}
    """)
    k.label(lnt)
    k.bars = b0
    k.idle_bars(nA)
    k.label(lendA)
    def end_phase(out_arr, out_line, in_arr, in_line, n_in, between=None):
        k("s_waitcnt vmcnt(0)")
        k.bar()
        ls = k.new("ns")
        k(f"s_cmp_lg_u32 s{CW}, 7\ns_cbranch_scc1 {ls}")
        out_line()
        signal_and_wait(k, out_arr, 46, None, 47, n_in)
        k.label(ls)
        if between: between()
        ls = k.new("np")
        k(f"s_cmp_lg_u32 s{CW}, 7\ns_cbranch_scc1 {ls}")
        in_line()
        signal_and_wait(k, None, 46, in_arr, 47, n_in)
        k.label(ls)
        k.bar()
    AK, AV, Q, KF, VF, P, C, O, S0, M, T = 10, 11, 12, 16, 24, 40, 48, 64, 80, 112, 113
    AV0, AVS = 118, 119
    NIT = 16
    SW = E("SW", 13)
    def zero_state():
        for i in range(16): k(f"v_mov_b32 v{O+i}, 0")
        for i in range(4): k(f"v_mov_b32 v{P+4+i}, 0\nv_mov_b32 v{VF+12+i}, 0")
    def b_setup():
        lp = k.new("pr")
        k(f"""
        s_lshl_b32 s29, s{QB}, 3
        s_add_u32 s29, s29, s{CW}
        s_lshl_b32 s30, s{HEAD}, 16
        s_lshl_b32 s31, s29, 10
        s_add_u32 s30, s30, s31
        s_add_u32 s30, s30, {WS_QF}
        v_and_b32 v{T+1}, 11, v0
        v_cmp_eq_u32 vcc, 0, v{T+1}
        v_mov_b32 v{T+2}, 0x3f803f80
        s_lshl_b32 s31, s{CW}, 10
        s_add_u32 s31, s31, {ONESB}
        v_cndmask_b32 v{S0}, 0, v{T+2}, vcc
        v_add_u32 v{T+1}, s31, v{L16}
        v_mov_b32 v{S0+1}, v{S0}
        v_mov_b32 v{S0+2}, v{S0}
        v_mov_b32 v{S0+3}, v{S0}
        ds_write_b128 v{T+1}, {vr(S0,4)}
        ds_write_b128 v{T+1}, {vr(S0,4)} offset:2048
        v_and_b32 v{AV0}, 15, v0
        v_lshlrev_b32 v{AV0}, 4, v{AV0}
        v_lshl_add_u32 v{AV0}, v{HH}, 8, v{AV0}
        v_and_b32 v{T+1}, 16, v0
        v_cmp_eq_u32 vcc, 0, v{T+1}
        v_mov_b32 v{T+1}, {ONESB}
        v_mov_b32 v{T+2}, 1024
        v_mov_b32 v{T+3}, 8192
        v_cndmask_b32 v{T+1}, v{T+1}, v{T+2}, vcc
        v_cndmask_b32 v{AVS}, 0, v{T+3}, vcc
        v_add_u32 v{AV0}, v{AV0}, v{T+1}
        s_mov_b32 s36, 0
        s_mov_b32 s39, 1
        s_lshl_b32 s29, s29, 15
        s_lshl_b32 s31, s{HEAD}, 10
        s_add_u32 s29, s29, s31
        s_add_u32 s29, s29, {WS_OF}
        s_setprio 1
        s_cmp_lt_u32 s{CW}, 4
        s_cbranch_scc1 {lp}
        s_setprio 2
        """)
        k.label(lp)
        zero_state()
        k("s_waitcnt lgkmcnt(0)")
    k.mark(3)
    end_phase(0, lambda: k(f"s_lshl_b32 s46, s{NTA}, 5\ns_add_u32 s46, s46, s{MTA}"),
              0, lambda: k(f"s_lshr_b32 s47, s{HEAD}, 2\ns_lshl_b32 s47, s47, 5"), 32, between=b_setup)
    cnt['A'] = k.bars
    k.mark(4)
    k(f"buffer_load_dwordx4 {vr(Q,4)}, v{L16}, s[12:15], s30 offen {HO}")
    k("s_waitcnt vmcnt(0)")
    k.bar()
    k(f"ds_read_b128 {vr(KF,4)}, v{L16}\ns_waitcnt lgkmcnt(0)")
    k.mfma(S0, KF, Q, "0")
    k("s_nop 15")
    def max16(src, dst, first):
        if first:
            k(f"v_max3_f32 v{dst}, v{src}, v{src+1}, v{src+2}\nv_max_f32 v{dst}, v{dst}, v{src+3}")
            rng = range(4, 16, 2)
        else: rng = range(0, 16, 2)
        for i in rng: k(f"v_max3_f32 v{dst}, v{dst}, v{src+i}, v{src+i+1}")
    max16(S0, M, True)
    lhave, lnob, lloop, lswp, ldone, lmax, lfin = [k.new(x) for x in ("have","nobar","aloop","swp","adone","maxl","afin")]
    k.label(lhave)
    k(f"""
    v_mov_b32 v{T+1}, v{M}
    v_mov_b32 v{AK}, v{L16}
    v_mov_b32 v{AV}, v{AV0}
    v_permlane32_swap_b32 v{M}, v{T+1}
    ds_read_b128 {vr(KF,4)}, v{AK}
    ds_read_b128 {vr(KF+4,4)}, v{AK} offset:2048
    ds_read_b128 {vr(VF,4)}, v{AV}
    ds_read_b128 {vr(VF+4,4)}, v{AV} offset:512
    v_max_f32 v{M}, v{M}, v{T+1}
    """)
    for i in range(16): k(f"v_sub_f32 v{C+i}, 0, v{M}")
    k("s_waitcnt lgkmcnt(3)\ns_mov_b32 s37, 0")
    k.mfma(S0, KF, Q, C)
    k(f"s_cmp_lg_u32 s36, 0\ns_cbranch_scc1 {lnob}")
    k.bar()
    k.label(lnob)
    k("s_nop 7")
    k.label(lloop)
    for t in range(4):
        sb = S0 + 16*(t & 1); sn = S0 + 16*((t+1) & 1)
        kn = KF + 4*((t+1) & 1); kf = KF + 4*(t & 1)
        vc = VF + 8*(t & 1); vn = VF + 8*((t+1) & 1)
        ex = lambda i: k(f"v_exp_f32 v{sb+i}, v{sb+i}")
        cv = lambda i: k(f"v_cvt_pk_bf16_f32 v{P+i}, v{sb+2*i}, v{sb+2*i+1}")
        k("s_waitcnt lgkmcnt(2)")
        k.mfma(sn, kn, Q, C)
        ex(0)
        k(f"ds_read_b128 {vr(kf,4)}, v{AK} offset:{(t+2)*2048}")
        ex(1); ex(2); ex(3)
        k.mfma(O, vn+4, P+4)
        ex(4)
        k(f"ds_read_b128 {vr(vn,4)}, v{AV} offset:{(t+1)*2048}")
        ex(5)
        k(f"ds_read_b128 {vr(vn+4,4)}, v{AV} offset:{(t+1)*2048+512}")
        ex(6); ex(7)
        for i in range(4): cv(i)
        ex(8)
        k("s_waitcnt lgkmcnt(3)")
        ex(9)
        k.mfma(O, vc, P)
        for i in range(10, 16):
            ex(i)
            if t == 3 and i == 10: k("s_add_u32 s37, s37, 1")
            if t == 3 and i == 11: k("s_cmp_lt_u32 s37, s39")
        if t == 3:
            k(f"v_add_u32 v{AK}, 8192, v{AK}\nv_add_u32 v{AV}, v{AVS}, v{AV}")
        for i in range(4, 8): cv(i)
    CP2 = E("CP2", 3)
    k(f"""
    s_cbranch_scc1 {lloop}
    s_cmp_eq_u32 s37, {NIT}
    s_cbranch_scc1 {ldone}
    s_cmp_gt_u32 s37, {CP2}
    s_cbranch_scc1 {lswp}
    s_barrier
    s_cmp_eq_u32 s37, 1
    s_cselect_b32 s39, {CP2}, {SW}
    s_branch {lloop}
    """)
    k.bars += 2
    k.label(lswp)
    k(f"""
    s_mov_b32 s39, {NIT}
    s_cmp_lt_u32 s{CW}, 4
    s_cbranch_scc1 {lloop}
    s_setprio 0
    s_branch {lloop}
    """)
    k.label(ldone)
    k.mfma(O, VF+12, P+4)
    k(f"""
    s_waitcnt lgkmcnt(0)
    s_mov_b32 s38, {f32(2.0**60)}
    s_nop 13
    v_cmp_nlt_f32 vcc, v{O+8}, s38
    v_rcp_f32 v{T+3}, v{O+8}
    s_cmp_lg_u32 s36, 0
    s_cbranch_scc1 {lfin}
    s_cbranch_vccz {lfin}
    s_mov_b32 s36, 1
    s_mov_b32 s37, 0
    v_mov_b32 v{AK}, v{L16}
    v_mov_b32 v{M}, 0xff800000
    """)
    zero_state()
    k.label(lmax)
    k(f"ds_read_b128 {vr(KF,4)}, v{AK}\ns_waitcnt lgkmcnt(0)")
    k.mfma(S0, KF, Q, "0")
    k("s_nop 15")
    max16(S0, M, False)
    k(f"""
    v_add_u32 v{AK}, 2048, v{AK}
    s_add_u32 s37, s37, 1
    s_cmp_lt_u32 s37, 64
    s_cbranch_scc1 {lmax}
    s_branch {lhave}
    """)
    k.label(lfin)
    for i in range(8): k(f"v_mul_f32 v{O+i}, v{O+i}, v{T+3}")
    for i in range(4): k(f"v_cvt_pk_bf16_f32 v{P+i}, v{O+2*i}, v{O+2*i+1}")
    k(f"buffer_store_dwordx4 {vr(P,4)}, v{L16}, s[12:15], s29 offen {HO}")
    k("s_setprio 0")
    k.mark(5)
    AA, AW, CA, CWA = 10, 11, 12, 13
    ACC, BUF, T = 16, 32, 96
    def c_setup():
        k(f"""
        s_and_b32 s29, s{CW}, 1          ; ms
        s_bfe_u32 s30, s{CW}, 0x10001    ; nh
        s_lshl_b32 s31, s30, 6
        s_lshl_b32 s32, s29, 12
        v_add_u32 v{AA}, s32, v{L16}
        s_lshl_b32 s36, s{MT64}, 1
        s_add_u32 s36, s36, s29          ; mt32
        s_lshl_b32 s37, s{NT8}, 2
        s_lshl_b32 s38, s30, 1
        s_add_u32 s37, s37, s38          ; 2*nt32
        """)
        w_tr_addr(k, AW, 14, 15, 31, 512, 0)
    def c_between():
        c_setup()
        k(f"""
        v_add_u32 v{CA}, {C_A}, v{AA}
        v_mov_b32 v{CWA}, v{AW}
        v_lshlrev_b32 v14, 7, v{MM}
        v_add_u32 v14, s32, v14
        v_lshl_add_u32 v14, v{HH}, 3, v14
        v_add_u32 v14, {C_X}, v14
        v_bfe_u32 v15, v0, 1, 3
        v_lshlrev_b32 v15, 4, v15
        v_xor_b32 v15, s31, v15
        """)
        for g in range(4):
            k(f"v_xor_b32 v{T+16+g}, {g*16}, v15\nv_add_u32 v{T+16+g}, v{T+16+g}, v14")
    end_phase(1, lambda: k(f"s_lshl_b32 s46, s{QB}, 5\ns_add_u32 s46, s46, s{HEAD}"),
              1, lambda: k(f"s_lshr_b32 s47, s{MT64}, 2\ns_lshl_b32 s47, s47, 5"), 32, between=c_between)
    cnt['B'] = k.bars
    k.mark(6)
    def reads64(ks, st):
        b = BUF + 8*ks + 32*st
        return [f"ds_read_b128 {vr(b,4)}, v{CA} offset:{ks*1024}"] + \
               [f"ds_read_b64_tr_b16 {vr(b+4+2*t,2)}, v{CWA} offset:{ks*2048 + t*1024}" for t in range(2)]
    def work64(ks, st):
        b = BUF + 8*ks + 32*st
        return [k.mfma_s(ACC, b+4, b)]
    lhi, lend, lend2 = k.new("hiC"), k.new("endC"), k.new("endC2")
    k(f"s_cmp_ge_u32 s{CW}, 4\ns_cbranch_scc1 {lhi}")
    b0 = k.bars
    def c_first():
        for g in range(4): k(f"ds_read_b64 {vr(T+4+2*g,2)}, v{T+16+g}")
        k("s_waitcnt lgkmcnt(0)")
        for i in range(8):
            k(f"v_lshlrev_b32 v{ACC+2*i}, 16, v{T+4+i}\nv_and_b32 v{ACC+2*i+1}, 0xffff0000, v{T+4+i}")
    compute_loop(k, 8, 4, reads64, work64, lambda: k(f"v_add_u32 v{CA}, 8192, v{CA}\nv_add_u32 v{CWA}, 8192, v{CWA}"), 34, pre_first=c_first)
    k.bar()
    k(f"""
    v_mov_b32 v{T+12}, 0x3f803f80
    v_mov_b32 v{T+14}, 0
    v_mov_b32 v{T+15}, 0
    s_lshl_b32 s38, s36, 15
    s_lshl_b32 s39, s37, 10
    s_add_u32 s38, s38, s39
    s_add_u32 s38, s38, {WS_HF}
    s_lshl_b32 s39, s36, 12
    s_lshl_b32 s40, s37, 7
    s_add_u32 s39, s39, s40
    s_add_u32 s39, s39, {WS_ST}
    v_lshlrev_b32 v{T+13}, 3, v{MM}
    s_nop 1
    """)
    for i in range(8): k(f"v_cvt_pk_bf16_f32 v{HSAVE+i}, v{ACC+2*i}, v{ACC+2*i+1}")
    k(f"buffer_store_dwordx4 {vr(HSAVE,4)}, v{L16}, s[12:15], s38 offen {HO}")
    k(f"buffer_store_dwordx4 {vr(HSAVE+4,4)}, v{L16}, s[12:15], s38 offen offset:1024 {HO}")
    for i in range(8):
        k(f"v_dot2_f32_bf16 v{T+14}, v{HSAVE+i}, v{T+12}, v{T+14}")
        k(f"v_dot2_f32_bf16 v{T+15}, v{HSAVE+i}, v{HSAVE+i}, v{T+15}")
    k("s_nop 2")
    xhalf_sum(k, T+14, T+16)
    xhalf_sum(k, T+15, T+16)
    k(f"s_mov_b64 exec, 0xffffffff\nbuffer_store_dwordx2 {vr(T+14,2)}, v{T+13}, s[12:15], s39 offen {HO}\ns_mov_b64 exec, -1")
    nC = k.bars - b0
    k(f"s_branch {lend}")
    k.label(lhi)
    k.bars = b0
    k.idle_bars(nC)
    k.label(lend)
    k.mark(7)
    f3_out = lambda: k(f"s_lshl_b32 s46, s{MT64}, 3\ns_add_u32 s46, s46, s{NT8}")
    f4_in = lambda: k(f"s_lshr_b32 s47, s{MT64}, 1\ns_lshl_b32 s47, s47, 4")
    def e_between():
        c_setup()
        k(f"""
        v_add_u32 v{AA}, {E_A}, v{AA}
        v_mov_b32 v{CA}, v{AA}
        v_mov_b32 v{CWA}, v{AW}
        s_mov_b32 s33, 0
        s_mov_b32 s35, 0
        """)
        for i in range(8):
            k(f"v_lshlrev_b32 v{16+2*i}, 16, v{HSAVE+i}\nv_and_b32 v{16+2*i+1}, 0xffff0000, v{HSAVE+i}")
    lD, lE = k.new("phD"), k.new("phE")
    k(f"s_cmp_lt_u32 s2, 224\ns_cbranch_scc1 {lD}")
    b0 = k.bars
    end_phase(2, f3_out, 3, f4_in, 14, between=e_between)
    k(f"s_branch {lE}")
    bskip = k.bars - b0
    k.bars = b0
    k.label(lD)
    DACC, DBUF, DT = 16, 48, 136
    RS, BB, CS = 8, 14, 15
    def d_between():
        k(f"""
        s_and_b32 s29, s{CW}, 1          ; mp
        s_lshr_b32 s30, s{CW}, 1         ; nq
        s_and_b32 s31, s30, 1
        s_lshl_b32 s31, s31, 6
        s_lshr_b32 s32, s30, 1
        s_lshl_b32 s32, s32, 13
        s_lshl_b32 s33, s29, 13
        s_add_u32 s33, s33, {D_A}
        v_add_u32 v{AA}, s33, v{L16}
        s_lshl_b32 s36, s{MT128}, 2
        s_lshl_b32 s37, s29, 1
        s_add_u32 s36, s36, s37
        s_lshl_b32 s37, s{NT14}, 2
        s_add_u32 s37, s37, s30          ; nt32 (0..55)
        s_lshl_b32 s38, s37, 6
        v_lshlrev_b32 v{DT}, 1, v{MM}
        s_lshl_b32 s39, s37, 7
        s_add_u32 s39, s39, {WS_C1}
        s_add_u32 s40, s39, {2*1792*4}
        v_mul_u32_u24 v{DT+1}, {4*1792*4}, v{HH}
        v_lshl_add_u32 v{DT+1}, v{MM}, 2, v{DT+1}
        v_add_u32 v{DT+2}, {1792*4}, v{DT+1}
        """)
        k.srd(16, PB1, 3584)
        k(f"""
        buffer_load_ushort v{BB}, v{DT}, s[16:19], s38 offen
        """)
        w_tr_addr(k, AW, DT+8, DT+9, 31, 512, D_W)
        k(f"""
        v_add_u32 v{AW}, s32, v{AW}
        v_mov_b32 v{CA}, v{AA}
        v_mov_b32 v{CWA}, v{AW}
        s_mov_b32 s33, 0
        s_mov_b32 s35, 0
        s_lshr_b32 s41, s{CW}, 2
        s_lshl_b32 s41, s41, {E("HOOKSH", 1)}
        s_sub_u32 s41, 4, s41
        s_lshl_b32 s38, s29, 13
        s_add_u32 s38, s38, {D_ST}
        v_lshlrev_b32 v{DT+3}, 3, v0
        v_add_u32 v{DT+3}, s38, v{DT+3}
        """)
        for i in range(32): k(f"v_mov_b32 v{DACC+i}, 0")
    end_phase(2, f3_out, 2, lambda: k(f"s_lshl_b32 s47, s{MT128}, 4"), -1, between=d_between)
    k.mark(8)
    def d_first():
        k(f"""
        buffer_load_dword v{DT+4}, v{DT+1}, s[12:15], s39 offen {HO}
        buffer_load_dword v{DT+5}, v{DT+2}, s[12:15], s39 offen {HO}
        buffer_load_dword v{DT+6}, v{DT+1}, s[12:15], s40 offen {HO}
        buffer_load_dword v{DT+7}, v{DT+2}, s[12:15], s40 offen {HO}
        """)
    def readsD(ks, st):
        b = DBUF + 12*ks + 24*st
        kk = 2*st + ks
        return [f"ds_read_b64_tr_b16 {vr(b+8+2*t,2)}, v{CWA} offset:{kk*2048 + t*1024}" for t in range(2)] + \
               [f"ds_read_b128 {vr(b,4)}, v{CA} offset:{kk*1024}", f"ds_read_b128 {vr(b+4,4)}, v{CA} offset:{4096+kk*1024}"]
    def workD(ks, st):
        b = DBUF + 12*ks + 24*st
        return [k.mfma_s(DACC, b+8, b), k.mfma_s(DACC+16, b+8, b+4)]
    def updD():
        ring_step(k, 33, 16384, D_DA*16384)
        ring_step(k, 35, 16384, D_DW*16384)
        k(f"v_add_u32 v{CA}, s33, v{AA}\nv_add_u32 v{CWA}, s35, v{AW}")
    def hookD():
        ln = k.new("nohk")
        k(f"s_cmp_lg_u32 s34, s41\ns_cbranch_scc1 {ln}")
        SL = DBUF + 48
        OA, MB = DT+8, SL+32
        k("s_waitcnt lgkmcnt(0)")
        for ms in range(2):
            for i in range(8):
                if ms == 1 and i == 4: k("s_waitcnt lgkmcnt(8)")
                k(f"ds_read_b64 {vr(SL+16*ms+2*i,2)}, v{DT+3} offset:{ms*4096 + i*512}")
        k(f"""
        s_waitcnt vmcnt(0)
        v_cmp_gt_u32 vcc, 32, v0
        v_add_f32 v{DT+4}, v{DT+4}, v{DT+5}
        v_add_f32 v{DT+6}, v{DT+6}, v{DT+7}
        v_cndmask_b32 v{BB}, 0, v{BB}, vcc
        v_add_f32 v{CS}, v{DT+4}, v{DT+6}
        """)
        split_hilo(k, CS, DT+4, DT+5, DT+6)
        k(f"""
        v_cvt_pk_bf16_f32 v{OA}, v{DT+4}, v{DT+4}
        v_cvt_pk_bf16_f32 v{OA+1}, v{DT+5}, 0
        v_lshl_or_b32 v{OA+1}, v{BB}, 16, v{OA+1}
        v_mov_b32 v{OA+2}, v{BB}
        v_mov_b32 v{OA+3}, 0
        s_waitcnt lgkmcnt(0)
        """)
        for ms in range(2):
            b = SL + 16*ms
            for i in range(1, 8):
                k(f"v_add_f32 v{b}, v{b}, v{b+2*i}\nv_add_f32 v{b+1}, v{b+1}, v{b+2*i+1}")
            xhalf_sum(k, b, DT+4)
            xhalf_sum(k, b+1, DT+4)
            mb = MB + 4*ms
            k(f"""
            v_mul_f32 v{b}, {f32(-1.0/512)}, v{b}
            v_mul_f32 v{b+1}, {f32(1.0/512)}, v{b+1}
            v_fma_f32 v{b+1}, -v{b}, v{b}, v{b+1}
            v_max_f32 v{b+1}, 0, v{b+1}
            v_add_f32 v{b+1}, {f32(1e-5)}, v{b+1}
            v_rsq_f32 v{RS+ms}, v{b+1}
            s_nop 0
            v_mul_f32 v{b+1}, v{b+1}, v{RS+ms}
            v_mul_f32 v{RS+ms}, {f32(LOG2E)}, v{RS+ms}
            """)
            split_hilo(k, b, DT+4, DT+5, DT+6)
            k(f"v_cvt_pk_bf16_f32 v{mb}, v{DT+4}, v{DT+5}")
            split_hilo(k, b+1, DT+7, DT+5, DT+6)
            k(f"v_cvt_pk_bf16_f32 v{mb+1}, v{DT+4}, v{DT+7}\nv_cvt_pk_bf16_f32 v{mb+2}, v{DT+5}, 0\nv_mov_b32 v{mb+3}, 0")
        k("s_nop 1")
        k.mfma(DACC, OA, MB)
        k.mfma(DACC+16, OA, MB+4)
        k.label(ln)
    compute_loop(k, 16, 2, readsD, workD, updD, 34, pair=True, pre_first=d_first, hook=hookD)
    k.bar()
    k.mark(9)
    k(f"""
    s_mul_i32 s38, s36, {112*1024}
    s_lshl_b32 s39, s37, 11
    s_add_u32 s38, s38, s39
    s_add_u32 s38, s38, {WS_AF}
    s_add_u32 s39, s38, {112*1024}
    v_mov_b32 v{DT+12}, {f32(-2*LN2)}
    s_nop 5
    """)
    U, PP = DBUF, DBUF+16
    for ms in range(2):
        a = DACC + 16*ms
        for i in range(16): k(f"v_mul_f32 v{a+i}, v{a+i}, v{RS+ms}")
        for i in range(16): k(f"v_exp_f32 v{U+i}, v{a+i}")
        for i in range(16): k(f"v_add_f32 v{U+i}, 1.0, v{U+i}")
        for i in range(16): k(f"v_fma_f32 v{U+i}, v{U+i}, v{U+i}, 1.0")
        for i in range(16): k(f"v_rcp_f32 v{U+i}, v{U+i}")
        for i in range(16): k(f"v_fmaak_f32 v{U+i}, v{U+i}, v{DT+12}, {f32(LN2)}")
        for i in range(16): k(f"v_mul_f32 v{a+i}, v{a+i}, v{U+i}")
        for i in range(8): k(f"v_cvt_pk_bf16_f32 v{PP+8*ms+i}, v{a+2*i}, v{a+2*i+1}")
        so = "s38" if ms == 0 else "s39"
        k(f"buffer_store_dwordx4 {vr(PP+8*ms,4)}, v{L16}, s[12:15], {so} offen {HO}")
        k(f"buffer_store_dwordx4 {vr(PP+8*ms+4,4)}, v{L16}, s[12:15], {so} offen offset:1024 {HO}")
    k.mark(10)
    end_phase(3, lambda: k(f"s_lshl_b32 s46, s{MT128}, 4\ns_add_u32 s46, s46, s{NT14}"), 3, f4_in, 14, between=e_between)
    cnt['Dextra'] = k.bars - b0 - bskip
    k.label(lE)
    k.mark(11)
    lhi = k.new("hiE")
    k(f"s_cmp_ge_u32 s{CW}, 4\ns_cbranch_scc1 {lhi}")
    b0 = k.bars
    def updE():
        ring_step(k, 33, 8192, E_DA*8192)
        ring_step(k, 35, 8192, E_DW*8192)
        k(f"v_add_u32 v{CA}, s33, v{AA}\nv_add_u32 v{CWA}, s35, v{AW}")
    compute_loop(k, 28, 4, reads64, work64, updE, 34)
    cnt['total'] = k.bars
    k.srd(16, POUT, 2048*1024)
    PQ = T+4
    k(f"""
    s_lshl_b32 s38, s36, 15
    s_lshl_b32 s39, s37, 5
    s_add_u32 s38, s38, s39
    v_lshlrev_b32 v{T+13}, 10, v{MM}
    v_lshl_add_u32 v{T+13}, v{HH}, 4, v{T+13}
    s_nop 4
    """)
    for i in range(8): k(f"v_cvt_pk_bf16_f32 v{PQ+i}, v{ACC+2*i}, v{ACC+2*i+1}")
    k("s_nop 1")
    for p in range(2):
        k(f"v_permlane32_swap_b32 v{PQ+4*p}, v{PQ+4*p+2}\nv_permlane32_swap_b32 v{PQ+4*p+1}, v{PQ+4*p+3}")
    k(f"buffer_store_dwordx4 {vr(PQ,4)}, v{T+13}, s[16:19], s38 offen")
    k(f"buffer_store_dwordx4 {vr(PQ+4,4)}, v{T+13}, s[16:19], s38 offen offset:32")
    if E("DBGT", 0):
        k.srd(16, PDBG, 256)
        k("""
        s_waitcnt vmcnt(0)
        s_memrealtime s[44:45]
        v_mov_b32 v4, 0
        buffer_load_dword v5, v4, s[16:19], 0 offen sc1
        s_waitcnt vmcnt(0) lgkmcnt(0)
        v_sub_u32 v5, s44, v5
        s_mov_b64 exec, 1
        buffer_atomic_umax v5, v4, s[16:19], 0 offen offset:16
        """)
    k.label(lhi)
    stamp_out(k)
    k("s_endpgm")
    return cnt

def build(path):
    k = K()
    if STAMP:
        k("s_memrealtime s[60:61]\ns_memtime s[62:63]\ns_waitcnt lgkmcnt(0)\ns_mov_b32 s63, s60")
        for i in range(12): k(f"s_mov_b32 s{88+i}, 0")
    k(f"""
    s_cmp_ge_u32 s2, 256
    s_cbranch_scc1 Lexit
    s_load_dwordx16 s[64:79], s[0:1], 0
    s_load_dwordx4 s[80:83], s[0:1], 64
    v_lshrrev_b32 v1, 6, v0
    v_and_b32 v0, 63, v0
    s_and_b32 s20, s2, 7
    v_readfirstlane_b32 s3, v1
    s_lshr_b32 s21, s2, 3
    v_lshrrev_b32 v{HH}, 5, v0
    v_lshlrev_b32 v{L16}, 4, v0
    v_and_b32 v{MM}, 31, v0
    s_and_b32 s28, s20, 3
    s_lshr_b32 s29, s20, 2
    s_lshl_b32 s{MTA}, s28, 3
    s_and_b32 s30, s21, 7
    s_add_u32 s{MTA}, s{MTA}, s30
    s_lshl_b32 s{NTA}, s29, 2
    s_lshr_b32 s30, s21, 3
    s_add_u32 s{NTA}, s{NTA}, s30
    s_lshl_b32 s{HEAD}, s20, 2
    s_and_b32 s30, s21, 3
    s_add_u32 s{HEAD}, s{HEAD}, s30
    s_lshr_b32 s{QB}, s21, 2
    s_mov_b32 s{MT64}, s{HEAD}
    s_mov_b32 s{NT8}, s{QB}
    s_lshl_b32 s{MT128}, s28, 2
    s_add_u32 s{MT128}, s{MT128}, s30
    s_mul_i32 s{NT14}, s29, 7
    s_add_u32 s{NT14}, s{NT14}, s{QB}
    s_cmp_ge_u32 s3, 4
    s_cbranch_scc1 Lcompute
    """)
    k.bars = 0
    c1 = loader(k)
    k.label("Lcompute")
    k.bars = 0
    c2 = compute(k)
    assert c1 == c2, (c1, c2)
    k.label("Lexit")
    k("s_endpgm")
    ref = open(f"cdna_kernels/{NAME}.s.ref").read().split("\n")
    head = [l for l in ref if l.startswith(";") and "@launch" not in l]
    out = "\n".join(head) + f"\n; @launch grid=(256,1,1) block=(768,1,1) lds={LDS_TOTAL}\n"
    out += f'.amdgcn_target "amdgcn-amd-amdhsa--gfx950"\n.text\n.globl {NAME}_kernel\n.p2align 8\n.type {NAME}_kernel,@function\n{NAME}_kernel:\n'
    out += "\n".join(k.L).replace("CODE_SPAN", f"Lexit - {NAME}_kernel - 512") + "\n"
    out += f""".section .rodata,"a"
.p2align 6
.amdhsa_kernel {NAME}_kernel
  .amdhsa_next_free_vgpr 168
  .amdhsa_next_free_sgpr 102
  .amdhsa_accum_offset 168
  .amdhsa_group_segment_fixed_size 0
  .amdhsa_kernarg_size 80
  .amdhsa_user_sgpr_count 2
  .amdhsa_user_sgpr_kernarg_segment_ptr 1
  .amdhsa_system_sgpr_workgroup_id_x 1
.end_amdhsa_kernel
"""
    open(path, "w").write(out)
    print("barriers", c1, "lines", len(k.L))
if __name__ == "__main__":
    build(sys.argv[1])
```

```python
import os, struct, sys
NAME = "sequential_preLN__softmax_full_mha__dense_activation_mish__prompt"
STAMP = int(os.environ.get("STAMP", "0"))
E = lambda n, d: int(os.environ.get(n, str(d)))

WS_QF = 0
WS_KV = 2 << 20
WS_OF = 6 << 20
WS_HF = 8 << 20
WS_ST = 10 << 20
WS_C1 = (10 << 20) + (512 << 10)
WS_FL = 11 << 20
WS_AF = 12 << 20
WS_SIZE = 20 << 20
WS_DBG = 24 << 20
LOG2E = 1.4426950408889634
LN2 = 0.6931471805599453
LDS_TOTAL = 163840
def f32(x): return "0x%08x" % struct.unpack("<I", struct.pack("<f", x))[0]
def vr(a, n=1): return f"v{a}" if n == 1 else f"v[{a}:{a+n-1}]"

PX, PWQKV, PWO, PW1, PB1, PW2, POUT, PDBG, PWS = 64, 66, 68, 72, 74, 76, 78, 80, 82
LANE, HH, L16, MM = 0, 1, 2, 3
HSAVE = 160
HO = "sc1"
HOL = os.environ.get("HOL", "sc1")

class K:
    def __init__(self):
        self.L = []
        self.bars = 0
        self.uid = 0
    def __call__(self, s):
        for line in s.strip("\n").split("\n"):
            line = line.strip()
            if line: self.L.append("    " + line)
    def label(self, l): self.L.append(f"{l}:")
    def new(self, p):
        self.uid += 1
        return f"L{p}_{self.uid}"
    def bar(self, n=1):
        self("s_barrier"); self.bars += n
    def mark(self, i):
        if STAMP:
            self(f"s_memrealtime s[86:87]\ns_waitcnt lgkmcnt(0)\ns_mov_b32 s{88+i}, s86")
    def srd(self, d, base, nbytes):
        self(f"s_mov_b32 s{d}, s{base}\ns_mov_b32 s{d+1}, s{base+1}\ns_mov_b32 s{d+2}, {nbytes}\ns_mov_b32 s{d+3}, 0x00020000")
    def mfma_s(self, d, a, b, c=None):
        cs = vr(d, 16) if c is None else (c if isinstance(c, str) else vr(c, 16))
        return f"v_mfma_f32_32x32x16_bf16 {vr(d,16)}, {vr(a,4)}, {vr(b,4)}, {cs}"
    def mfma(self, d, a, b, c=None): self(self.mfma_s(d, a, b, c))
    def idle_bars(self, n):
        if n == 0: return
        l = self.new("idle")
        self(f"s_mov_b32 s34, {n}")
        self.label(l)
        self(f"s_barrier\ns_sub_u32 s34, s34, 1\ns_cmp_lg_u32 s34, 0\ns_cbranch_scc1 {l}")
        self.bars += n

def xhalf_sum(k, x, tmp):
    k(f"v_mov_b32 v{tmp}, v{x}\ns_nop 1\nv_permlane32_swap_b32 v{x}, v{tmp}\ns_nop 1\nv_add_f32 v{x}, v{x}, v{tmp}")
def split_hilo(k, x, hi, lo, tmp):
    k(f"v_cvt_pk_bf16_f32 v{tmp}, v{x}, v{x}\nv_and_b32 v{hi}, 0xffff0000, v{tmp}\nv_sub_f32 v{lo}, v{x}, v{hi}")

def w_tr_addr(k, dst, tmp, tmp2, half_sgpr, hstride, base):
    k(f"""
    v_mul_u32_u24 v{dst}, {hstride}, v{HH}
    v_bfe_u32 v{tmp}, v0, 2, 2
    v_lshl_add_u32 v{dst}, v{tmp}, 7, v{dst}
    v_bfe_u32 v{tmp}, v0, 4, 1
    v_lshlrev_b32 v{tmp}, 5, v{tmp}
    v_and_b32 v{tmp2}, 3, v0
    v_lshl_add_u32 v{tmp}, v{tmp2}, 3, v{tmp}
    v_add_u32 v{tmp}, s{half_sgpr}, v{tmp}
    v_bfe_u32 v{tmp2}, v0, 3, 1
    v_lshlrev_b32 v{tmp2}, 6, v{tmp2}
    v_xor_b32 v{tmp}, v{tmp}, v{tmp2}
    v_add_u32 v{dst}, v{dst}, v{tmp}
    """)
    if base: k(f"v_add_u32 v{dst}, {base}, v{dst}")

def w_dma_voff(k, dst, tmp, tmp2, pitch, row_sgpr, col_sgpr):
    k(f"""
    v_lshrrev_b32 v{tmp}, 3, v0
    v_add_u32 v{tmp}, s{row_sgpr}, v{tmp}
    v_mul_u32_u24 v{dst}, {pitch}, v{tmp}
    v_and_b32 v{tmp}, 7, v0
    v_bfe_u32 v{tmp2}, v0, 4, 1
    v_lshlrev_b32 v{tmp2}, 2, v{tmp2}
    v_xor_b32 v{tmp}, v{tmp}, v{tmp2}
    v_lshl_add_u32 v{dst}, v{tmp}, 4, v{dst}
    v_add_u32 v{dst}, s{col_sgpr}, v{dst}
    """)

def x_dma_voff(k, dst0, dst1, tmp, tmp2, row0_sgpr, col_sgpr):
    k(f"""
    v_lshrrev_b32 v{tmp}, 3, v0
    v_add_u32 v{tmp}, s{row0_sgpr}, v{tmp}
    v_lshlrev_b32 v{dst0}, 10, v{tmp}
    v_add_u32 v{dst0}, s{col_sgpr}, v{dst0}
    v_add_u32 v{dst1}, 8192, v{dst0}
    v_and_b32 v{tmp}, 7, v0
    v_lshrrev_b32 v{tmp2}, 4, v0
    v_xor_b32 v{tmp}, v{tmp}, v{tmp2}
    v_lshl_add_u32 v{dst0}, v{tmp}, 4, v{dst0}
    v_xor_b32 v{tmp}, 4, v{tmp}
    v_lshl_add_u32 v{dst1}, v{tmp}, 4, v{dst1}
    """)

class Ops:
    def __init__(self, k): self.k = k; self.ops = []
    def add(self, tag, n): self.ops += [tag] * n
    def wait(self, tags):
        idx = [i for i, t in enumerate(self.ops) if t in tags]
        if not idx: return
        n = len(self.ops) - 1 - max(idx)
        assert n <= 63, n
        self.k(f"s_waitcnt vmcnt({n})")

def interleave(mf, rd):
    out = []
    n, m = len(mf), len(rd)
    j = 0
    for i, x in enumerate(mf):
        out.append(x)
        tgt = (m * (i + 1) + n - 1) // n
        while j < tgt:
            out.append(rd[j]); j += 1
    return out

def compute_loop(k, S, SPS, reads, work, addr_update, sctr, pair=False, pre_first=None, hook=None, front=0, tail=None, mbar=False):
    assert S % 2 == 0 and S >= 4
    if E("AB_NOMFMA", 0):
        work0 = work
        work = lambda ks, st: ["s_nop 0"] * len(work0(ks, st))
    if E("AB_NOREAD", 0):
        reads0 = reads
        reads = lambda ks, st: reads0(ks, st)[:1]
    R = len(reads(0, 0))
    def emit(lst, out=0):
        for x in lst:
            if x.startswith("ds_"):
                if out >= 15:
                    k("s_waitcnt lgkmcnt(12)"); out = 12
                out += 1
            k(x)
    allreads = lambda b: [x for ks in range(SPS) for x in reads(ks, b)]
    allwork = lambda b: [x for ks in range(SPS) for x in work(ks, b)]
    def body(b):
        w = allwork(1-b)
        n = len(w) - 1 if not front else len(w) // front
        emit(interleave(w[:n], allreads(b)) + w[n:])
    k.bar()
    if pre_first: pre_first()
    emit(allreads(0))
    if not pair: addr_update()
    k(f"s_mov_b32 s{sctr}, {(S-2)//2}")
    l = k.new("cl")
    k.label(l)
    k("s_waitcnt lgkmcnt(0)")
    if not pair: k("s_barrier")
    body(1)
    addr_update()
    k(f"s_sub_u32 s{sctr}, s{sctr}, 1")
    k("s_waitcnt lgkmcnt(0)")
    k("s_barrier")
    body(0)
    if hook: hook()
    if not pair: addr_update()
    k(f"s_cmp_lg_u32 s{sctr}, 0\ns_cbranch_scc1 {l}")
    k.bars += (S-2)//2 * (1 if pair else 2)
    if pair:
        if tail: tail[0]()
        k("s_waitcnt lgkmcnt(0)")
        if tail: tail[1]()
        body(1)
    else:
        for ks in range(SPS):
            k(f"s_waitcnt lgkmcnt({min(15, (SPS-ks-1)*R)})")
            for x in work(ks, 0): k(x)
        k.bar()
        emit(allreads(1))
    for ks in range(SPS):
        k(f"s_waitcnt lgkmcnt({min(15, (SPS-ks-1)*R)})")
        if mbar and ks == SPS-1: k.bar()
        for x in work(ks, 1): k(x)

W2X = E('W2X', 0)
def ring_loader_main(k, ops, S, DA, DW, LA, issueA, issueW, na, nw, extra_need=None, after_bar=None, ldsw=False, LA2=None, bmark=0):
    while na < min(LA, S, DA):
        issueA(na); na += 1
    for s in range(S):
        need = {("A", s), ("W", s)} | set((extra_need or {}).get(s, []))
        ops.wait(need)
        if ldsw and s >= DW: k("s_waitcnt lgkmcnt(0)")
        if bmark == 1: k.mark(s+1)
        k.bar()
        if bmark == 2: k.mark(s+1)
        for rep in range(2 if LA2 else 1):
            if na < S and (na < DA or na - DA <= s - 1) and na <= s + (LA2 or LA) and (rep == 0 or s >= 1):
                issueA(na); na += 1
        for rep in range(2):
            if nw < S and (nw < DW or (nw - DW <= s - 1 and rep == 0)) and (rep == 0 or W2X):
                issueW(nw); nw += 1
        if after_bar and s in after_bar: after_bar[s]()
    assert na == S and nw == S, (na, nw)

def ring_step(k, s, size, total):
    k(f"s_add_u32 s{s}, s{s}, {size}\ns_cmp_eq_u32 s{s}, {total}\ns_cselect_b32 s{s}, 0, s{s}")

def signal_and_wait(k, out_arr, out_line_sgpr, in_arr, in_line_sgpr, n_in):
    if out_arr is not None:
        k(f"""
        s_lshl_b32 s44, s{out_line_sgpr}, 7
        s_add_u32 s44, s44, {WS_FL + out_arr*32768}
        v_mov_b32 v4, s84
        v_mov_b32 v5, s85
        v_mov_b32 v6, 0
        s_mov_b64 exec, 1
        buffer_store_dwordx2 v[4:5], v6, s[12:15], s44 offen {HO}
        s_mov_b64 exec, -1
        """)
    if in_arr is None: return
    lp, done = k.new("poll"), k.new("polld")
    if n_in > 0:
        k(f"""
        s_lshl_b32 s44, s{in_line_sgpr}, 7
        s_add_u32 s44, s44, {WS_FL + in_arr*32768}
        v_min_u32 v6, {n_in-1}, v0
        v_lshlrev_b32 v6, 7, v6
        s_mov_b32 s45, 30000
        """)
    elif n_in == -2:
        k(f"""
        s_mov_b32 s44, {WS_FL + in_arr*32768}
        v_add_u32 v6, s{in_line_sgpr}, v0
        s_lshl_b32 s45, s27, 1
        s_min_u32 s45, s45, 26
        v_bfe_u32 v7, v0, 3, 1
        v_add_u32 v7, s45, v7             ; idx
        v_lshrrev_b32 v8, 2, v7
        v_lshlrev_b32 v8, 5, v8
        v_and_b32 v7, 3, v7
        v_add_u32 v8, v8, v7
        v_and_b32 v7, 7, v0
        v_lshl_add_u32 v8, v7, 2, v8
        v_cmp_lt_u32 vcc, 31, v0
        s_mov_b32 s45, 30000
        s_nop 0
        v_cndmask_b32 v6, v6, v8, vcc
        v_lshlrev_b32 v6, 7, v6
        """)
    else:
        k(f"""
        s_mov_b32 s44, {WS_FL}
        v_and_b32 v6, 15, v0
        v_add_u32 v6, s{in_line_sgpr}, v6
        v_add_u32 v6, {in_arr*256}, v6
        s_lshl_b32 s45, s27, 1
        v_bfe_u32 v7, v0, 3, 1
        v_add_u32 v7, s45, v7             ; idx
        v_lshrrev_b32 v8, 2, v7
        v_lshlrev_b32 v8, 5, v8
        v_and_b32 v7, 3, v7
        v_add_u32 v8, v8, v7
        v_and_b32 v7, 7, v0
        v_lshl_add_u32 v8, v7, 2, v8
        v_add_u32 v8, 256, v8
        v_lshrrev_b32 v7, 4, v0
        v_cmp_eq_u32 vcc, 1, v7
        s_mov_b32 s45, 30000
        s_nop 0
        v_cndmask_b32 v6, v6, v8, vcc
        v_lshlrev_b32 v6, 7, v6
        """)
    if E("POLL2", 0):
        k(f"buffer_load_dwordx2 v[8:9], v6, s[12:15], s44 offen {HO}\ns_sleep {E('POLL2', 0)}")
        k.label(lp)
        k(f"""
        buffer_load_dwordx2 v[4:5], v6, s[12:15], s44 offen {HO}
        s_waitcnt vmcnt(1)
        v_cmp_ne_u64 vcc, s[84:85], v[8:9]
        s_cbranch_vccz {done}
        buffer_load_dwordx2 v[8:9], v6, s[12:15], s44 offen {HO}
        s_waitcnt vmcnt(1)
        v_cmp_ne_u64 vcc, s[84:85], v[4:5]
        s_cbranch_vccz {done}
        s_sub_u32 s45, s45, 1
        s_cmp_lg_u32 s45, 0
        s_cbranch_scc1 {lp}
        """)
    else:
        k.label(lp)
        k(f"""
        buffer_load_dwordx2 v[8:9], v6, s[12:15], s44 offen {HO}
        s_waitcnt vmcnt(0)
        v_cmp_ne_u64 vcc, s[84:85], v[8:9]
        s_cbranch_vccz {done}
        s_sub_u32 s45, s45, 1
        s_cmp_lg_u32 s45, 0
        s_cbranch_scc1 {lp}
        """)
    k.label(done)
```

```python
import sys
from fz import *

A_DP = 4
A_SUB = 12288
A_WB = 65536
A_RS = LDS_TOTAL - 256
assert A_WB + A_DP*2*A_SUB <= LDS_TOTAL
B_SLAB = 141312
ONESB = 131072
C_W, C_A, C_X = 0, 65536, 149504
D_DW, D_DA = E("D_DW", 5), E("D_DA", 4)
D_W, D_A, D_ST = 0, D_DW*16384, (D_DW+D_DA)*16384
assert D_ST + 8192 <= LDS_TOTAL
E_DW, E_DA = E("E_DW", 12), E("E_DA", 8)
E_W, E_A = 0, E_DW*8192
assert (E_DW+E_DA)*8192 <= LDS_TOTAL
STG = 24
MT64, NT8, HEAD, QB, MT128, NT14 = 22, 23, 24, 25, 26, 27
MTA, NTA = 56, 57
NT_A = "nt" if E("NT_A", 0) else ""
NT_B = "nt" if E("NT_B", 0) else ""
NT_W1 = "nt" if E("NT_W1", 0) else ""
NT_WO = "nt" if E("NT_WO", 0) else ""
NT_OH = "nt" if E("NT_OH", 0) else ""

def stamp_out(k):
    if not STAMP: return
    if E("DBGW", 0):
        l = k.new("nodbg")
        k(f"""
        s_cmp_lg_u32 s2, {E("DBGWG", 0)}
        s_cbranch_scc1 {l}
        s_cmp_lg_u32 s3, 4
        s_cbranch_scc1 {l}
        s_waitcnt vmcnt(0) lgkmcnt(0)
        s_memrealtime s[60:61]
        s_memtime s[86:87]
        s_waitcnt lgkmcnt(0)
        s_sub_u32 s86, s86, s62
        s_sub_u32 s60, s60, s63
        s_mov_b64 exec, 1
        v_mov_b32 v0, 0
        v_mov_b32 v4, s60
        v_mov_b32 v5, s86
        global_store_dwordx2 v0, v[4:5], s[80:81] offset:8
        """)
        for j in range(3):
            for i in range(4): k(f"s_sub_u32 s{88+4*j+i}, s{88+4*j+i}, s63\nv_mov_b32 v{8+4*j+i}, s{88+4*j+i}")
            k(f"global_store_dwordx4 v0, v[{8+4*j}:{11+4*j}], s[80:81] offset:{16+16*j}")
        k.label(l)
        return
    k(f"""
    s_waitcnt vmcnt(0) lgkmcnt(0)
    s_memrealtime s[60:61]
    s_memtime s[86:87]
    s_lshl_b32 s44, s2, 4
    s_add_u32 s44, s44, s3
    s_lshl_b32 s44, s44, 6
    s_add_u32 s44, s44, {WS_DBG}
    s_waitcnt lgkmcnt(0)
    s_sub_u32 s86, s86, s62
    s_mov_b64 exec, 1
    v_mov_b32 v0, s44
    v_mov_b32 v4, s63
    v_mov_b32 v5, s60
    v_mov_b32 v6, s86
    v_mov_b32 v7, 0
    global_store_dwordx4 v0, v[4:7], s[82:83]
    """)
    for j in range(3):
        for i in range(4): k(f"v_mov_b32 v{8+4*j+i}, s{88+4*j+i}")
        k(f"global_store_dwordx4 v0, v[{8+4*j}:{11+4*j}], s[82:83] offset:{16+16*j}")

def loader(k):
    cnt = {}
    ops = Ops(k)
    if E("CODEPF", 1):
        lnp = k.new("ncp")
        k(f"""
        s_getpc_b64 s[40:41]
        LPC0:
        s_sub_u32 s40, s40, LPC0 - {NAME}_kernel
        s_subb_u32 s41, s41, 0
        v_lshlrev_b32 v5, 7, v0
        s_lshl_b32 s42, s3, 13
        v_add_u32 v5, s42, v5
        v_min_u32 v5, CODE_SPAN, v5
        global_load_dword v6, v5, s[40:41]
        """)
    k(f"""
    s_add_u32 s28, s{MTA}, s{NTA}
    s_and_b32 s28, s28, 7
    s_mul_i32 s28, s28, {64*3072}
    s_lshl_b32 s29, s3, 3            ; 8*w rows
    s_lshl_b32 s30, s{NTA}, 7
    s_lshl_b32 s33, s3, 10           ; w*1024
    s_lshl_b32 s35, s3, 11           ; w*2048
    s_mul_i32 s31, s3, 3072
    s_add_u32 s31, s31, {A_WB}
    """)
    w_dma_voff(k, 4, 9, 10, 3072, 29, 30)
    k("s_waitcnt lgkmcnt(0)")
    k.srd(16, PWQKV, 512*1536*2)
    k.srd(12, PWS, WS_SIZE)
    if E("TLBW", 0):
        ltl = k.new("tl")
        k(f"""
        v_lshlrev_b32 v9, 21, v0
        s_cmp_lg_u32 s3, 0
        s_cbranch_scc1 {ltl}
        s_mov_b64 exec, 0x3ff
        buffer_load_dword v10, v4, s[16:19], s28 offen
        buffer_load_dword v11, v9, s[12:15], 0 offen
        s_mov_b64 exec, -1
        """)
        k.label(ltl)
    PBAR = E("PBAR", 0)
    def issueW_A(p):
        b = (p % A_DP) * 2*A_SUB
        k(f"s_add_u32 m0, s31, {b}\ns_add_u32 s32, s28, {32*3072}")
        for pn in range(3): k(f"buffer_load_dwordx4 v4, s[16:19], s28 offen offset:{pn*1024} {NT_A} lds")
        k(f"s_add_u32 m0, s31, {b + A_SUB}")
        ring_step(k, 28, 64*3072, 512*3072)
        n2 = 2 if p == 3 else 3
        for pn in range(n2): k(f"buffer_load_dwordx4 v4, s[16:19], s32 offen offset:{pn*1024} {NT_A} lds")
        if p == 3: k("s_mov_b32 s36, s32")
        ops.add(("W", p), 3 + n2)
    def late_piece():
        k(f"s_add_u32 m0, s31, {3*2*A_SUB + A_SUB}\ns_nop 0")
        k(f"buffer_load_dwordx4 v4, s[16:19], s36 offen offset:2048 {NT_A} lds")
        ops.add(("W", 3), 1)
    def issueW_A2(p):
        if p == 4: late_piece()
        issueW_A(p)
    for p in range(E("A_PRE", 2)):
        if p == PBAR: k.bar()
        issueW_A(p)
    k.mark(0)
    ring_loader_main(k, ops, 8, 99, A_DP, 99, None, issueW_A2, 8, E("A_PRE", 2), bmark=E("AMARK", 0))
    if E("AMARK", 0): k.mark = lambda i: None
    k.mark(1)
    k(f"""
    s_lshl_b32 s28, s{HEAD}, 17
    s_add_u32 s28, s28, s33
    s_add_u32 s28, s28, {WS_KV}
    s_mov_b32 m0, s33
    """)
    k.bar()
    k.bar()
    cnt['A'] = k.bars
    k.mark(2)
    def rounds(n):
        l = k.new("rd")
        k(f"s_mov_b32 s30, {n}")
        k.label(l)
        k(f"""
        buffer_load_dwordx4 v{L16}, s[12:15], s28 offen {HOL} {NT_B} lds
        s_add_u32 m0, m0, 4096
        s_add_u32 s28, s28, 4096
        s_sub_u32 s30, s30, 1
        s_cmp_lg_u32 s30, 0
        s_cbranch_scc1 {l}
        """)
    if E("LPRIO", 3): k(f"s_setprio {E('LPRIO', 3)}")
    rounds(4)
    k("s_waitcnt vmcnt(3)")
    k.bar()
    rounds(4)
    k("s_waitcnt vmcnt(4)")
    k.bar()
    rounds(8)
    k("s_waitcnt vmcnt(0)")
    k.bar()
    rounds(16)
    k("s_waitcnt vmcnt(0)")
    k.bar()
    k.srd(16, PWO, 512*1024)
    k.srd(36, PW1, 512*3584)
    k.srd(48, PW2, 1792*1024)
    k.srd(52, PX, 2048*1024)
    k(f"""
    s_lshl_b32 s29, s3, 4            ; 16w
    s_lshl_b32 s30, s{NT8}, 7
    s_lshl_b32 s31, s{MT64}, 6
    s_add_u32 s31, s31, s29
    s_lshl_b32 s32, s{NT14}, 8
    s_lshl_b32 s34, s3, 3            ; 8w
    """)
    w_dma_voff(k, 4, 5, 6, 1024, 29, 30)
    x_dma_voff(k, 7, 8, 5, 6, 31, 30)
    w_dma_voff(k, 9, 5, 6, 3584, 29, 32)
    k(f"""
    v_lshlrev_b32 v5, 7, v0
    v_lshrrev_b32 v11, 4, v0
    v_mul_u32_u24 v11, 3584, v11
    v_and_b32 v12, 15, v0
    v_min_u32 v12, 13, v12
    v_lshl_add_u32 v11, v12, 7, v11
    s_lshl_b32 s41, s21, 2
    s_add_u32 s41, s41, s3
    s_lshl_b32 s42, s41, 13          ; j*8KB
    s_add_u32 s43, s42, {128*8192}
    s_mul_i32 s44, s41, {4*3584}
    s_lshr_b32 s45, s20, 2
    s_mul_i32 s45, s45, 1792
    s_add_u32 s44, s44, s45
    buffer_load_dword v14, v5, s[16:19], s42 offen
    {"buffer_load_dword v15, v11, s[36:39], s44 offen" if not E("NOPFW1", 0) else ""}
    """)
    if E("W2MODE", 1) == 0:
        k("buffer_load_dword v16, v5, s[48:51], s42 offen\nbuffer_load_dword v17, v5, s[48:51], s43 offen")
    else:
        k(f"""
        s_add_u32 s47, s42, {768*1024}
        buffer_load_dword v16, v5, s[48:51], s47 offen
        s_mul_i32 s43, s20, {96*1024}
        s_add_u32 s43, s43, s42
        s_cmp_ge_u32 s41, 12
        s_cselect_b32 s43, s47, s43
        buffer_load_dword v17, v5, s[48:51], s43 offen
        """)
    if E("TLBW", 0):
        k.srd(40, POUT, 2048*1024)
        k("s_mov_b64 exec, 1\nbuffer_load_dword v21, v5, s[40:43], 0 offen\ns_mov_b64 exec, -1")
    for e in range(2):
        k(f"s_add_u32 m0, s35, {C_X + e*1024}\ns_nop 0")
        k(f"buffer_load_dwordx4 v{7+e}, s[52:55], 0 offen lds")
    lns = k.new("nosl")
    k(f"s_cmp_lg_u32 s3, 0\ns_cbranch_scc1 {lns}\ns_cmp_ge_u32 s2, 224\ns_cbranch_scc1 {lns}")
    k(f"s_lshl_b32 s44, s20, 6\ns_lshl_b32 s45, s21, 7")
    w_dma_voff(k, 18, 19, 20, 3584, 44, 45)
    k(f"s_mov_b32 s44, 0\ns_mov_b32 m0, {B_SLAB}\ns_mov_b32 s45, 8")
    lsl = k.new("sl")
    k.label(lsl)
    k(f"""
    buffer_load_dwordx4 v18, s[36:39], s44 offen lds
    s_add_u32 m0, m0, 1024
    s_add_u32 s44, s44, {8*3584}
    s_sub_u32 s45, s45, 1
    s_cmp_lg_u32 s45, 0
    s_cbranch_scc1 {lsl}
    """)
    w_tr_addr(k, 18, 19, 20, 45, 512, B_SLAB)
    k("v_xor_b32 v19, 64, v18")
    for i in range(4): k(f"v_mov_b32 v{24+i}, 0x3f803f80")
    k(f"""
    s_mul_i32 s44, s20, {1792*4}
    s_lshl_b32 s45, s21, 8
    s_add_u32 s44, s44, s45
    s_add_u32 s44, s44, {WS_C1}
    v_lshlrev_b32 v20, 2, v{MM}
    s_waitcnt vmcnt(0)
    """)
    for hf in range(2):
        for ks in range(4):
            for t in range(2):
                k(f"ds_read_b64_tr_b16 {vr(28+4*ks+2*t,2)}, v{18+hf} offset:{ks*2048 + t*1024}")
        k("s_waitcnt lgkmcnt(0)")
        for ks in range(4):
            k.mfma(48+16*hf, 24, 28+4*ks, "0" if ks == 0 else None)
    k(f"""
    s_nop 15
    s_mov_b64 exec, 0xffffffff
    buffer_store_dword v48, v20, s[12:15], s44 offen {HO}
    buffer_store_dword v64, v20, s[12:15], s44 offen offset:128 {HO}
    s_mov_b64 exec, -1
    """)
    k.label(lns)
    k("s_waitcnt vmcnt(0)")
    ops.ops = []
    k.mark(3)
    k.bar()
    k.mark(4)
    k("s_setprio 0")
    def issueW64(wsrd, b):
        for e in range(2):
            k(f"s_add_u32 m0, s35, {b + e*1024}\ns_add_u32 s32, s40, {e*8192}")
            k(f"buffer_load_dwordx4 v4, s[{wsrd}:{wsrd+3}], s32 offen {NT_WO if wsrd == 16 else str()} lds")
        k("s_add_u32 s40, s40, 65536")
    def issueA64(b, KS):
        k(f"s_add_u32 m0, s33, {b}\ns_add_u32 s32, s41, {KS*1024}")
        k(f"buffer_load_dwordx4 v{L16}, s[12:15], s41 offen {HOL} {NT_OH if KS == 32 else str()} lds")
        k(f"s_add_u32 m0, s33, {b + 4096}\ns_add_u32 s41, s41, 4096")
        k(f"buffer_load_dwordx4 v{L16}, s[12:15], s32 offen {HOL} {NT_OH if KS == 32 else str()} lds")
    def setup64(KS, ACT):
        k(f"""
        s_mov_b32 s40, 0
        s_mul_i32 s41, s{MT64}, {2*KS*1024}
        s_add_u32 s41, s41, s33
        s_add_u32 s41, s41, {ACT}
        """)
    setup64(32, WS_OF)
    if E("PRESLEEP", 0): k(f"s_sleep {E('PRESLEEP', 0)}")
    for s in range(8):
        issueW64(16, C_W + s*8192); ops.add(("W", s), 2)
        if E("C_PREWIN", 0) and s < 7: k(f"s_waitcnt vmcnt({E('C_PREWIN', 0)})")
    k.bar()
    k("s_setprio 3")
    cnt['B'] = k.bars
    k.mark(5)
    def iAC(s):
        issueA64(C_A + s*8192, 32); ops.add(("A", s), 2)
    SL, LC, LT = 24, 40, 48
    def issue_cols():
        k.srd(16, PB1, 3584)
        k(f"""
        s_min_u32 s44, s{NT14}, 13
        s_lshl_b32 s44, s44, 2
        s_add_u32 s44, s44, s3           ; nt32
        s_lshl_b32 s45, s44, 7
        s_add_u32 s45, s45, {WS_C1}
        s_add_u32 s46, s45, {2*1792*4}
        s_lshl_b32 s44, s44, 6
        v_mul_u32_u24 v12, {4*1792*4}, v{HH}
        v_lshl_add_u32 v12, v{MM}, 2, v12
        v_add_u32 v13, {1792*4}, v12
        v_lshlrev_b32 v14, 1, v{MM}
        buffer_load_dword v{LC}, v12, s[12:15], s45 offen {HO}
        buffer_load_dword v{LC+1}, v13, s[12:15], s45 offen {HO}
        buffer_load_dword v{LC+2}, v12, s[12:15], s46 offen {HO}
        buffer_load_dword v{LC+3}, v13, s[12:15], s46 offen {HO}
        buffer_load_ushort v{LC+4}, v14, s[16:19], s44 offen
        """)
        ops.add(("CO", 0), 5)
    ring_loader_main(k, ops, 8, 8, 8, E("C_LA", 6), iAC, None, 0, 8, after_bar={3: issue_cols})
    k.bar()
    ops.ops = []
    lE = k.new("ldE")
    k(f"""
    s_lshl_b32 s46, s21, 2
    s_add_u32 s46, s46, s3
    s_add_u32 s46, s46, {E("PFB", 96)}
    s_lshl_b32 s46, s46, 13
    """)
    lE0 = k.new("ldE0")
    k(f"s_cmp_ge_u32 s2, 224\ns_cbranch_scc1 {lE0}")
    b0 = k.bars
    k(f"""
    s_mov_b32 s40, 0
    s_lshl_b32 s41, s{MT128}, 2
    s_add_u32 s41, s41, s3
    s_lshl_b32 s43, s41, 12
    s_add_u32 s43, s43, {WS_ST}
    s_lshl_b32 s41, s41, 15
    s_add_u32 s41, s41, {WS_HF}
    s_lshl_b32 s42, s3, 12           ; w*4096
    """)
    def issueW_D(s):
        b = D_W + (s % D_DW) * 16384
        for i in range(4):
            pn, e = i >> 1, i & 1
            k(f"s_add_u32 m0, s35, {b + pn*8192 + e*1024}\ns_add_u32 s32, s40, {e*8*3584 + pn*128}")
            k(f"buffer_load_dwordx4 v9, s[36:39], s32 offen {NT_W1} lds")
        k(f"s_add_u32 s40, s40, {64*3584}")
        ops.add(("W", s), 4)
    def issueA_D(s):
        k(f"s_add_u32 m0, s42, {D_A + (s % D_DA) * 16384}\ns_nop 0")
        for i in range(4):
            k(f"buffer_load_dwordx4 v{L16}, s[12:15], s41 offen offset:{i*1024} {HOL} {NT_OH} lds")
        k("s_add_u32 s41, s41, 4096")
        ops.add(("A", s), 4)
    def issue_stats():
        k("v_lshlrev_b32 v12, 3, v0")
        for i in range(8):
            k(f"buffer_load_dwordx2 {vr(SL+2*i,2)}, v12, s[12:15], s43 offen offset:{i*512} {HO}")
        ops.add(("ST", 0), 8)
    def prep_stats():
        ops.wait({("ST", 0)})
        b, MB, RS = SL, LT+12, LT+16
        for i in range(1, 8):
            k(f"v_add_f32 v{b}, v{b}, v{b+2*i}\nv_add_f32 v{b+1}, v{b+1}, v{b+2*i+1}")
        xhalf_sum(k, b, LT)
        xhalf_sum(k, b+1, LT)
        k(f"""
        v_mul_f32 v{b}, {f32(-1.0/512)}, v{b}
        v_mul_f32 v{b+1}, {f32(1.0/512)}, v{b+1}
        v_fma_f32 v{b+1}, -v{b}, v{b}, v{b+1}
        v_max_f32 v{b+1}, 0, v{b+1}
        v_add_f32 v{b+1}, {f32(1e-5)}, v{b+1}
        v_rsq_f32 v{RS}, v{b+1}
        s_nop 0
        v_mul_f32 v{b+1}, v{b+1}, v{RS}
        v_mul_f32 v{MB+3}, {f32(LOG2E)}, v{RS}
        """)
        split_hilo(k, b, LT, LT+1, LT+2)
        k(f"v_cvt_pk_bf16_f32 v{MB}, v{LT}, v{LT+1}")
        split_hilo(k, b+1, LT+3, LT+1, LT+2)
        k(f"v_cvt_pk_bf16_f32 v{MB+1}, v{LT}, v{LT+3}\nv_cvt_pk_bf16_f32 v{MB+2}, v{LT+1}, 0")
        k(f"ds_write_b128 v11, {vr(MB,4)} offset:4096\ns_waitcnt lgkmcnt(0)")
    def retouch():
        if E("W2MODE", 1) == 1:
            k("buffer_load_dword v16, v5, s[48:51], s47 offen"); ops.add(("PF", 0), 1)
    def prep_cols():
        OA = LT+8
        k(f"""
        v_cmp_gt_u32 vcc, 32, v0
        v_add_f32 v{LC}, v{LC}, v{LC+1}
        v_add_f32 v{LC+2}, v{LC+2}, v{LC+3}
        v_cndmask_b32 v{LC+4}, 0, v{LC+4}, vcc
        v_add_f32 v{LC}, v{LC}, v{LC+2}
        """)
        split_hilo(k, LC, LT, LT+1, LT+2)
        k(f"""
        v_cvt_pk_bf16_f32 v{OA}, v{LT}, v{LT}
        v_cvt_pk_bf16_f32 v{OA+1}, v{LT+1}, 0
        v_lshl_or_b32 v{OA+1}, v{LC+4}, 16, v{OA+1}
        v_mov_b32 v{OA+2}, v{LC+4}
        v_mov_b32 v{OA+3}, 0
        v_add_u32 v11, s33, v{L16}
        v_add_u32 v11, {D_ST}, v11
        ds_write_b128 v11, {vr(OA,4)}
        """)
    DP1 = E("D_PRE1", 5)
    for s in range(DP1):
        issueW_D(s)
        if E("D_PREWIN", 4): k(f"s_waitcnt vmcnt({E('D_PREWIN', 4)})")
    k.bar()
    if DP1 < D_DW and E("PRESLEEP", 0): k(f"s_sleep {E('PRESLEEP', 0)}")
    for s in range(DP1, D_DW):
        issueW_D(s)
        if E("D_PREWIN", 4) and s < D_DW-1: k(f"s_waitcnt vmcnt({E('D_PREWIN', 4)})")
    prep_cols()
    k.bar()
    k.mark(6)
    if E("DMARK", 0): k.mark(0)
    ring_loader_main(k, ops, 8, D_DA, D_DW, E("D_LA", 3), issueA_D, issueW_D, 0, D_DW,
                     after_bar={E("D_STAT0", 4): issue_stats, E("D_STAT1", 6): prep_stats, E("W2RT", 5): retouch}, bmark=E("DMARK", 0))
    k.bar()
    if E("DMARK", 0):
        k.mark(9); k.mark = lambda i: None
    cnt['Dextra'] = k.bars - b0
    ops.ops = []
    k(f"s_branch {lE}")
    k.label(lE0)
    k.label(lE)
    k.mark(7)
    setup64(112, WS_AF)
    EP1 = E("E_PRE1", 8)
    for s in range(EP1):
        issueW64(48, E_W + s*8192); ops.add(("W", s), 2)
    k.bar()
    if E("PRESLEEP", 0): k(f"s_sleep {E('PRESLEEP', 0)}")
    for s in range(EP1, E_DW):
        issueW64(48, E_W + s*8192); ops.add(("W", s), 2)
        if E("E_PREWIN", 4): k(f"s_waitcnt vmcnt({E('E_PREWIN', 4)})")
    if E("W2MODE", 1) == 1:
        lrt = k.new("rt")
        k(f"s_cmp_lt_u32 s2, 224\ns_cbranch_scc1 {lrt}\nbuffer_load_dword v16, v5, s[48:51], s47 offen\ns_waitcnt vmcnt(0)")
        k.label(lrt)
    k.bar()
    k.mark(8)
    def iAE(s):
        if E("AB_E_NOA", 0): return
        issueA64(E_A + (s % E_DA)*8192, 112); ops.add(("A", s), 2)
    def iWE(mm):
        issueW64(48, E_W + (mm % E_DW)*8192); ops.add(("W", mm), 2)
    ring_loader_main(k, ops, 28, E_DA, E_DW, E("E_LA", 6), iAE, iWE, 0, E_DW)
    cnt['total'] = k.bars
    k.mark(9)
    stamp_out(k)
    k("s_endpgm")
    return cnt

def compute(k):
    cnt = {}
    CW = 28
    k(f"s_sub_u32 s{CW}, s3, 4")
    X, T = 64, 128
    ACC = 16
    k(f"""
    s_lshl_b32 s29, s{MTA}, 6
    s_lshl_b32 s30, s{CW}, 3
    s_add_u32 s29, s29, s30          ; row0
    v_lshrrev_b32 v6, 3, v0
    v_add_u32 v7, s29, v6
    v_lshlrev_b32 v7, 10, v7
    v_and_b32 v8, 7, v0
    v_lshl_add_u32 v7, v8, 4, v7
    s_add_u32 s33, s{MTA}, s{NTA}
    s_lshl_b32 s33, s33, 7
    s_and_b32 s33, s33, 1023
    s_waitcnt lgkmcnt(0)
    """)
    k.srd(16, PX, 2048*1024)
    for i in range(8):
        k(f"buffer_load_dwordx4 {vr(X+4*i,4)}, v7, s[16:19], s33 offen {NT_A}")
        if i < 7: k("s_add_u32 s33, s33, 128\ns_and_b32 s33, s33, 1023")
        if i == 0 and E("XMARK", 0): k.mark(2)
    k.bar()
    if E("XMARK", 0): k.mark(3)
    k.srd(12, PWS, WS_SIZE)
    k(f"""
    s_lshr_b32 s29, s{CW}, 2
    s_lshl_b32 s29, s29, 15
    s_and_b32 s30, s{CW}, 3
    s_lshl_b32 s30, s30, 7
    s_add_u32 s29, s29, s30
    v_xor_b32 v9, v6, v8
    v_lshlrev_b32 v9, 4, v9
    v_lshl_add_u32 v9, v8, 9, v9
    v_add_u32 v9, s29, v9
    s_lshl_b32 s30, s{CW}, 5
    s_add_u32 s30, s30, {A_RS}
    v_lshlrev_b32 v10, 2, v6
    v_add_u32 v10, s30, v10
    v_mov_b32 v{T}, 0x3f803f80
    v_mov_b32 v{T+1}, 0x00003f80
    v_mov_b32 v{T+2}, 0x3f800000
    s_and_b32 s29, s{CW}, 1          ; ms
    s_bfe_u32 s30, s{CW}, 0x10001    ; nh
    s_lshl_b32 s31, s30, 6
    """)
    CX, AW, CWA, VA = 4, 11, 12, 15
    w_tr_addr(k, AW, 13, 14, 31, 3072, A_WB)
    k(f"""
    s_lshl_b32 s32, s29, 15
    v_xor_b32 v13, v{MM}, v{HH}
    v_lshlrev_b32 v13, 4, v13
    v_lshlrev_b32 v14, 9, v{HH}
    v_add_u32 v14, s32, v14
    """)
    for ks in range(4):
        k(f"v_xor_b32 v{CX+ks}, {ks*32}, v13\nv_add_u32 v{CX+ks}, v{CX+ks}, v14")
    k(f"""
    v_mov_b32 v{CWA}, v{AW}
    s_mov_b32 s35, 0
    s_lshl_b32 s36, s29, 7
    s_add_u32 s36, s36, {A_RS}
    v_lshlrev_b32 v13, 2, v{MM}
    v_add_u32 v13, s36, v13
    v_lshlrev_b32 v14, 4, v{HH}
    v_add_u32 v14, s36, v14
    s_lshl_b32 s32, s{NTA}, 2
    s_lshl_b32 s33, s30, 1
    s_add_u32 s32, s32, s33            ; head0
    s_lshl_b32 s33, s{MTA}, 1
    s_add_u32 s33, s33, s29
    s_lshl_b32 s39, s32, 16
    s_lshl_b32 s36, s33, 10
    s_add_u32 s39, s39, s36
    s_add_u32 s39, s39, {WS_QF}
    s_add_u32 s36, s39, 65536
    s_lshl_b32 s37, s32, 17
    s_lshl_b32 s38, s33, 11
    s_add_u32 s37, s37, s38
    s_add_u32 s37, s37, {WS_KV}
    s_add_u32 s38, s37, 131072
    v_and_b32 v{VA}, 15, v0
    v_lshlrev_b32 v{VA}, 4, v{VA}
    v_lshl_add_u32 v{VA}, v{HH}, 8, v{VA}
    v_bfe_u32 v{T+6}, v0, 4, 1
    v_lshl_add_u32 v{VA}, v{T+6}, 17, v{VA}
    """)
    for i in range(48): k(f"v_mov_b32 v{ACC+i}, 0")
    SA, SB, QA, QB_, TM = T+4, T+5, T+6, T+7, T+8
    for r_ in (SA, SB, QA, QB_): k(f"v_mov_b32 v{r_}, 0")
    for i in range(8):
        k(f"s_waitcnt vmcnt({7-i})")
        for j in range(4):
            k(f"v_dot2_f32_bf16 v{SA+(j&1)}, v{X+4*i+j}, v{T}, v{SA+(j&1)}")
            k(f"v_dot2_f32_bf16 v{QA+(j&1)}, v{X+4*i+j}, v{X+4*i+j}, v{QA+(j&1)}")
    k.mark(0)
    k(f"s_nop 1\nv_add_f32 v{SA}, v{SA}, v{SB}\nv_add_f32 v{QA}, v{QA}, v{QB_}")
    for ctl in ("quad_perm:[1,0,3,2]", "quad_perm:[2,3,0,1]", "row_half_mirror"):
        k(f"s_nop 0\nv_add_f32_dpp v{SA}, v{SA}, v{SA} {ctl} row_mask:0xf bank_mask:0xf")
        k(f"v_add_f32_dpp v{QA}, v{QA}, v{QA} {ctl} row_mask:0xf bank_mask:0xf")
    NM = SA
    k(f"v_mul_f32 v{NM}, {f32(-1.0/512)}, v{SA}\nv_mul_f32 v{QA}, {f32(1.0/512)}, v{QA}")
    fin = [f"v_fma_f32 v{QA}, -v{NM}, v{NM}, v{QA}", f"v_max_f32 v{QA}, 0, v{QA}", f"v_add_f32 v{QA}, {f32(1e-5)}, v{QA}", f"v_rsq_f32 v{QA}, v{QA}"]
    for i in range(9):
        t = TM + 8*(i & 1)
        if i < 8:
            for j in range(4):
                k(f"v_dot2_f32_bf16 v{t+2*j}, v{X+4*i+j}, v{T+1}, v{NM}")
                k(f"v_dot2_f32_bf16 v{t+2*j+1}, v{X+4*i+j}, v{T+2}, v{NM}")
        else:
            for x_ in fin: k(x_)
        if i > 0:
            tp = TM + 8*((i-1) & 1)
            for j in range(4):
                k(f"v_cvt_pk_bf16_f32 v{X+4*(i-1)+j}, v{tp+2*j}, v{tp+2*j+1}")
            k(f"ds_write_b128 v9, {vr(X+4*(i-1),4)} offset:{(i-1)*4096}")
    k(f"ds_write_b32 v10, v{QA}")
    lhiA, lendA = k.new("hiA"), k.new("endA")
    k(f"s_waitcnt lgkmcnt(0)")
    k.mark(1)
    k(f"s_cmp_ge_u32 s{CW}, 4\ns_cbranch_scc1 {lhiA}")
    b0 = k.bars
    RSTD, RF, BUF = T+3, T+8, X
    def pre_first():
        k(f"ds_read_b32 v{RSTD}, v13")
        for g in range(4): k(f"ds_read_b128 {vr(RF+4*g,4)}, v14 offset:{g*32}")
        k("s_waitcnt lgkmcnt(1)")
    def reads(ks, st):
        b = BUF + 16*ks + 32*st
        r = [f"ds_read_b128 {vr(b,4)}, v{CX+2*st+ks} offset:{(2*st+ks)*1024}"]
        for pn in range(3):
            for t in range(2):
                r.append(f"ds_read_b64_tr_b16 {vr(b+4+4*pn+2*t,2)}, v{CWA} offset:{st*A_SUB + ks*6144 + pn*1024 + t*512}")
        return r
    def work(ks, st):
        b = BUF + 16*ks + 32*st
        return [k.mfma_s(ACC+16, b+8, b), k.mfma_s(ACC+32, b, b+12), k.mfma_s(ACC, b+4, b)]
    def addr_update():
        ring_step(k, 35, 2*A_SUB, A_DP*2*A_SUB)
        for i in range(4): k(f"v_add_u32 v{CX+i}, 4096, v{CX+i}")
        k(f"v_add_u32 v{CWA}, s35, v{AW}")
    compute_loop(k, 16, 2, reads, work, addr_update, 34, pair=True, pre_first=pre_first)
    if not E("XMARK", 0): k.mark(2)
    k(f"v_mul_f32 v{T+2}, {f32(0.25*LOG2E)}, v{RSTD}\ns_nop 8")
    P = X
    for (a, sc, st) in ((ACC+16, None, [(f"v{L16}", "s37", ""), (f"v{L16}", "s38", "")]),
                        (ACC+32, "rf", [(f"v{VA}", "s37", "offset:1024"), (f"v{VA}", "s37", "offset:1536")]),
                        (ACC, "q", [(f"v{L16}", "s39", ""), (f"v{L16}", "s36", "")])):
        for j in range(2):
            for i in range(8*j, 8*j+8):
                mm_ = f"v{RSTD}" if sc is None else (f"v{RF+i}" if sc == "rf" else f"v{T+2}")
                k(f"v_mul_f32 v{a+i}, v{a+i}, {mm_}")
            for i in range(4*j, 4*j+4):
                k(f"v_cvt_pk_bf16_f32 v{P+i}, v{a+2*i}, v{a+2*i+1}")
            k(f"buffer_store_dwordx4 {vr(P+4*j,4)}, {st[j][0]}, s[12:15], {st[j][1]} offen {st[j][2]} {HO}")
        P += 8
    nA = k.bars - b0
    k(f"s_branch {lendA}")
    k.label(lhiA)
    k.bars = b0
    lnn, ltp, lnt = k.new("nn"), k.new("tp"), k.new("nt")
    k.srd(16, PDBG, 256)
    k(f"""
    v_mov_b32 v10, 0
    s_cmp_lg_u32 s{CW}, 7
    s_cbranch_scc1 {lnt}
    s_cmp_lg_u32 s2, 0
    s_cbranch_scc1 {lnn}
    s_memrealtime s[84:85]
    s_waitcnt lgkmcnt(0)
    s_or_b32 s84, s84, 1
    v_mov_b32 v8, s84
    v_mov_b32 v9, s85
    s_mov_b64 exec, 1
    buffer_store_dwordx2 v[8:9], v10, s[16:19], 0 offen {HO}
    s_mov_b64 exec, -1
    """)
    k.label(lnn)
    k.idle_bars(nA)
    k("s_mov_b32 s45, 30000")
    k.label(ltp)
    k(f"""
    buffer_load_dwordx2 v[8:9], v10, s[16:19], 0 offen {HO}
    s_waitcnt vmcnt(0)
    v_readfirstlane_b32 s84, v8
    v_readfirstlane_b32 s85, v9
    s_nop 3
    s_cmp_lg_u32 s84, 0
    s_cbranch_scc1 {lendA}
    s_sub_u32 s45, s45, 1
    s_cmp_lg_u32 s45, 0
    s_cbranch_scc1 {ltp}
    s_branch {lendA}
    """)
    k.label(lnt)
    k.bars = b0
    k.idle_bars(nA)
    k.label(lendA)
    def end_phase(out_arr, out_line, in_arr, in_line, n_in, between=None):
        out_line()
        k(f"""
        s_lshl_b32 s46, s46, 7
        s_add_u32 s46, s46, {WS_FL + out_arr*32768}
        v_mov_b32 v4, s84
        v_mov_b32 v5, s85
        v_mov_b32 v6, 0
        s_cmp_lg_u32 s{CW}, 7
        s_waitcnt vmcnt(0)
        """)
        k.bar()
        ls = k.new("ns")
        k(f"""
        s_cbranch_scc1 {ls}
        s_mov_b64 exec, 1
        buffer_store_dwordx2 v[4:5], v6, s[12:15], s46 offen {HO}
        s_mov_b64 exec, -1
        """)
        k.label(ls)
        if between: between()
        ls = k.new("np")
        k(f"s_cmp_lg_u32 s{CW}, 7\ns_cbranch_scc1 {ls}")
        in_line()
        signal_and_wait(k, None, 46, in_arr, 47, n_in)
        k.label(ls)
        k.bar()
    AK, AV, Q, KF, VF, P, C, O, S0, M, T = 10, 11, 12, 16, 24, 40, 48, 64, 80, 112, 113
    AV0, AVS = 118, 119
    NIT = 16
    SW = E("SW", 13)
    def zero_state():
        for i in range(16): k(f"v_mov_b32 v{O+i}, 0")
        for i in range(4): k(f"v_mov_b32 v{P+4+i}, 0\nv_mov_b32 v{VF+12+i}, 0")
    def b_setup():
        lp = k.new("pr")
        k(f"""
        s_lshl_b32 s29, s{QB}, 3
        s_add_u32 s29, s29, s{CW}
        s_lshl_b32 s30, s{HEAD}, 16
        s_lshl_b32 s31, s29, 10
        s_add_u32 s30, s30, s31
        s_add_u32 s30, s30, {WS_QF}
        v_and_b32 v{T+1}, 11, v0
        v_cmp_eq_u32 vcc, 0, v{T+1}
        v_mov_b32 v{T+2}, 0x3f803f80
        s_lshl_b32 s31, s{CW}, 10
        s_add_u32 s31, s31, {ONESB}
        v_cndmask_b32 v{S0}, 0, v{T+2}, vcc
        v_add_u32 v{T+1}, s31, v{L16}
        v_mov_b32 v{S0+1}, v{S0}
        v_mov_b32 v{S0+2}, v{S0}
        v_mov_b32 v{S0+3}, v{S0}
        ds_write_b128 v{T+1}, {vr(S0,4)}
        ds_write_b128 v{T+1}, {vr(S0,4)} offset:2048
        v_and_b32 v{AV0}, 15, v0
        v_lshlrev_b32 v{AV0}, 4, v{AV0}
        v_lshl_add_u32 v{AV0}, v{HH}, 8, v{AV0}
        v_and_b32 v{T+1}, 16, v0
        v_cmp_eq_u32 vcc, 0, v{T+1}
        v_mov_b32 v{T+1}, {ONESB}
        v_mov_b32 v{T+2}, 1024
        v_mov_b32 v{T+3}, 8192
        v_cndmask_b32 v{T+1}, v{T+1}, v{T+2}, vcc
        v_cndmask_b32 v{AVS}, 0, v{T+3}, vcc
        v_add_u32 v{AV0}, v{AV0}, v{T+1}
        s_mov_b32 s36, 0
        s_mov_b32 s39, 1
        s_lshl_b32 s29, s29, 15
        s_lshl_b32 s31, s{HEAD}, 10
        s_add_u32 s29, s29, s31
        s_add_u32 s29, s29, {WS_OF}
        s_setprio 1
        s_cmp_lt_u32 s{CW}, 4
        s_cbranch_scc1 {lp}
        s_setprio 2
        """)
        k.label(lp)
        zero_state()
        k("s_waitcnt lgkmcnt(0)")
    if not E("XMARK", 0): k.mark(3)
    end_phase(0, lambda: k(f"s_lshl_b32 s46, s{NTA}, 5\ns_add_u32 s46, s46, s{MTA}"),
              0, lambda: k(f"s_lshr_b32 s47, s{HEAD}, 2\ns_lshl_b32 s47, s47, 5"), 32, between=b_setup)
    cnt['A'] = k.bars
    k.mark(4)
    k(f"buffer_load_dwordx4 {vr(Q,4)}, v{L16}, s[12:15], s30 offen {HO}")
    k("s_waitcnt vmcnt(0)")
    k.bar()
    k(f"ds_read_b128 {vr(KF,4)}, v{L16}\ns_waitcnt lgkmcnt(0)")
    k.mfma(S0, KF, Q, "0")
    k("s_nop 15")
    def max16(src, dst, first):
        if first:
            k(f"v_max3_f32 v{dst}, v{src}, v{src+1}, v{src+2}\nv_max_f32 v{dst}, v{dst}, v{src+3}")
            rng = range(4, 16, 2)
        else: rng = range(0, 16, 2)
        for i in rng: k(f"v_max3_f32 v{dst}, v{dst}, v{src+i}, v{src+i+1}")
    max16(S0, M, True)
    lhave, lnob, lloop, lswp, ldone, lmax, lfin = [k.new(x) for x in ("have","nobar","aloop","swp","adone","maxl","afin")]
    k.label(lhave)
    k(f"""
    v_mov_b32 v{T+1}, v{M}
    v_mov_b32 v{AK}, v{L16}
    v_mov_b32 v{AV}, v{AV0}
    v_permlane32_swap_b32 v{M}, v{T+1}
    ds_read_b128 {vr(KF,4)}, v{AK}
    ds_read_b128 {vr(KF+4,4)}, v{AK} offset:2048
    ds_read_b128 {vr(VF,4)}, v{AV}
    ds_read_b128 {vr(VF+4,4)}, v{AV} offset:512
    v_max_f32 v{M}, v{M}, v{T+1}
    """)
    for i in range(16): k(f"v_sub_f32 v{C+i}, 0, v{M}")
    k("s_waitcnt lgkmcnt(3)\ns_mov_b32 s37, 0")
    k.mfma(S0, KF, Q, C)
    k(f"s_cmp_lg_u32 s36, 0\ns_cbranch_scc1 {lnob}")
    k.bar()
    k.label(lnob)
    k("s_nop 7")
    k.label(lloop)
    for t in range(4):
        sb = S0 + 16*(t & 1); sn = S0 + 16*((t+1) & 1)
        kn = KF + 4*((t+1) & 1); kf = KF + 4*(t & 1)
        vc = VF + 8*(t & 1); vn = VF + 8*((t+1) & 1)
        ex = lambda i: k(f"v_exp_f32 v{sb+i}, v{sb+i}")
        cv = lambda i: k(f"v_cvt_pk_bf16_f32 v{P+i}, v{sb+2*i}, v{sb+2*i+1}")
        k("s_waitcnt lgkmcnt(2)")
        k.mfma(sn, kn, Q, C)
        ex(0)
        k(f"ds_read_b128 {vr(kf,4)}, v{AK} offset:{(t+2)*2048}")
        ex(1); ex(2); ex(3)
        k.mfma(O, vn+4, P+4)
        ex(4)
        k(f"ds_read_b128 {vr(vn,4)}, v{AV} offset:{(t+1)*2048}")
        ex(5)
        k(f"ds_read_b128 {vr(vn+4,4)}, v{AV} offset:{(t+1)*2048+512}")
        ex(6); ex(7)
        for i in range(4): cv(i)
        ex(8)
        k("s_waitcnt lgkmcnt(3)")
        ex(9)
        k.mfma(O, vc, P)
        for i in range(10, 16):
            ex(i)
            if t == 3 and i == 10: k("s_add_u32 s37, s37, 1")
            if t == 3 and i == 11: k("s_cmp_lt_u32 s37, s39")
        if t == 3:
            k(f"v_add_u32 v{AK}, 8192, v{AK}\nv_add_u32 v{AV}, v{AVS}, v{AV}")
        for i in range(4, 8): cv(i)
    CP2 = E("CP2", 3)
    k(f"""
    s_cbranch_scc1 {lloop}
    s_cmp_eq_u32 s37, {NIT}
    s_cbranch_scc1 {ldone}
    s_cmp_gt_u32 s37, {CP2}
    s_cbranch_scc1 {lswp}
    s_barrier
    s_cmp_eq_u32 s37, 1
    s_cselect_b32 s39, {CP2}, {SW}
    s_branch {lloop}
    """)
    k.bars += 2
    k.label(lswp)
    k(f"""
    s_mov_b32 s39, {NIT}
    s_cmp_lt_u32 s{CW}, 4
    s_cbranch_scc1 {lloop}
    s_setprio 0
    s_branch {lloop}
    """)
    k.label(ldone)
    k.mfma(O, VF+12, P+4)
    k(f"""
    s_waitcnt lgkmcnt(0)
    s_mov_b32 s38, {f32(2.0**60)}
    s_nop 13
    v_cmp_nlt_f32 vcc, v{O+8}, s38
    v_rcp_f32 v{T+3}, v{O+8}
    s_cmp_lg_u32 s36, 0
    s_cbranch_scc1 {lfin}
    s_cbranch_vccz {lfin}
    s_mov_b32 s36, 1
    s_mov_b32 s37, 0
    v_mov_b32 v{AK}, v{L16}
    v_mov_b32 v{M}, 0xff800000
    """)
    zero_state()
    k.label(lmax)
    k(f"ds_read_b128 {vr(KF,4)}, v{AK}\ns_waitcnt lgkmcnt(0)")
    k.mfma(S0, KF, Q, "0")
    k("s_nop 15")
    max16(S0, M, False)
    k(f"""
    v_add_u32 v{AK}, 2048, v{AK}
    s_add_u32 s37, s37, 1
    s_cmp_lt_u32 s37, 64
    s_cbranch_scc1 {lmax}
    s_branch {lhave}
    """)
    k.label(lfin)
    for i in range(8): k(f"v_mul_f32 v{O+i}, v{O+i}, v{T+3}")
    for i in range(4): k(f"v_cvt_pk_bf16_f32 v{P+i}, v{O+2*i}, v{O+2*i+1}")
    k(f"buffer_store_dwordx4 {vr(P,4)}, v{L16}, s[12:15], s29 offen {HO}")
    k("s_setprio 0")
    k.mark(5)
    AA, AW, CA, CWA = 10, 11, 12, 13
    ACC, BUF, T = 16, 32, 96
    def c_setup():
        k(f"""
        s_and_b32 s29, s{CW}, 1          ; ms
        s_bfe_u32 s30, s{CW}, 0x10001    ; nh
        s_lshl_b32 s31, s30, 6
        s_lshl_b32 s32, s29, 12
        v_add_u32 v{AA}, s32, v{L16}
        s_lshl_b32 s36, s{MT64}, 1
        s_add_u32 s36, s36, s29          ; mt32
        s_lshl_b32 s37, s{NT8}, 2
        s_lshl_b32 s38, s30, 1
        s_add_u32 s37, s37, s38          ; 2*nt32
        """)
        w_tr_addr(k, AW, 14, 15, 31, 512, 0)
    def c_between():
        c_setup()
        k(f"""
        v_add_u32 v{CA}, {C_A}, v{AA}
        v_mov_b32 v{CWA}, v{AW}
        v_lshlrev_b32 v14, 7, v{MM}
        v_add_u32 v14, s32, v14
        v_lshl_add_u32 v14, v{HH}, 3, v14
        v_add_u32 v14, {C_X}, v14
        v_bfe_u32 v15, v0, 1, 3
        v_lshlrev_b32 v15, 4, v15
        v_xor_b32 v15, s31, v15
        """)
        for g in range(4):
            k(f"v_xor_b32 v{T+16+g}, {g*16}, v15\nv_add_u32 v{T+16+g}, v{T+16+g}, v14")
    end_phase(1, lambda: k(f"s_lshl_b32 s46, s{QB}, 5\ns_add_u32 s46, s46, s{HEAD}"),
              1, lambda: k(f"s_lshr_b32 s47, s{MT64}, 2\ns_lshl_b32 s47, s47, 5"), -2, between=c_between)
    cnt['B'] = k.bars
    k.mark(6)
    def reads64(ks, st):
        b = BUF + 8*ks + 32*st
        return [f"ds_read_b128 {vr(b,4)}, v{CA} offset:{ks*1024}"] + \
               [f"ds_read_b64_tr_b16 {vr(b+4+2*t,2)}, v{CWA} offset:{ks*2048 + t*1024}" for t in range(2)]
    def work64(ks, st):
        b = BUF + 8*ks + 32*st
        return [k.mfma_s(ACC, b+4, b)]
    lhi, lend, lend2 = k.new("hiC"), k.new("endC"), k.new("endC2")
    k(f"s_cmp_ge_u32 s{CW}, 4\ns_cbranch_scc1 {lhi}")
    b0 = k.bars
    def c_first():
        for g in range(4): k(f"ds_read_b64 {vr(T+4+2*g,2)}, v{T+16+g}")
        k("s_waitcnt lgkmcnt(0)")
        for i in range(8):
            k(f"v_lshlrev_b32 v{ACC+2*i}, 16, v{T+4+i}\nv_and_b32 v{ACC+2*i+1}, 0xffff0000, v{T+4+i}")
    compute_loop(k, 8, 4, reads64, work64, lambda: k(f"v_add_u32 v{CA}, 8192, v{CA}\nv_add_u32 v{CWA}, 8192, v{CWA}"), 34, pre_first=c_first, mbar=True)
    k(f"""
    v_mov_b32 v{T+12}, 0x3f803f80
    v_mov_b32 v{T+14}, 0
    v_mov_b32 v{T+15}, 0
    s_lshl_b32 s38, s36, 15
    s_lshl_b32 s39, s37, 10
    s_add_u32 s38, s38, s39
    s_add_u32 s38, s38, {WS_HF}
    s_lshl_b32 s39, s36, 12
    s_lshl_b32 s40, s37, 7
    s_add_u32 s39, s39, s40
    s_add_u32 s39, s39, {WS_ST}
    v_lshlrev_b32 v{T+13}, 3, v{MM}
    s_nop 2
    """)
    for i in range(8): k(f"v_cvt_pk_bf16_f32 v{HSAVE+i}, v{ACC+2*i}, v{ACC+2*i+1}")
    k(f"buffer_store_dwordx4 {vr(HSAVE,4)}, v{L16}, s[12:15], s38 offen {HO}")
    k(f"buffer_store_dwordx4 {vr(HSAVE+4,4)}, v{L16}, s[12:15], s38 offen offset:1024 {HO}")
    for i in range(8):
        k(f"v_dot2_f32_bf16 v{T+14}, v{HSAVE+i}, v{T+12}, v{T+14}")
        k(f"v_dot2_f32_bf16 v{T+15}, v{HSAVE+i}, v{HSAVE+i}, v{T+15}")
    k("s_nop 2")
    xhalf_sum(k, T+14, T+16)
    xhalf_sum(k, T+15, T+16)
    k(f"s_mov_b64 exec, 0xffffffff\nbuffer_store_dwordx2 {vr(T+14,2)}, v{T+13}, s[12:15], s39 offen {HO}\ns_mov_b64 exec, -1")
    nC = k.bars - b0
    k(f"s_branch {lend}")
    k.label(lhi)
    k.bars = b0
    k.idle_bars(nC)
    k.label(lend)
    k.mark(7)
    f3_out = lambda: k(f"s_lshl_b32 s46, s{MT64}, 3\ns_add_u32 s46, s46, s{NT8}")
    f4_in = lambda: k(f"s_lshr_b32 s47, s{MT64}, 1\ns_lshl_b32 s47, s47, 4")
    def e_between():
        c_setup()
        k(f"""
        v_add_u32 v{AA}, {E_A}, v{AA}
        v_mov_b32 v{CA}, v{AA}
        v_mov_b32 v{CWA}, v{AW}
        s_mov_b32 s33, 0
        s_mov_b32 s35, 0
        """)
        for i in range(8):
            k(f"v_lshlrev_b32 v{16+2*i}, 16, v{HSAVE+i}\nv_and_b32 v{16+2*i+1}, 0xffff0000, v{HSAVE+i}")
    lD, lE = k.new("phD"), k.new("phE")
    k(f"s_cmp_lt_u32 s2, 224\ns_cbranch_scc1 {lD}")
    b0 = k.bars
    end_phase(2, f3_out, 3, f4_in, 14, between=e_between)
    k(f"s_branch {lE}")
    bskip = k.bars - b0
    k.bars = b0
    k.label(lD)
    DACC, DBUF, DT = 16, 48, 136
    RS, BB, CS = 8, 14, 15
    def d_between():
        k(f"""
        s_and_b32 s29, s{CW}, 1          ; mp
        s_lshr_b32 s30, s{CW}, 1         ; nq
        s_and_b32 s31, s30, 1
        s_lshl_b32 s31, s31, 6
        s_lshr_b32 s32, s30, 1
        s_lshl_b32 s32, s32, 13
        s_lshl_b32 s33, s29, 13
        s_add_u32 s33, s33, {D_A}
        v_add_u32 v{AA}, s33, v{L16}
        s_lshl_b32 s36, s{MT128}, 2
        s_lshl_b32 s37, s29, 1
        s_add_u32 s36, s36, s37
        s_lshl_b32 s37, s{NT14}, 2
        s_add_u32 s37, s37, s30          ; nt32 (0..55)
        s_lshl_b32 s38, s30, 10
        s_add_u32 s38, s38, {D_ST}
        v_add_u32 v{DT}, s38, v{L16}
        s_lshl_b32 s38, s29, 11
        s_add_u32 s38, s38, {D_ST + 4096}
        v_add_u32 v{DT+1}, s38, v{L16}
        s_mul_i32 s38, s36, {112*1024}
        s_lshl_b32 s39, s37, 11
        s_add_u32 s38, s38, s39
        s_add_u32 s38, s38, {WS_AF}
        s_add_u32 s39, s38, {112*1024}
        v_mov_b32 v{DT+2}, {f32(-2*LN2)}
        """)
        w_tr_addr(k, AW, DT+8, DT+9, 31, 512, D_W)
        k(f"""
        v_add_u32 v{AW}, s32, v{AW}
        v_mov_b32 v{CA}, v{AA}
        v_mov_b32 v{CWA}, v{AW}
        s_mov_b32 s33, 0
        s_mov_b32 s35, 0
        """)
        for i in range(32): k(f"v_mov_b32 v{DACC+i}, 0")
        if E("DPRIO", 1):
            lq = k.new("dp")
            k(f"s_cmp_ge_u32 s{CW}, 4\ns_cbranch_scc1 {lq}\ns_setprio 1")
            k.label(lq)
    end_phase(2, f3_out, 2, lambda: k(f"s_lshl_b32 s47, s{MT128}, 4"), 16, between=d_between)
    k.mark(8)
    def readsD(ks, st):
        b = DBUF + 12*ks + 24*st
        kk = 2*st + ks
        return [f"ds_read_b64_tr_b16 {vr(b+8+2*t,2)}, v{CWA} offset:{kk*2048 + t*1024}" for t in range(2)] + \
               [f"ds_read_b128 {vr(b,4)}, v{CA} offset:{kk*1024}", f"ds_read_b128 {vr(b+4,4)}, v{CA} offset:{4096+kk*1024}"]
    def workD(ks, st):
        b = DBUF + 12*ks + 24*st
        return [k.mfma_s(DACC, b+8, b), k.mfma_s(DACC+16, b+8, b+4)]
    def updD():
        ring_step(k, 33, 16384, D_DA*16384)
        ring_step(k, 35, 16384, D_DW*16384)
        k(f"v_add_u32 v{CA}, s33, v{AA}\nv_add_u32 v{CWA}, s35, v{AW}")
    OA, MB = 96, 100
    def tailD():
        k(f"""
        ds_read_b128 {vr(OA,4)}, v{DT}
        ds_read_b128 {vr(MB,4)}, v{DT+1}
        ds_read_b128 {vr(MB+4,4)}, v{DT+1} offset:1024
        """)
    def tailD2():
        k(f"""
        v_mov_b32 v{RS}, v{MB+3}
        v_mov_b32 v{RS+1}, v{MB+7}
        v_mov_b32 v{MB+3}, 0
        v_mov_b32 v{MB+7}, 0
        s_nop 0
        """)
        k.mfma(DACC, OA, MB)
        k.mfma(DACC+16, OA, MB+4)
    compute_loop(k, 16, 2, readsD, workD, updD, 34, pair=True, tail=(tailD, tailD2), mbar=True)
    k.mark(9)
    k("s_nop 11")
    U, PP = DBUF, DBUF+16
    for ms in range(2):
        a = DACC + 16*ms
        for i in range(16): k(f"v_mul_f32 v{a+i}, v{a+i}, v{RS+ms}")
        for i in range(16): k(f"v_exp_f32 v{U+i}, v{a+i}")
        for i in range(16): k(f"v_add_f32 v{U+i}, 1.0, v{U+i}")
        for i in range(16): k(f"v_fma_f32 v{U+i}, v{U+i}, v{U+i}, 1.0")
        for i in range(16): k(f"v_rcp_f32 v{U+i}, v{U+i}")
        for i in range(16): k(f"v_fmaak_f32 v{U+i}, v{U+i}, v{DT+2}, {f32(LN2)}")
        for i in range(16): k(f"v_mul_f32 v{a+i}, v{a+i}, v{U+i}")
        for i in range(8): k(f"v_cvt_pk_bf16_f32 v{PP+8*ms+i}, v{a+2*i}, v{a+2*i+1}")
        so = "s38" if ms == 0 else "s39"
        k(f"buffer_store_dwordx4 {vr(PP+8*ms,4)}, v{L16}, s[12:15], {so} offen {HO}")
        k(f"buffer_store_dwordx4 {vr(PP+8*ms+4,4)}, v{L16}, s[12:15], {so} offen offset:1024 {HO}")
    k.mark(10)
    k("s_setprio 0")
    end_phase(3, lambda: k(f"s_lshl_b32 s46, s{MT128}, 4\ns_add_u32 s46, s46, s{NT14}"), 3, f4_in, 14, between=e_between)
    cnt['Dextra'] = k.bars - b0 - bskip
    k.label(lE)
    k.mark(11)
    lhi = k.new("hiE")
    k(f"s_cmp_ge_u32 s{CW}, 4\ns_cbranch_scc1 {lhi}")
    b0 = k.bars
    def updE():
        ring_step(k, 33, 8192, E_DA*8192)
        ring_step(k, 35, 8192, E_DW*8192)
        k(f"v_add_u32 v{CA}, s33, v{AA}\nv_add_u32 v{CWA}, s35, v{AW}")
    compute_loop(k, 28, 4, reads64, work64, updE, 34)
    cnt['total'] = k.bars
    k.srd(16, POUT, 2048*1024)
    PQ = T+4
    k(f"""
    s_lshl_b32 s38, s36, 15
    s_lshl_b32 s39, s37, 5
    s_add_u32 s38, s38, s39
    v_lshlrev_b32 v{T+13}, 10, v{MM}
    v_lshl_add_u32 v{T+13}, v{HH}, 4, v{T+13}
    s_nop 4
    """)
    for i in range(8): k(f"v_cvt_pk_bf16_f32 v{PQ+i}, v{ACC+2*i}, v{ACC+2*i+1}")
    k("s_nop 1")
    for p in range(2):
        k(f"v_permlane32_swap_b32 v{PQ+4*p}, v{PQ+4*p+2}\nv_permlane32_swap_b32 v{PQ+4*p+1}, v{PQ+4*p+3}")
    k(f"buffer_store_dwordx4 {vr(PQ,4)}, v{T+13}, s[16:19], s38 offen")
    k(f"buffer_store_dwordx4 {vr(PQ+4,4)}, v{T+13}, s[16:19], s38 offen offset:32")
    if E("DBGT", 0):
        k.srd(16, PDBG, 256)
        k("""
        s_waitcnt vmcnt(0)
        s_memrealtime s[44:45]
        v_mov_b32 v4, 0
        buffer_load_dword v5, v4, s[16:19], 0 offen sc1
        s_waitcnt vmcnt(0) lgkmcnt(0)
        v_sub_u32 v5, s44, v5
        s_mov_b64 exec, 1
        buffer_atomic_umax v5, v4, s[16:19], 0 offen offset:16
        """)
    k.label(lhi)
    stamp_out(k)
    k("s_endpgm")
    return cnt

def build(path):
    k = K()
    if STAMP:
        k("s_memrealtime s[60:61]\ns_memtime s[62:63]\ns_waitcnt lgkmcnt(0)\ns_mov_b32 s63, s60")
        for i in range(12): k(f"s_mov_b32 s{88+i}, 0")
    k(f"""
    s_cmp_ge_u32 s2, 256
    s_cbranch_scc1 Lexit
    s_load_dwordx16 s[64:79], s[0:1], 0
    s_load_dwordx4 s[80:83], s[0:1], 64
    v_lshrrev_b32 v1, 6, v0
    v_and_b32 v0, 63, v0
    s_and_b32 s20, s2, 7
    v_readfirstlane_b32 s3, v1
    s_lshr_b32 s21, s2, 3
    v_lshrrev_b32 v{HH}, 5, v0
    v_lshlrev_b32 v{L16}, 4, v0
    v_and_b32 v{MM}, 31, v0
    s_and_b32 s28, s20, 3
    s_lshr_b32 s29, s20, 2
    s_lshl_b32 s{MTA}, s28, 3
    s_and_b32 s30, s21, 7
    s_add_u32 s{MTA}, s{MTA}, s30
    s_lshl_b32 s{NTA}, s29, 2
    s_lshr_b32 s30, s21, 3
    s_add_u32 s{NTA}, s{NTA}, s30
    s_lshl_b32 s{HEAD}, s20, 2
    s_and_b32 s30, s21, 3
    s_add_u32 s{HEAD}, s{HEAD}, s30
    s_lshr_b32 s{QB}, s21, 2
    s_mov_b32 s{MT64}, s{HEAD}
    s_mov_b32 s{NT8}, s{QB}
    s_lshl_b32 s{MT128}, s28, 2
    s_add_u32 s{MT128}, s{MT128}, s30
    s_mul_i32 s{NT14}, s29, 7
    s_add_u32 s{NT14}, s{NT14}, s{QB}
    """)
    if E("CFIRST", 1):
        k("s_cmp_lt_u32 s3, 4\ns_cbranch_scc1 Lloader")
        k.bars = 0
        c2 = compute(k)
        k.label("Lloader")
        k.bars = 0
        c1 = loader(k)
    else:
        k("s_cmp_ge_u32 s3, 4\ns_cbranch_scc1 Lcompute")
        k.bars = 0
        c1 = loader(k)
        k.label("Lcompute")
        k.bars = 0
        c2 = compute(k)
    assert c1 == c2, (c1, c2)
    k.label("Lexit")
    k("s_endpgm")
    ref = open(f"cdna_kernels/{NAME}.s.ref").read().split("\n")
    head = [l for l in ref if l.startswith(";") and "@launch" not in l]
    out = "\n".join(head) + f"\n; @launch grid=(256,1,1) block=(768,1,1) lds={LDS_TOTAL}\n"
    out += f'.amdgcn_target "amdgcn-amd-amdhsa--gfx950"\n.text\n.globl {NAME}_kernel\n.p2align 8\n.type {NAME}_kernel,@function\n{NAME}_kernel:\n'
    out += "\n".join(k.L).replace("CODE_SPAN", f"Lexit - {NAME}_kernel - 4") + "\n"
    out += f""".section .rodata,"a"
.p2align 6
.amdhsa_kernel {NAME}_kernel
  .amdhsa_next_free_vgpr 168
  .amdhsa_next_free_sgpr 102
  .amdhsa_accum_offset 168
  .amdhsa_group_segment_fixed_size 0
  .amdhsa_kernarg_size 80
  .amdhsa_user_sgpr_count 2
  .amdhsa_user_sgpr_kernarg_segment_ptr 1
  .amdhsa_system_sgpr_workgroup_id_x 1
.end_amdhsa_kernel
"""
    open(path, "w").write(out)
    print("barriers", c1, "lines", len(k.L))
if __name__ == "__main__":
    build(sys.argv[1])
```

```python
import os, struct, sys
NAME = "sequential_preLN__softmax_full_mha__dense_activation_mish__prompt"
STAMP = int(os.environ.get("STAMP", "0"))
E = lambda n, d: int(os.environ.get(n, str(d)))

WS_QF = 0
WS_KV = 2 << 20
WS_OF = 6 << 20
WS_HF = 8 << 20
WS_ST = 10 << 20
WS_C1 = (10 << 20) + (512 << 10)
WS_FL = 11 << 20
WS_AF = 12 << 20
WS_SIZE = 20 << 20
WS_DBG = 24 << 20
LOG2E = 1.4426950408889634
LN2 = 0.6931471805599453
LDS_TOTAL = 163840
def f32(x): return "0x%08x" % struct.unpack("<I", struct.pack("<f", x))[0]
def vr(a, n=1): return f"v{a}" if n == 1 else f"v[{a}:{a+n-1}]"

PX, PWQKV, PWO, PW1, PB1, PW2, POUT, PDBG, PWS = 64, 66, 68, 72, 74, 76, 78, 80, 82
LANE, HH, L16, MM = 0, 1, 2, 3
HSAVE = 160
HO = "sc1"
HOL = os.environ.get("HOL", "sc1")

class K:
    def __init__(self):
        self.L = []
        self.bars = 0
        self.uid = 0
    def __call__(self, s):
        for line in s.strip("\n").split("\n"):
            line = line.strip()
            if line: self.L.append("    " + line)
    def label(self, l): self.L.append(f"{l}:")
    def new(self, p):
        self.uid += 1
        return f"L{p}_{self.uid}"
    def bar(self, n=1):
        self("s_barrier"); self.bars += n
    def mark(self, i):
        if STAMP:
            self(f"{'s_memtime' if E('CYC', 0) else 's_memrealtime'} s[86:87]\ns_waitcnt lgkmcnt(0)\ns_mov_b32 s{88+i}, s86")
    def srd(self, d, base, nbytes):
        self(f"s_mov_b32 s{d}, s{base}\ns_mov_b32 s{d+1}, s{base+1}\ns_mov_b32 s{d+2}, {nbytes}\ns_mov_b32 s{d+3}, 0x00020000")
    def mfma_s(self, d, a, b, c=None):
        cs = vr(d, 16) if c is None else (c if isinstance(c, str) else vr(c, 16))
        return f"v_mfma_f32_32x32x16_bf16 {vr(d,16)}, {vr(a,4)}, {vr(b,4)}, {cs}"
    def mfma(self, d, a, b, c=None): self(self.mfma_s(d, a, b, c))
    def idle_bars(self, n):
        if n == 0: return
        l = self.new("idle")
        self(f"s_mov_b32 s34, {n}")
        self.label(l)
        self(f"s_barrier\ns_sub_u32 s34, s34, 1\ns_cmp_lg_u32 s34, 0\ns_cbranch_scc1 {l}")
        self.bars += n

def xhalf_sum(k, x, tmp):
    k(f"v_mov_b32 v{tmp}, v{x}\ns_nop 1\nv_permlane32_swap_b32 v{x}, v{tmp}\ns_nop 1\nv_add_f32 v{x}, v{x}, v{tmp}")
def split_hilo(k, x, hi, lo, tmp):
    k(f"v_cvt_pk_bf16_f32 v{tmp}, v{x}, v{x}\nv_and_b32 v{hi}, 0xffff0000, v{tmp}\nv_sub_f32 v{lo}, v{x}, v{hi}")

def w_tr_addr(k, dst, tmp, tmp2, half_sgpr, hstride, base):
    k(f"""
    v_mul_u32_u24 v{dst}, {hstride}, v{HH}
    v_bfe_u32 v{tmp}, v0, 2, 2
    v_lshl_add_u32 v{dst}, v{tmp}, 7, v{dst}
    v_bfe_u32 v{tmp}, v0, 4, 1
    v_lshlrev_b32 v{tmp}, 5, v{tmp}
    v_and_b32 v{tmp2}, 3, v0
    v_lshl_add_u32 v{tmp}, v{tmp2}, 3, v{tmp}
    v_add_u32 v{tmp}, s{half_sgpr}, v{tmp}
    v_bfe_u32 v{tmp2}, v0, 3, 1
    v_lshlrev_b32 v{tmp2}, 6, v{tmp2}
    v_xor_b32 v{tmp}, v{tmp}, v{tmp2}
    v_add_u32 v{dst}, v{dst}, v{tmp}
    """)
    if base: k(f"v_add_u32 v{dst}, {base}, v{dst}")

def w_dma_voff(k, dst, tmp, tmp2, pitch, row_sgpr, col_sgpr):
    k(f"""
    v_lshrrev_b32 v{tmp}, 3, v0
    v_add_u32 v{tmp}, s{row_sgpr}, v{tmp}
    v_mul_u32_u24 v{dst}, {pitch}, v{tmp}
    v_and_b32 v{tmp}, 7, v0
    v_bfe_u32 v{tmp2}, v0, 4, 1
    v_lshlrev_b32 v{tmp2}, 2, v{tmp2}
    v_xor_b32 v{tmp}, v{tmp}, v{tmp2}
    v_lshl_add_u32 v{dst}, v{tmp}, 4, v{dst}
    v_add_u32 v{dst}, s{col_sgpr}, v{dst}
    """)

def x_dma_voff(k, dst0, dst1, tmp, tmp2, row0_sgpr, col_sgpr):
    k(f"""
    v_lshrrev_b32 v{tmp}, 3, v0
    v_add_u32 v{tmp}, s{row0_sgpr}, v{tmp}
    v_lshlrev_b32 v{dst0}, 10, v{tmp}
    v_add_u32 v{dst0}, s{col_sgpr}, v{dst0}
    v_add_u32 v{dst1}, 8192, v{dst0}
    v_and_b32 v{tmp}, 7, v0
    v_lshrrev_b32 v{tmp2}, 4, v0
    v_xor_b32 v{tmp}, v{tmp}, v{tmp2}
    v_lshl_add_u32 v{dst0}, v{tmp}, 4, v{dst0}
    v_xor_b32 v{tmp}, 4, v{tmp}
    v_lshl_add_u32 v{dst1}, v{tmp}, 4, v{dst1}
    """)

class Ops:
    def __init__(self, k): self.k = k; self.ops = []
    def add(self, tag, n): self.ops += [tag] * n
    def wait(self, tags):
        idx = [i for i, t in enumerate(self.ops) if t in tags]
        if not idx: return
        n = len(self.ops) - 1 - max(idx)
        assert n <= 63, n
        self.k(f"s_waitcnt vmcnt({n})")

def interleave(mf, rd):
    out = []
    n, m = len(mf), len(rd)
    j = 0
    for i, x in enumerate(mf):
        out.append(x)
        tgt = (m * (i + 1) + n - 1) // n
        while j < tgt:
            out.append(rd[j]); j += 1
    return out

def compute_loop(k, S, SPS, reads, work, addr_update, sctr, pair=False, pre_first=None, hook=None, front=0, tail=None, mbar=False):
    assert S % 2 == 0 and S >= 4
    if E("AB_NOMFMA", 0):
        work0 = work
        work = lambda ks, st: ["s_nop 0"] * len(work0(ks, st))
    if E("AB_NOREAD", 0):
        reads0 = reads
        reads = lambda ks, st: reads0(ks, st)[:1]
    R = len(reads(0, 0))
    def emit(lst, out=0):
        for x in lst:
            if x.startswith("ds_"):
                if out >= 15:
                    k("s_waitcnt lgkmcnt(12)"); out = 12
                out += 1
            k(x)
    allreads = lambda b: [x for ks in range(SPS) for x in reads(ks, b)]
    allwork = lambda b: [x for ks in range(SPS) for x in work(ks, b)]
    def body(b):
        w = allwork(1-b)
        n = len(w) - 1 if not front else len(w) // front
        emit(interleave(w[:n], allreads(b)) + w[n:])
    k.bar()
    if pre_first: pre_first()
    emit(allreads(0))
    if not pair: addr_update()
    k(f"s_mov_b32 s{sctr}, {(S-2)//2}")
    l = k.new("cl")
    k.label(l)
    k("s_waitcnt lgkmcnt(0)")
    if not pair: k("s_barrier")
    body(1)
    addr_update()
    k(f"s_sub_u32 s{sctr}, s{sctr}, 1")
    k("s_waitcnt lgkmcnt(0)")
    k("s_barrier")
    body(0)
    if hook: hook()
    if not pair: addr_update()
    k(f"s_cmp_lg_u32 s{sctr}, 0\ns_cbranch_scc1 {l}")
    k.bars += (S-2)//2 * (1 if pair else 2)
    if pair:
        if tail: tail[0]()
        k("s_waitcnt lgkmcnt(0)")
        if tail: tail[1]()
        body(1)
    else:
        for ks in range(SPS):
            k(f"s_waitcnt lgkmcnt({min(15, (SPS-ks-1)*R)})")
            for x in work(ks, 0): k(x)
        if tail: tail[0]()
        k.bar()
        emit(allreads(1))
    for ks in range(SPS):
        k(f"s_waitcnt lgkmcnt({min(15, (SPS-ks-1)*R)})")
        if mbar and ks == SPS-1: k.bar()
        for x in work(ks, 1): k(x)

W2X = E('W2X', 0)
def ring_loader_main(k, ops, S, DA, DW, LA, issueA, issueW, na, nw, extra_need=None, after_bar=None, ldsw=False, LA2=None, bmark=0, wdelay=0):
    while na < min(LA, S, DA):
        issueA(na); na += 1
    for s in range(S):
        need = {("A", s), ("W", s)} | set((extra_need or {}).get(s, []))
        ops.wait(need)
        if ldsw and s >= DW: k("s_waitcnt lgkmcnt(0)")
        if bmark == 1: k.mark(s+1)
        k.bar()
        if bmark == 2: k.mark(s+1)
        for rep in range(2 if LA2 else 1):
            if na < S and (na < DA or na - DA <= s - 1) and na <= s + (LA2 or LA) and (rep == 0 or s >= 1):
                issueA(na); na += 1
        for rep in range(2):
            if nw < S and (nw < DW or (nw - DW <= s - 1 - wdelay and rep == 0)) and (rep == 0 or W2X):
                issueW(nw); nw += 1
        if after_bar and s in after_bar: after_bar[s]()
    assert na == S and nw == S, (na, nw)

def ring_step(k, s, size, total):
    k(f"s_add_u32 s{s}, s{s}, {size}\ns_cmp_eq_u32 s{s}, {total}\ns_cselect_b32 s{s}, 0, s{s}")

def signal_and_wait(k, out_arr, out_line_sgpr, in_arr, in_line_sgpr, n_in):
    if out_arr is not None:
        k(f"""
        s_lshl_b32 s44, s{out_line_sgpr}, 7
        s_add_u32 s44, s44, {WS_FL + out_arr*32768}
        v_mov_b32 v4, s84
        v_mov_b32 v5, s85
        v_mov_b32 v6, 0
        s_mov_b64 exec, 1
        buffer_store_dwordx2 v[4:5], v6, s[12:15], s44 offen {HO}
        s_mov_b64 exec, -1
        """)
    if in_arr is None: return
    lp, done = k.new("poll"), k.new("polld")
    if n_in > 0:
        k(f"""
        s_lshl_b32 s44, s{in_line_sgpr}, 7
        s_add_u32 s44, s44, {WS_FL + in_arr*32768}
        v_min_u32 v6, {n_in-1}, v0
        v_lshlrev_b32 v6, 7, v6
        s_mov_b32 s45, 30000
        """)
    elif n_in == -2:
        k(f"""
        s_mov_b32 s44, {WS_FL + in_arr*32768}
        v_add_u32 v6, s{in_line_sgpr}, v0
        s_lshl_b32 s45, s27, 1
        s_min_u32 s45, s45, 26
        v_bfe_u32 v7, v0, 3, 1
        v_add_u32 v7, s45, v7             ; idx
        v_lshrrev_b32 v8, 2, v7
        v_lshlrev_b32 v8, 5, v8
        v_and_b32 v7, 3, v7
        v_add_u32 v8, v8, v7
        v_and_b32 v7, 7, v0
        v_lshl_add_u32 v8, v7, 2, v8
        v_cmp_lt_u32 vcc, 31, v0
        s_mov_b32 s45, 30000
        s_nop 0
        v_cndmask_b32 v6, v6, v8, vcc
        v_lshlrev_b32 v6, 7, v6
        """)
    else:
        k(f"""
        s_mov_b32 s44, {WS_FL}
        v_and_b32 v6, 15, v0
        v_add_u32 v6, s{in_line_sgpr}, v6
        v_add_u32 v6, {in_arr*256}, v6
        s_lshl_b32 s45, s27, 1
        v_bfe_u32 v7, v0, 3, 1
        v_add_u32 v7, s45, v7             ; idx
        v_lshrrev_b32 v8, 2, v7
        v_lshlrev_b32 v8, 5, v8
        v_and_b32 v7, 3, v7
        v_add_u32 v8, v8, v7
        v_and_b32 v7, 7, v0
        v_lshl_add_u32 v8, v7, 2, v8
        v_add_u32 v8, 256, v8
        v_lshrrev_b32 v7, 4, v0
        v_cmp_eq_u32 vcc, 1, v7
        s_mov_b32 s45, 30000
        s_nop 0
        v_cndmask_b32 v6, v6, v8, vcc
        v_lshlrev_b32 v6, 7, v6
        """)
    if E("POLL2", 0):
        k(f"buffer_load_dwordx2 v[8:9], v6, s[12:15], s44 offen {HO}\ns_sleep {E('POLL2', 0)}")
        k.label(lp)
        k(f"""
        buffer_load_dwordx2 v[4:5], v6, s[12:15], s44 offen {HO}
        s_waitcnt vmcnt(1)
        v_cmp_ne_u64 vcc, s[84:85], v[8:9]
        s_cbranch_vccz {done}
        buffer_load_dwordx2 v[8:9], v6, s[12:15], s44 offen {HO}
        s_waitcnt vmcnt(1)
        v_cmp_ne_u64 vcc, s[84:85], v[4:5]
        s_cbranch_vccz {done}
        s_sub_u32 s45, s45, 1
        s_cmp_lg_u32 s45, 0
        s_cbranch_scc1 {lp}
        """)
    else:
        k.label(lp)
        k(f"""
        buffer_load_dwordx2 v[8:9], v6, s[12:15], s44 offen {HO}
        s_waitcnt vmcnt(0)
        v_cmp_ne_u64 vcc, s[84:85], v[8:9]
        s_cbranch_vccz {done}
        s_sub_u32 s45, s45, 1
        s_cmp_lg_u32 s45, 0
        s_cbranch_scc1 {lp}
        """)
    k.label(done)
```

```python
import sys
from fz import *

A_DP = 4
A_SUB = 12288
A_WB = 65536
A_RS = LDS_TOTAL - 256
assert A_WB + A_DP*2*A_SUB <= LDS_TOTAL
B_SLAB = 141312
B_SYNC = 157696
ONESB = 131072
C_W, C_A, C_X = 0, 65536, 149504
D_DW, D_DA = E("D_DW", 5), E("D_DA", 4)
D_W, D_A, D_ST = 0, D_DW*16384, (D_DW+D_DA)*16384
assert D_ST + 8192 <= LDS_TOTAL
E_DW, E_DA = 12, 4
E_S = 14
E_NR = 12
RW = 72
ETAIL = E('ETAIL', 1)
E_PB = 4*8192
E_W, E_A = 0, E_DW*8192
assert E_DW*8192 + E_DA*16384 <= LDS_TOTAL
STG = 24
MT64, NT8, HEAD, QB, MT128, NT14 = 22, 23, 24, 25, 26, 27
MTA, NTA = 56, 57
NT_A = "nt" if E("NT_A", 0) else ""
NT_B = "nt" if E("NT_B", 0) else ""
NT_W1 = "nt" if E("NT_W1", 0) else ""
NT_WO = "nt" if E("NT_WO", 0) else ""
NT_OH = "nt" if E("NT_OH", 0) else ""

def stamp_out(k):
    if not STAMP: return
    if E("DBGW", 0):
        l = k.new("nodbg")
        k(f"""
        s_cmp_lg_u32 s2, {E("DBGWG", 0)}
        s_cbranch_scc1 {l}
        s_cmp_lg_u32 s3, 4
        s_cbranch_scc1 {l}
        s_waitcnt vmcnt(0) lgkmcnt(0)
        s_memrealtime s[60:61]
        s_memtime s[86:87]
        s_waitcnt lgkmcnt(0)
        s_sub_u32 s86, s86, s62
        s_sub_u32 s60, s60, s63
        s_mov_b64 exec, 1
        v_mov_b32 v0, 0
        v_mov_b32 v4, s60
        v_mov_b32 v5, s86
        global_store_dwordx2 v0, v[4:5], s[80:81] offset:8
        """)
        for j in range(3):
            for i in range(4): k(f"s_sub_u32 s{88+4*j+i}, s{88+4*j+i}, s63\nv_mov_b32 v{8+4*j+i}, s{88+4*j+i}")
            k(f"global_store_dwordx4 v0, v[{8+4*j}:{11+4*j}], s[80:81] offset:{16+16*j}")
        k.label(l)
        return
    k(f"""
    s_waitcnt vmcnt(0) lgkmcnt(0)
    s_memrealtime s[60:61]
    s_memtime s[86:87]
    s_lshl_b32 s44, s2, 4
    s_add_u32 s44, s44, s3
    s_lshl_b32 s44, s44, 6
    s_add_u32 s44, s44, {WS_DBG}
    s_waitcnt lgkmcnt(0)
    s_sub_u32 s86, s86, s62
    s_mov_b64 exec, 1
    v_mov_b32 v0, s44
    v_mov_b32 v4, s63
    v_mov_b32 v5, s60
    v_mov_b32 v6, s86
    v_mov_b32 v7, 0
    global_store_dwordx4 v0, v[4:7], s[82:83]
    """)
    for j in range(3):
        for i in range(4): k(f"v_mov_b32 v{8+4*j+i}, s{88+4*j+i}")
        k(f"global_store_dwordx4 v0, v[{8+4*j}:{11+4*j}], s[82:83] offset:{16+16*j}")

def loader(k):
    cnt = {}
    ops = Ops(k)
    if E("CODEPF", 1):
        lnp = k.new("ncp")
        k(f"""
        s_getpc_b64 s[40:41]
        LPC0:
        s_sub_u32 s40, s40, LPC0 - {NAME}_kernel
        s_subb_u32 s41, s41, 0
        v_lshlrev_b32 v5, 7, v0
        s_lshl_b32 s42, s3, 13
        v_add_u32 v5, s42, v5
        v_min_u32 v5, CODE_SPAN, v5
        global_load_dword v6, v5, s[40:41]
        """)
    k(f"""
    s_add_u32 s28, s{MTA}, s{NTA}
    s_and_b32 s28, s28, 7
    s_mul_i32 s28, s28, {64*3072}
    s_lshl_b32 s29, s3, 3            ; 8*w rows
    s_lshl_b32 s30, s{NTA}, 7
    s_lshl_b32 s33, s3, 10           ; w*1024
    s_lshl_b32 s35, s3, 11           ; w*2048
    s_mul_i32 s31, s3, 3072
    s_add_u32 s31, s31, {A_WB}
    """)
    w_dma_voff(k, 4, 9, 10, 3072, 29, 30)
    k("s_waitcnt lgkmcnt(0)")
    k.srd(16, PWQKV, 512*1536*2)
    k.srd(12, PWS, WS_SIZE)
    if E("TLBW", 0):
        ltl = k.new("tl")
        k(f"""
        v_lshlrev_b32 v9, 21, v0
        s_cmp_lg_u32 s3, 0
        s_cbranch_scc1 {ltl}
        s_mov_b64 exec, 0x3ff
        buffer_load_dword v10, v4, s[16:19], s28 offen
        buffer_load_dword v11, v9, s[12:15], 0 offen
        s_mov_b64 exec, -1
        """)
        k.label(ltl)
    PBAR = E("PBAR", 0)
    def issueW_A(p):
        b = (p % A_DP) * 2*A_SUB
        k(f"s_add_u32 m0, s31, {b}\ns_add_u32 s32, s28, {32*3072}")
        for pn in range(3): k(f"buffer_load_dwordx4 v4, s[16:19], s28 offen offset:{pn*1024} {NT_A} lds")
        k(f"s_add_u32 m0, s31, {b + A_SUB}")
        ring_step(k, 28, 64*3072, 512*3072)
        n2 = 2 if p == 3 else 3
        for pn in range(n2): k(f"buffer_load_dwordx4 v4, s[16:19], s32 offen offset:{pn*1024} {NT_A} lds")
        if p == 3: k("s_mov_b32 s36, s32")
        ops.add(("W", p), 3 + n2)
    def late_piece():
        k(f"s_add_u32 m0, s31, {3*2*A_SUB + A_SUB}\ns_nop 0")
        k(f"buffer_load_dwordx4 v4, s[16:19], s36 offen offset:2048 {NT_A} lds")
        ops.add(("W", 3), 1)
    def issueW_A2(p):
        if p == 4: late_piece()
        issueW_A(p)
    for p in range(E("A_PRE", 2)):
        if p == PBAR: k.bar()
        issueW_A(p)
    k.mark(0)
    ring_loader_main(k, ops, 8, 99, A_DP, 99, None, issueW_A2, 8, E("A_PRE", 2), bmark=E("AMARK", 0))
    if E("AMARK", 0): k.mark = lambda i: None
    k.mark(1)
    k.bar()
    k(f"""
    s_lshl_b32 s28, s{HEAD}, 17
    s_add_u32 s28, s28, s33
    s_add_u32 s28, s28, {WS_KV}
    s_lshl_b32 s29, s3, 2
    s_add_u32 s29, s29, {B_SYNC}
    v_mov_b32 v22, s29
    v_mov_b32 v23, 0
    ds_write_b32 v22, v23
    """)
    k.srd(16, PWO, 512*1024)
    k.srd(36, PW1, 512*3584)
    k.srd(48, PW2, 1792*1024)
    k.srd(52, PX, 2048*1024)
    k(f"""
    s_lshl_b32 s29, s3, 4            ; 16w
    s_lshl_b32 s30, s{NT8}, 7
    s_lshl_b32 s31, s{MT64}, 6
    s_add_u32 s31, s31, s29
    s_lshl_b32 s32, s{NT14}, 8
    """)
    w_dma_voff(k, 4, 5, 6, 1024, 29, 30)
    x_dma_voff(k, 7, 8, 5, 6, 31, 30)
    w_dma_voff(k, 9, 5, 6, 3584, 29, 32)
    k(f"""
    v_lshlrev_b32 v5, 7, v0
    v_lshrrev_b32 v11, 4, v0
    v_mul_u32_u24 v11, 3584, v11
    v_and_b32 v12, 15, v0
    v_min_u32 v12, 13, v12
    v_lshl_add_u32 v11, v12, 7, v11
    s_lshl_b32 s41, s21, 2
    s_add_u32 s41, s41, s3
    s_lshl_b32 s42, s41, 13          ; j*8KB
    s_mul_i32 s40, s41, {4*3584}
    s_lshr_b32 s45, s20, 2
    s_mul_i32 s45, s45, 1792
    s_add_u32 s40, s40, s45
    s_add_u32 s47, s42, {768*1024}
    s_lshl_b32 s44, s20, 6
    s_add_u32 s44, s44, s29
    s_min_u32 s45, s21, 27
    s_lshl_b32 s45, s45, 7
    """)
    w_dma_voff(k, 18, 19, 20, 3584, 44, 45)
    k(f"s_mov_b32 s45, 0")
    w_tr_addr(k, 19, 20, 21, 45, 512, B_SLAB)
    k(f"""
    v_add_u32 v19, s35, v19
    v_xor_b32 v21, 64, v19
    v_mov_b32 v24, 0x3f803f80
    v_mov_b32 v25, 0x3f803f80
    v_mov_b32 v26, 0x3f803f80
    v_mov_b32 v27, 0x3f803f80
    s_lshl_b32 s44, s20, 2
    s_add_u32 s44, s44, s3
    s_mul_i32 s44, s44, {1792*4}
    s_lshl_b32 s45, s21, 8
    s_add_u32 s44, s44, s45
    s_add_u32 s44, s44, {WS_C1}
    v_lshlrev_b32 v20, 2, v{MM}
    s_and_b32 s29, s3, 1             ; nh
    s_lshr_b32 s31, s3, 1            ; kh
    s_lshl_b32 s29, s29, 6
    s_lshl_b32 s32, s{NT8}, 7
    s_add_u32 s29, s29, s32
    s_lshl_b32 s31, s31, 15
    s_add_u32 s46, s29, s31
    v_lshrrev_b32 v10, 2, v0
    v_lshlrev_b32 v10, 10, v10
    v_and_b32 v12, 3, v0
    v_lshl_add_u32 v10, v12, 4, v10  ; 16 rows x 64B
    v_add_u32 v17, 16384, v10
    v_lshlrev_b32 v13, 8, v{HH}
    v_bfe_u32 v6, v0, 2, 2
    v_lshl_add_u32 v13, v6, 6, v13
    v_bfe_u32 v6, v0, 4, 1
    v_lshl_add_u32 v13, v6, 5, v13
    v_lshl_add_u32 v13, v12, 3, v13
    s_add_u32 s29, s35, {B_SLAB}
    v_add_u32 v13, s29, v13
    v_add_u32 v12, s29, v{L16}
    v_mov_b32 v23, 1
    s_mov_b32 m0, s33
    s_mov_b32 s30, 29
    s_waitcnt lgkmcnt(0)
    s_setprio 3
    """)
    k.bar()
    cnt['A'] = k.bars
    k.mark(2)
    BWIN = E("B_WIN", 5)
    for i in range(3):
        k(f"buffer_load_dwordx4 v{L16}, s[12:15], s28 offen {HOL} lds\ns_add_u32 m0, m0, 4096\ns_add_u32 s28, s28, 4096")
    k(f"s_waitcnt vmcnt(2)\nds_write_b32 v22, v23\ns_mov_b32 s31, {3 - BWIN}")
    l = k.new("rd")
    k.label(l)
    k(f"""
    buffer_load_dwordx4 v{L16}, s[12:15], s28 offen {HOL} lds
    s_add_u32 m0, m0, 4096
    s_add_u32 s28, s28, 4096
    s_add_u32 s31, s31, 1
    s_max_i32 s32, s31, 1
    v_mov_b32 v23, s32
    s_waitcnt vmcnt({BWIN})
    ds_write_b32 v22, v23
    s_sub_u32 s30, s30, 1
    s_cmp_lg_u32 s30, 0
    s_cbranch_scc1 {l}
    v_mov_b32 v23, 32
    s_waitcnt vmcnt(0)
    ds_write_b32 v22, v23
    """)
    lns = k.new("nosl")
    k(f"""
    buffer_load_dword v14, v5, s[16:19], s42 offen
    buffer_load_dword v15, v11, s[36:39], s40 offen
    buffer_load_dword v16, v5, s[48:51], s47 offen
    s_add_u32 m0, s35, {C_X}
    s_mov_b32 s45, {8*3584}
    buffer_load_dwordx4 v7, s[52:55], 0 offen lds
    s_add_u32 m0, s35, {C_X + 1024}
    s_nop 0
    buffer_load_dwordx4 v8, s[52:55], 0 offen lds
    s_cmp_ge_u32 s2, 224
    s_cbranch_scc1 {lns}
    s_add_u32 m0, s35, {B_SLAB}
    s_nop 0
    buffer_load_dwordx4 v18, s[36:39], 0 offen lds
    s_add_u32 m0, s35, {B_SLAB + 1024}
    s_nop 0
    buffer_load_dwordx4 v18, s[36:39], s45 offen lds
    s_waitcnt vmcnt(0)
    ds_read_b64_tr_b16 v[28:29], v19
    ds_read_b64_tr_b16 v[30:31], v19 offset:1024
    ds_read_b64_tr_b16 v[32:33], v21
    ds_read_b64_tr_b16 v[34:35], v21 offset:1024
    s_waitcnt lgkmcnt(0)
    """)
    k.mfma(36, 24, 28, "0")
    k.mfma(52, 24, 32, "0")
    k(f"""
    s_nop 15
    s_mov_b64 exec, 0xffffffff
    buffer_store_dword v36, v20, s[12:15], s44 offen {HO}
    buffer_store_dword v52, v20, s[12:15], s44 offen offset:128 {HO}
    s_mov_b64 exec, -1
    """)
    k.label(lns)
    NF = 2*E_NR
    for j in range(NF):
        k(f"buffer_load_dwordx4 {vr(RW+4*j,4)}, v{10 if j % 2 == 0 else 17}, s[48:51], s46 offen")
        if j % 2 == 1: k("s_add_u32 s46, s46, 65536")
    k("s_waitcnt vmcnt(0)")
    def bounce():
        for j in range(0, NF, 2):
            k(f"""
            ds_write_b128 v12, {vr(RW+4*j,4)}
            ds_write_b128 v12, {vr(RW+4*j+4,4)} offset:1024
            ds_read_b64_tr_b16 {vr(RW+4*j,2)}, v13
            ds_read_b64_tr_b16 {vr(RW+4*j+2,2)}, v13 offset:512
            ds_read_b64_tr_b16 {vr(RW+4*j+4,2)}, v13 offset:1024
            ds_read_b64_tr_b16 {vr(RW+4*j+6,2)}, v13 offset:1536
            s_waitcnt lgkmcnt(6)
            """)
        k("s_waitcnt lgkmcnt(0)")
    if E("BOUNCE", 1) == 1:
        k("s_setprio 0"); bounce()
    ops.ops = []
    k.mark(3)
    k.bar()
    k.mark(4)
    k("s_setprio 0")
    def issueW64(wsrd, b):
        for e in range(2):
            k(f"s_add_u32 m0, s35, {b + e*1024}\ns_add_u32 s32, s40, {e*8192}")
            k(f"buffer_load_dwordx4 v4, s[{wsrd}:{wsrd+3}], s32 offen {NT_WO if wsrd == 16 else str()} lds")
        k("s_add_u32 s40, s40, 65536")
    def issueA64(b, KS):
        k(f"s_add_u32 m0, s33, {b}\ns_add_u32 s32, s41, {KS*1024}")
        k(f"buffer_load_dwordx4 v{L16}, s[12:15], s41 offen {HOL} {NT_OH if KS == 32 else str()} lds")
        k(f"s_add_u32 m0, s33, {b + 4096}\ns_add_u32 s41, s41, 4096")
        k(f"buffer_load_dwordx4 v{L16}, s[12:15], s32 offen {HOL} {NT_OH if KS == 32 else str()} lds")
    def setup64(KS, ACT):
        k(f"""
        s_mov_b32 s40, 0
        s_mul_i32 s41, s{MT64}, {2*KS*1024}
        s_add_u32 s41, s41, s33
        s_add_u32 s41, s41, {ACT}
        """)
    setup64(32, WS_OF)
    if E("PRESLEEP", 0): k(f"s_sleep {E('PRESLEEP', 0)}")
    for s in range(8):
        issueW64(16, C_W + s*8192); ops.add(("W", s), 2)
        if E("C_PREWIN", 0) and s < 7: k(f"s_waitcnt vmcnt({E('C_PREWIN', 0)})")
    if E("BOUNCE", 1) == 0: bounce()
    k.bar()
    k("s_setprio 3")
    cnt['B'] = k.bars
    k.mark(5)
    def iAC(s):
        issueA64(C_A + s*8192, 32); ops.add(("A", s), 2)
    SL, LC, LT = 24, 56, 40
    def issue_cols():
        k.srd(16, PB1, 3584)
        k(f"""
        s_min_u32 s44, s{NT14}, 13
        s_lshl_b32 s44, s44, 2
        s_add_u32 s44, s44, s3           ; nt32
        s_lshl_b32 s45, s44, 7
        s_add_u32 s45, s45, {WS_C1}
        s_lshl_b32 s44, s44, 6
        v_lshrrev_b32 v12, 3, v0
        v_mul_u32_u24 v12, {1792*4}, v12
        v_and_b32 v13, 7, v0
        v_lshl_add_u32 v12, v13, 4, v12
        v_lshlrev_b32 v14, 1, v{MM}
        buffer_load_ushort v10, v14, s[16:19], s44 offen
        """)
        for i in range(4):
            k(f"buffer_load_dwordx4 {vr(LC+4*i,4)}, v12, s[12:15], s45 offen {HO}\ns_add_u32 s45, s45, {8*1792*4}")
        ops.add(("CO", 0), 5)
    ring_loader_main(k, ops, 8, 8, 8, E("C_LA", 6), iAC, None, 0, 8, after_bar={3: issue_cols})
    k.bar()
    ops.ops = []
    lE = k.new("ldE")
    k(f"""
    s_lshl_b32 s46, s21, 2
    s_add_u32 s46, s46, s3
    s_add_u32 s46, s46, {E("PFB", 96)}
    s_lshl_b32 s46, s46, 13
    """)
    lE0 = k.new("ldE0")
    k(f"s_cmp_ge_u32 s2, 224\ns_cbranch_scc1 {lE0}")
    b0 = k.bars
    k(f"""
    s_mov_b32 s40, 0
    s_lshl_b32 s41, s{MT128}, 2
    s_add_u32 s41, s41, s3
    s_lshl_b32 s43, s41, 12
    s_add_u32 s43, s43, {WS_ST}
    s_lshl_b32 s41, s41, 15
    s_add_u32 s41, s41, {WS_HF}
    s_lshl_b32 s42, s3, 12           ; w*4096
    """)
    def issueW_D(s):
        b = D_W + (s % D_DW) * 16384
        for i in range(4):
            pn, e = i >> 1, i & 1
            k(f"s_add_u32 m0, s35, {b + pn*8192 + e*1024}\ns_add_u32 s32, s40, {e*8*3584 + pn*128}")
            k(f"buffer_load_dwordx4 v9, s[36:39], s32 offen {NT_W1} lds")
        k(f"s_add_u32 s40, s40, {64*3584}")
        ops.add(("W", s), 4)
    def issueA_D(s):
        k(f"s_add_u32 m0, s42, {D_A + (s % D_DA) * 16384}\ns_nop 0")
        for i in range(4):
            k(f"buffer_load_dwordx4 v{L16}, s[12:15], s41 offen offset:{i*1024} {HOL} {NT_OH} lds")
        k("s_add_u32 s41, s41, 4096")
        ops.add(("A", s), 4)
    def issue_stats():
        k("v_lshlrev_b32 v12, 3, v0")
        for i in range(8):
            k(f"buffer_load_dwordx2 {vr(SL+2*i,2)}, v12, s[12:15], s43 offen offset:{i*512} {HO}")
        ops.add(("ST", 0), 8)
    def prep_stats():
        ops.wait({("ST", 0)})
        b, MB, RS = SL, LT+12, LT+4
        for i in range(1, 8):
            k(f"v_add_f32 v{b}, v{b}, v{b+2*i}\nv_add_f32 v{b+1}, v{b+1}, v{b+2*i+1}")
        xhalf_sum(k, b, LT)
        xhalf_sum(k, b+1, LT)
        k(f"""
        v_mul_f32 v{b}, {f32(-1.0/512)}, v{b}
        v_mul_f32 v{b+1}, {f32(1.0/512)}, v{b+1}
        v_fma_f32 v{b+1}, -v{b}, v{b}, v{b+1}
        v_max_f32 v{b+1}, 0, v{b+1}
        v_add_f32 v{b+1}, {f32(1e-5)}, v{b+1}
        v_rsq_f32 v{RS}, v{b+1}
        s_nop 0
        v_mul_f32 v{b+1}, v{b+1}, v{RS}
        v_mul_f32 v{MB+3}, {f32(LOG2E)}, v{RS}
        """)
        split_hilo(k, b, LT, LT+1, LT+2)
        k(f"v_cvt_pk_bf16_f32 v{MB}, v{LT}, v{LT+1}")
        split_hilo(k, b+1, LT+3, LT+1, LT+2)
        k(f"v_cvt_pk_bf16_f32 v{MB+1}, v{LT}, v{LT+3}\nv_cvt_pk_bf16_f32 v{MB+2}, v{LT+1}, 0")
        k(f"ds_write_b128 v11, {vr(MB,4)} offset:4096\ns_waitcnt lgkmcnt(0)")
    def retouch():
        if E("W2MODE", 1) == 1:
            k("buffer_load_dword v16, v5, s[48:51], s47 offen"); ops.add(("PF", 0), 1)
    def prep_cols():
        OA = LT+8
        for j in range(4):
            k(f"v_add_f32 v{LC+j}, v{LC+j}, v{LC+4+j}\nv_add_f32 v{LC+8+j}, v{LC+8+j}, v{LC+12+j}")
        for j in range(4): k(f"v_add_f32 v{LC+j}, v{LC+j}, v{LC+8+j}")
        k(f"""
        v_add_u32 v11, s33, v{L16}
        v_add_u32 v11, {D_ST}, v11
        ds_write_b128 v11, {vr(LC,4)}
        v_lshlrev_b32 v12, 9, v{HH}
        v_lshl_add_u32 v12, v{MM}, 2, v12
        v_add_u32 v12, s33, v12
        v_add_u32 v12, {D_ST}, v12
        v_cmp_gt_u32 vcc, 32, v0
        s_waitcnt lgkmcnt(0)
        ds_read2_b32 {vr(LC,2)}, v12 offset0:0 offset1:32
        ds_read2_b32 {vr(LC+2,2)}, v12 offset0:64 offset1:96
        v_cndmask_b32 v{LC+4}, 0, v10, vcc
        s_waitcnt lgkmcnt(0)
        v_add_f32 v{LC}, v{LC}, v{LC+1}
        v_add_f32 v{LC+2}, v{LC+2}, v{LC+3}
        v_add_f32 v{LC}, v{LC}, v{LC+2}
        """)
        split_hilo(k, LC, LT, LT+1, LT+2)
        k(f"""
        v_cvt_pk_bf16_f32 v{OA}, v{LT}, v{LT}
        v_cvt_pk_bf16_f32 v{OA+1}, v{LT+1}, 0
        v_lshl_or_b32 v{OA+1}, v{LC+4}, 16, v{OA+1}
        v_mov_b32 v{OA+2}, v{LC+4}
        v_mov_b32 v{OA+3}, 0
        ds_write_b128 v11, {vr(OA,4)}
        """)
    DP1 = E("D_PRE1", 5)
    for s in range(DP1):
        issueW_D(s)
        if E("D_PREWIN", 4): k(f"s_waitcnt vmcnt({E('D_PREWIN', 4)})")
    k.bar()
    if DP1 < D_DW and E("PRESLEEP", 0): k(f"s_sleep {E('PRESLEEP', 0)}")
    for s in range(DP1, D_DW):
        issueW_D(s)
        if E("D_PREWIN", 4) and s < D_DW-1: k(f"s_waitcnt vmcnt({E('D_PREWIN', 4)})")
    prep_cols()
    k.bar()
    k.mark(6)
    if E("DMARK", 0): k.mark(0)
    ring_loader_main(k, ops, 8, D_DA, D_DW, E("D_LA", 3), issueA_D, issueW_D, 0, D_DW,
                     after_bar={E("D_STAT0", 4): issue_stats, E("D_STAT1", 6): prep_stats, E("W2RT", 5): retouch}, bmark=E("DMARK", 0))
    k.bar()
    if E("DMARK", 0):
        k.mark(9); k.mark = lambda i: None
    cnt['Dextra'] = k.bars - b0
    ops.ops = []
    k(f"s_branch {lE}")
    k.label(lE0)
    k.label(lE)
    k.mark(7)
    k(f"s_mov_b32 s40, {E_NR*65536}")
    EP1 = E("E_PRE1", 8)
    for s in range(EP1):
        issueW64(48, E_W + s*8192)
    k.bar()
    for s in range(EP1, E_DW):
        issueW64(48, E_W + s*8192)
        if E("E_PREWIN", 4): k(f"s_waitcnt vmcnt({E('E_PREWIN', 4)})")
    lrt = k.new("rt")
    k(f"s_cmp_lt_u32 s2, 224\ns_cbranch_scc1 {lrt}\nbuffer_load_dword v16, v5, s[48:51], s47 offen")
    k.label(lrt)
    RA, RB = 24, (56, 8)
    k(f"""
    s_waitcnt vmcnt(0)
    s_lshr_b32 s29, s3, 1
    s_lshl_b32 s30, s29, 11
    s_add_u32 s30, s30, {E_A}
    v_add_u32 v6, s30, v{L16}
    s_lshl_b32 s29, s29, 14
    s_and_b32 s30, s3, 1
    s_lshl_b32 s30, s30, 13
    s_add_u32 s29, s29, s30
    s_add_u32 s29, s29, {E_PB}
    v_add_u32 v7, s29, v{L16}
    s_setprio 0
    """)
    k.bar()
    k.mark(8)
    def r_reads(s):
        b = RB[s & 1]
        return [f"ds_read_b128 {vr(b+8*kk+4*ms,4)}, v6 offset:{(s % E_DA)*16384 + 8192 + ms*4096 + kk*1024}" for kk in range(2) for ms in range(2)]
    def r_work(s):
        b = RB[s & 1]
        return [k.mfma_s(RA+16*ms, RW+4*(2*s+kk), b+8*kk+4*ms, "0" if (s == 0 and kk == 0) else None) for kk in range(2) for ms in range(2)]
    for s in range(E_NR):
        if s > 0: k("s_waitcnt lgkmcnt(0)")
        k.bar()
        if s == 0:
            for x in r_reads(0): k(x)
        else:
            w = r_work(s-1)
            for x in interleave(w[:2], r_reads(s)) + w[2:]: k(x)
    k("s_waitcnt lgkmcnt(0)")
    for x in r_work(E_NR-1): k(x)
    k.bar()
    k("s_nop 10")
    wr = [f"ds_write_b128 v7, {vr(RA+16*ms+4*g,4)} offset:{ms*4096 + g*1024}" for ms in range(2) for g in range(4)]
    for grp in ((wr[:3], wr[3:6], wr[6:] + ["s_waitcnt lgkmcnt(0)"]) if ETAIL else (wr + ["s_waitcnt lgkmcnt(0)"],)):
        for x in grp: k(x)
        k.bar()
    cnt['total'] = k.bars
    k.mark(9)
    stamp_out(k)
    k("s_endpgm")
    return cnt

def compute(k):
    cnt = {}
    CW = 28
    k(f"s_sub_u32 s{CW}, s3, 4")
    X, T = 64, 128
    ACC = 16
    k(f"""
    s_lshl_b32 s29, s{MTA}, 6
    s_lshl_b32 s30, s{CW}, 3
    s_add_u32 s29, s29, s30          ; row0
    v_lshrrev_b32 v6, 3, v0
    v_add_u32 v7, s29, v6
    v_lshlrev_b32 v7, 10, v7
    v_and_b32 v8, 7, v0
    v_lshl_add_u32 v7, v8, 4, v7
    s_add_u32 s33, s{MTA}, s{NTA}
    s_lshl_b32 s33, s33, 7
    s_and_b32 s33, s33, 1023
    s_waitcnt lgkmcnt(0)
    """)
    k.srd(16, PX, 2048*1024)
    for i in range(8):
        k(f"buffer_load_dwordx4 {vr(X+4*i,4)}, v7, s[16:19], s33 offen {NT_A}")
        if i < 7: k("s_add_u32 s33, s33, 128\ns_and_b32 s33, s33, 1023")
        if i == 0 and E("XMARK", 0): k.mark(2)
    k.bar()
    if E("XMARK", 0): k.mark(3)
    k.srd(12, PWS, WS_SIZE)
    k(f"""
    s_lshr_b32 s29, s{CW}, 2
    s_lshl_b32 s29, s29, 15
    s_and_b32 s30, s{CW}, 3
    s_lshl_b32 s30, s30, 7
    s_add_u32 s29, s29, s30
    v_xor_b32 v9, v6, v8
    v_lshlrev_b32 v9, 4, v9
    v_lshl_add_u32 v9, v8, 9, v9
    v_add_u32 v9, s29, v9
    s_lshl_b32 s30, s{CW}, 5
    s_add_u32 s30, s30, {A_RS}
    v_lshlrev_b32 v10, 2, v6
    v_add_u32 v10, s30, v10
    v_mov_b32 v{T}, 0x3f803f80
    v_mov_b32 v{T+1}, 0x00003f80
    v_mov_b32 v{T+2}, 0x3f800000
    s_and_b32 s29, s{CW}, 1          ; ms
    s_bfe_u32 s30, s{CW}, 0x10001    ; nh
    s_lshl_b32 s31, s30, 6
    """)
    CX, AW, CWA, VA = 4, 11, 12, 15
    w_tr_addr(k, AW, 13, 14, 31, 3072, A_WB)
    k(f"""
    s_lshl_b32 s32, s29, 15
    v_xor_b32 v13, v{MM}, v{HH}
    v_lshlrev_b32 v13, 4, v13
    v_lshlrev_b32 v14, 9, v{HH}
    v_add_u32 v14, s32, v14
    """)
    for ks in range(4):
        k(f"v_xor_b32 v{CX+ks}, {ks*32}, v13\nv_add_u32 v{CX+ks}, v{CX+ks}, v14")
    k(f"""
    v_mov_b32 v{CWA}, v{AW}
    s_mov_b32 s35, 0
    s_lshl_b32 s36, s29, 7
    s_add_u32 s36, s36, {A_RS}
    v_lshlrev_b32 v13, 2, v{MM}
    v_add_u32 v13, s36, v13
    v_lshlrev_b32 v14, 4, v{HH}
    v_add_u32 v14, s36, v14
    s_lshl_b32 s32, s{NTA}, 2
    s_lshl_b32 s33, s30, 1
    s_add_u32 s32, s32, s33            ; head0
    s_lshl_b32 s33, s{MTA}, 1
    s_add_u32 s33, s33, s29
    s_lshl_b32 s39, s32, 16
    s_lshl_b32 s36, s33, 10
    s_add_u32 s39, s39, s36
    s_add_u32 s39, s39, {WS_QF}
    s_add_u32 s36, s39, 65536
    s_lshl_b32 s37, s32, 17
    s_lshl_b32 s38, s33, 11
    s_add_u32 s37, s37, s38
    s_add_u32 s37, s37, {WS_KV}
    s_add_u32 s38, s37, 131072
    v_and_b32 v{VA}, 15, v0
    v_lshlrev_b32 v{VA}, 4, v{VA}
    v_lshl_add_u32 v{VA}, v{HH}, 8, v{VA}
    v_bfe_u32 v{T+6}, v0, 4, 1
    v_lshl_add_u32 v{VA}, v{T+6}, 17, v{VA}
    """)
    for i in range(48): k(f"v_mov_b32 v{ACC+i}, 0")
    SA, SB, QA, QB_, TM = T+4, T+5, T+6, T+7, T+8
    for r_ in (SA, SB, QA, QB_): k(f"v_mov_b32 v{r_}, 0")
    for i in range(8):
        k(f"s_waitcnt vmcnt({7-i})")
        for j in range(4):
            k(f"v_dot2_f32_bf16 v{SA+(j&1)}, v{X+4*i+j}, v{T}, v{SA+(j&1)}")
            k(f"v_dot2_f32_bf16 v{QA+(j&1)}, v{X+4*i+j}, v{X+4*i+j}, v{QA+(j&1)}")
    k.mark(0)
    k(f"s_nop 1\nv_add_f32 v{SA}, v{SA}, v{SB}\nv_add_f32 v{QA}, v{QA}, v{QB_}")
    for ctl in ("quad_perm:[1,0,3,2]", "quad_perm:[2,3,0,1]", "row_half_mirror"):
        k(f"s_nop 0\nv_add_f32_dpp v{SA}, v{SA}, v{SA} {ctl} row_mask:0xf bank_mask:0xf")
        k(f"v_add_f32_dpp v{QA}, v{QA}, v{QA} {ctl} row_mask:0xf bank_mask:0xf")
    NM = SA
    k(f"v_mul_f32 v{NM}, {f32(-1.0/512)}, v{SA}\nv_mul_f32 v{QA}, {f32(1.0/512)}, v{QA}")
    fin = [f"v_fma_f32 v{QA}, -v{NM}, v{NM}, v{QA}", f"v_max_f32 v{QA}, 0, v{QA}", f"v_add_f32 v{QA}, {f32(1e-5)}, v{QA}", f"v_rsq_f32 v{QA}, v{QA}"]
    for i in range(9):
        t = TM + 8*(i & 1)
        if i < 8:
            for j in range(4):
                k(f"v_dot2_f32_bf16 v{t+2*j}, v{X+4*i+j}, v{T+1}, v{NM}")
                k(f"v_dot2_f32_bf16 v{t+2*j+1}, v{X+4*i+j}, v{T+2}, v{NM}")
        else:
            for x_ in fin: k(x_)
        if i > 0:
            tp = TM + 8*((i-1) & 1)
            for j in range(4):
                k(f"v_cvt_pk_bf16_f32 v{X+4*(i-1)+j}, v{tp+2*j}, v{tp+2*j+1}")
            k(f"ds_write_b128 v9, {vr(X+4*(i-1),4)} offset:{(i-1)*4096}")
    k(f"ds_write_b32 v10, v{QA}")
    lhiA, lendA = k.new("hiA"), k.new("endA")
    k(f"s_waitcnt lgkmcnt(0)")
    k.mark(1)
    k(f"s_cmp_ge_u32 s{CW}, 4\ns_cbranch_scc1 {lhiA}")
    b0 = k.bars
    RSTD, RF, BUF = T+3, T+8, X
    def pre_first():
        k(f"ds_read_b32 v{RSTD}, v13")
        for g in range(4): k(f"ds_read_b128 {vr(RF+4*g,4)}, v14 offset:{g*32}")
        k("s_waitcnt lgkmcnt(1)")
    def reads(ks, st):
        b = BUF + 16*ks + 32*st
        r = [f"ds_read_b128 {vr(b,4)}, v{CX+2*st+ks} offset:{(2*st+ks)*1024}"]
        for pn in range(3):
            for t in range(2):
                r.append(f"ds_read_b64_tr_b16 {vr(b+4+4*pn+2*t,2)}, v{CWA} offset:{st*A_SUB + ks*6144 + pn*1024 + t*512}")
        return r
    def work(ks, st):
        b = BUF + 16*ks + 32*st
        return [k.mfma_s(ACC+16, b+8, b), k.mfma_s(ACC+32, b, b+12), k.mfma_s(ACC, b+4, b)]
    def addr_update():
        ring_step(k, 35, 2*A_SUB, A_DP*2*A_SUB)
        for i in range(4): k(f"v_add_u32 v{CX+i}, 4096, v{CX+i}")
        k(f"v_add_u32 v{CWA}, s35, v{AW}")
    compute_loop(k, 16, 2, reads, work, addr_update, 34, pair=True, pre_first=pre_first)
    if not E("XMARK", 0): k.mark(2)
    k(f"v_mul_f32 v{T+2}, {f32(0.25*LOG2E)}, v{RSTD}\ns_nop 8")
    P = X
    for (a, sc, st) in ((ACC+16, None, [(f"v{L16}", "s37", ""), (f"v{L16}", "s38", "")]),
                        (ACC+32, "rf", [(f"v{VA}", "s37", "offset:1024"), (f"v{VA}", "s37", "offset:1536")]),
                        (ACC, "q", [(f"v{L16}", "s39", ""), (f"v{L16}", "s36", "")])):
        for j in range(2):
            for i in range(8*j, 8*j+8):
                mm_ = f"v{RSTD}" if sc is None else (f"v{RF+i}" if sc == "rf" else f"v{T+2}")
                k(f"v_mul_f32 v{a+i}, v{a+i}, {mm_}")
            for i in range(4*j, 4*j+4):
                k(f"v_cvt_pk_bf16_f32 v{P+i}, v{a+2*i}, v{a+2*i+1}")
            k(f"buffer_store_dwordx4 {vr(P+4*j,4)}, {st[j][0]}, s[12:15], {st[j][1]} offen {st[j][2]} {HO}")
        P += 8
    nA = k.bars - b0
    k(f"s_branch {lendA}")
    k.label(lhiA)
    k.bars = b0
    lnn, ltp, lnt = k.new("nn"), k.new("tp"), k.new("nt")
    k.srd(16, PDBG, 256)
    k(f"""
    v_mov_b32 v10, 0
    s_cmp_lg_u32 s{CW}, 7
    s_cbranch_scc1 {lnt}
    s_cmp_lg_u32 s2, 0
    s_cbranch_scc1 {lnn}
    s_memrealtime s[84:85]
    s_waitcnt lgkmcnt(0)
    s_or_b32 s84, s84, 1
    v_mov_b32 v8, s84
    v_mov_b32 v9, s85
    s_mov_b64 exec, 1
    buffer_store_dwordx2 v[8:9], v10, s[16:19], 0 offen {HO}
    s_mov_b64 exec, -1
    """)
    k.label(lnn)
    k.idle_bars(nA)
    k("s_mov_b32 s45, 30000")
    k.label(ltp)
    k(f"""
    buffer_load_dwordx2 v[8:9], v10, s[16:19], 0 offen {HO}
    s_waitcnt vmcnt(0)
    v_readfirstlane_b32 s84, v8
    v_readfirstlane_b32 s85, v9
    s_nop 3
    s_cmp_lg_u32 s84, 0
    s_cbranch_scc1 {lendA}
    s_sub_u32 s45, s45, 1
    s_cmp_lg_u32 s45, 0
    s_cbranch_scc1 {ltp}
    s_branch {lendA}
    """)
    k.label(lnt)
    k.bars = b0
    k.idle_bars(nA)
    k.label(lendA)
    def end_phase(out_arr, out_line, in_arr, in_line, n_in, between=None):
        out_line()
        k(f"""
        s_lshl_b32 s46, s46, 7
        s_add_u32 s46, s46, {WS_FL + out_arr*32768}
        v_mov_b32 v4, s84
        v_mov_b32 v5, s85
        v_mov_b32 v6, 0
        s_cmp_lg_u32 s{CW}, 7
        s_waitcnt vmcnt(0)
        """)
        k.bar()
        ls = k.new("ns")
        k(f"""
        s_cbranch_scc1 {ls}
        s_mov_b64 exec, 1
        buffer_store_dwordx2 v[4:5], v6, s[12:15], s46 offen {HO}
        s_mov_b64 exec, -1
        """)
        k.label(ls)
        if between: between()
        ls = k.new("np")
        k(f"s_cmp_lg_u32 s{CW}, 7\ns_cbranch_scc1 {ls}")
        in_line()
        signal_and_wait(k, None, 46, in_arr, 47, n_in)
        k.label(ls)
        k.bar()
    AK, AV, Q, KF, VF, P, C, O, S0, M, T = 10, 11, 12, 16, 24, 40, 48, 64, 80, 112, 113
    AV0, AVS, VSY, VFM, VF4 = 118, 119, 120, 121, 124
    NIT = 16
    SW = E("SW", 12)
    def zero_state():
        for i in range(16): k(f"v_mov_b32 v{O+i}, 0")
        for i in range(4): k(f"v_mov_b32 v{P+4+i}, 0\nv_mov_b32 v{VF+12+i}, 0")
    def b_setup():
        lp = k.new("pr")
        k(f"""
        s_lshl_b32 s29, s{QB}, 3
        s_add_u32 s29, s29, s{CW}
        s_lshl_b32 s30, s{HEAD}, 16
        s_lshl_b32 s31, s29, 10
        s_add_u32 s30, s30, s31
        s_add_u32 s30, s30, {WS_QF}
        v_and_b32 v{T+1}, 11, v0
        v_cmp_eq_u32 vcc, 0, v{T+1}
        v_mov_b32 v{T+2}, 0x3f803f80
        s_lshl_b32 s31, s{CW}, 10
        s_add_u32 s31, s31, {ONESB}
        v_cndmask_b32 v{S0}, 0, v{T+2}, vcc
        v_add_u32 v{T+1}, s31, v{L16}
        v_mov_b32 v{S0+1}, v{S0}
        v_mov_b32 v{S0+2}, v{S0}
        v_mov_b32 v{S0+3}, v{S0}
        ds_write_b128 v{T+1}, {vr(S0,4)}
        ds_write_b128 v{T+1}, {vr(S0,4)} offset:2048
        v_and_b32 v{AV0}, 15, v0
        v_lshlrev_b32 v{AV0}, 4, v{AV0}
        v_lshl_add_u32 v{AV0}, v{HH}, 8, v{AV0}
        v_and_b32 v{T+1}, 16, v0
        v_cmp_eq_u32 vcc, 0, v{T+1}
        v_mov_b32 v{T+1}, {ONESB}
        v_mov_b32 v{T+2}, 1024
        v_mov_b32 v{T+3}, 8192
        v_cndmask_b32 v{T+1}, v{T+1}, v{T+2}, vcc
        v_cndmask_b32 v{AVS}, 0, v{T+3}, vcc
        v_add_u32 v{AV0}, v{AV0}, v{T+1}
        v_mov_b32 v{VSY}, {B_SYNC}
        s_mov_b32 s40, 0x400000
        s_mov_b32 s36, 0
        s_lshl_b32 s29, s29, 15
        s_lshl_b32 s31, s{HEAD}, 10
        s_add_u32 s29, s29, s31
        s_add_u32 s29, s29, {WS_OF}
        s_setprio 1
        s_cmp_lt_u32 s{CW}, 4
        s_cbranch_scc1 {lp}
        s_setprio 2
        """)
        k.label(lp)
        zero_state()
        k("s_waitcnt lgkmcnt(0)")
    if not E("XMARK", 0): k.mark(3)
    end_phase(0, lambda: k(f"s_lshl_b32 s46, s{NTA}, 5\ns_add_u32 s46, s46, s{MTA}"),
              0, lambda: k(f"s_lshr_b32 s47, s{HEAD}, 2\ns_lshl_b32 s47, s47, 5"), 32, between=b_setup)
    cnt['A'] = k.bars
    k.mark(4)
    k(f"buffer_load_dwordx4 {vr(Q,4)}, v{L16}, s[12:15], s30 offen {HO}")
    def spin(need):
        l = k.new("sp")
        k.label(l)
        k(f"""
        ds_read_b128 {vr(VF4,4)}, v{VSY}
        s_sub_u32 s40, s40, 1
        s_cbranch_scc1 Lexit
        s_waitcnt lgkmcnt(0)
        v_min3_u32 v{VFM}, v{VF4}, v{VF4+1}, v{VF4+2}
        v_min_u32 v{VFM}, v{VFM}, v{VF4+3}
        v_cmp_gt_u32 vcc, {need}, v{VFM}
        s_cbranch_vccnz {l}
        """)
    k("s_waitcnt vmcnt(0)")
    spin(1)
    k(f"ds_read_b128 {vr(KF,4)}, v{L16}\ns_waitcnt lgkmcnt(0)")
    k.mfma(S0, KF, Q, "0")
    k("s_nop 15")
    def max16(src, dst, first):
        if first:
            k(f"v_max3_f32 v{dst}, v{src}, v{src+1}, v{src+2}\nv_max_f32 v{dst}, v{dst}, v{src+3}")
            rng = range(4, 16, 2)
        else: rng = range(0, 16, 2)
        for i in rng: k(f"v_max3_f32 v{dst}, v{dst}, v{src+i}, v{src+i+1}")
    max16(S0, M, True)
    lhave, lnob, lloop, lswp, ldone, lmax, lfin = [k.new(x) for x in ("have","nobar","aloop","swp","adone","maxl","afin")]
    k.label(lhave)
    k(f"""
    v_mov_b32 v{T+1}, v{M}
    v_mov_b32 v{AK}, v{L16}
    v_mov_b32 v{AV}, v{AV0}
    v_permlane32_swap_b32 v{M}, v{T+1}
    ds_read_b128 {vr(KF,4)}, v{AK}
    ds_read_b128 {vr(KF+4,4)}, v{AK} offset:2048
    ds_read_b128 {vr(VF,4)}, v{AV}
    ds_read_b128 {vr(VF+4,4)}, v{AV} offset:512
    v_max_f32 v{M}, v{M}, v{T+1}
    """)
    for i in range(16): k(f"v_sub_f32 v{C+i}, 0, v{M}")
    k("s_waitcnt lgkmcnt(3)\ns_mov_b32 s37, 0")
    k.mfma(S0, KF, Q, C)
    lcp = k.new("cp")
    k("s_mov_b32 s42, 3")
    if E("CYC", 0): k.mark(0)
    k.label(lcp)
    spin("s42")
    k(f"""
    v_readfirstlane_b32 s38, v{VFM}
    s_mov_b32 s41, 0
    s_add_u32 s43, s37, 1
    s_max_u32 s43, s43, {SW}
    s_sub_u32 s39, s38, 1
    s_lshr_b32 s39, s39, 1
    s_min_u32 s39, s39, s43
    s_lshl_b32 s42, s39, 1
    s_add_u32 s42, s42, 3
    s_min_u32 s42, s42, 32
    s_cmp_ge_u32 s38, 32
    s_cselect_b32 s39, s43, s39
    s_cselect_b32 s41, 1, 0
    """)
    k.label(lloop)
    for t in range(4):
        sb = S0 + 16*(t & 1); sn = S0 + 16*((t+1) & 1)
        kn = KF + 4*((t+1) & 1); kf = KF + 4*(t & 1)
        vc = VF + 8*(t & 1); vn = VF + 8*((t+1) & 1)
        ex = lambda i: k(f"v_exp_f32 v{sb+i}, v{sb+i}")
        cv = lambda i: k(f"v_cvt_pk_bf16_f32 v{P+i}, v{sb+2*i}, v{sb+2*i+1}")
        k("s_waitcnt lgkmcnt(0)")
        k.mfma(sn, kn, Q, C)
        ex(0); ex(1); ex(2); ex(3)
        k.mfma(O, vn+4, P+4)
        k(f"ds_read_b128 {vr(kf,4)}, v{AK} offset:{(t+2)*2048}")
        k(f"ds_read_b128 {vr(vn,4)}, v{AV} offset:{(t+1)*2048}")
        k(f"ds_read_b128 {vr(vn+4,4)}, v{AV} offset:{(t+1)*2048+512}")
        ex(4); ex(5); ex(6); ex(7)
        for i in range(4): cv(i)
        ex(8); ex(9)
        k.mfma(O, vc, P)
        if t == 3: k("s_add_u32 s37, s37, 1\ns_cmp_lt_u32 s37, s39")
        for i in range(10, 16): ex(i)
        if t == 3:
            k(f"v_add_u32 v{AK}, 8192, v{AK}\nv_add_u32 v{AV}, v{AVS}, v{AV}")
        for i in range(4, 8): cv(i)
    k(f"""
    s_cbranch_scc1 {lloop}
    s_cmp_eq_u32 s37, {NIT}
    s_cbranch_scc1 {ldone}
    s_cmp_eq_u32 s41, 0
    s_cbranch_scc1 {lcp}
    """)
    k.label(lswp)
    if E("CYC", 0): k.mark(2)
    k(f"""
    s_mov_b32 s39, {NIT}
    s_cmp_lt_u32 s{CW}, 4
    s_cbranch_scc1 {lloop}
    s_setprio 0
    s_branch {lloop}
    """)
    k.label(ldone)
    k.mfma(O, VF+12, P+4)
    if E("CYC", 0): k.mark(3)
    k(f"""
    s_waitcnt lgkmcnt(0)
    s_mov_b32 s38, {f32(2.0**60)}
    s_nop 13
    v_cmp_nlt_f32 vcc, v{O+8}, s38
    v_rcp_f32 v{T+3}, v{O+8}
    s_cmp_lg_u32 s36, 0
    s_cbranch_scc1 {lfin}
    s_cbranch_vccz {lfin}
    s_mov_b32 s36, 1
    s_mov_b32 s37, 0
    v_mov_b32 v{AK}, v{L16}
    v_mov_b32 v{M}, 0xff800000
    """)
    zero_state()
    k.label(lmax)
    k(f"ds_read_b128 {vr(KF,4)}, v{AK}\ns_waitcnt lgkmcnt(0)")
    k.mfma(S0, KF, Q, "0")
    k("s_nop 15")
    max16(S0, M, False)
    k(f"""
    v_add_u32 v{AK}, 2048, v{AK}
    s_add_u32 s37, s37, 1
    s_cmp_lt_u32 s37, 64
    s_cbranch_scc1 {lmax}
    s_branch {lhave}
    """)
    k.label(lfin)
    for i in range(8): k(f"v_mul_f32 v{O+i}, v{O+i}, v{T+3}")
    for i in range(4): k(f"v_cvt_pk_bf16_f32 v{P+i}, v{O+2*i}, v{O+2*i+1}")
    k(f"buffer_store_dwordx4 {vr(P,4)}, v{L16}, s[12:15], s29 offen {HO}")
    k("s_setprio 0")
    k.mark(5)
    AA, AW, CA, CWA = 10, 11, 12, 13
    ACC, BUF, T = 16, 32, 96
    def c_setup():
        k(f"""
        s_and_b32 s29, s{CW}, 1          ; ms
        s_bfe_u32 s30, s{CW}, 0x10001    ; nh
        s_lshl_b32 s31, s30, 6
        s_lshl_b32 s32, s29, 12
        v_add_u32 v{AA}, s32, v{L16}
        s_lshl_b32 s36, s{MT64}, 1
        s_add_u32 s36, s36, s29          ; mt32
        s_lshl_b32 s37, s{NT8}, 2
        s_lshl_b32 s38, s30, 1
        s_add_u32 s37, s37, s38          ; 2*nt32
        """)
        w_tr_addr(k, AW, 14, 15, 31, 512, 0)
    def c_between():
        c_setup()
        k(f"""
        v_add_u32 v{CA}, {C_A}, v{AA}
        v_mov_b32 v{CWA}, v{AW}
        v_lshlrev_b32 v14, 7, v{MM}
        v_add_u32 v14, s32, v14
        v_lshl_add_u32 v14, v{HH}, 3, v14
        v_add_u32 v14, {C_X}, v14
        v_bfe_u32 v15, v0, 1, 3
        v_lshlrev_b32 v15, 4, v15
        v_xor_b32 v15, s31, v15
        """)
        for g in range(4):
            k(f"v_xor_b32 v{T+16+g}, {g*16}, v15\nv_add_u32 v{T+16+g}, v{T+16+g}, v14")
    end_phase(1, lambda: k(f"s_lshl_b32 s46, s{QB}, 5\ns_add_u32 s46, s46, s{HEAD}"),
              1, lambda: k(f"s_lshr_b32 s47, s{MT64}, 2\ns_lshl_b32 s47, s47, 5"), -2, between=c_between)
    cnt['B'] = k.bars
    k.mark(6)
    def reads64(ks, st):
        b = BUF + 8*ks + 32*st
        return [f"ds_read_b128 {vr(b,4)}, v{CA} offset:{ks*1024}"] + \
               [f"ds_read_b64_tr_b16 {vr(b+4+2*t,2)}, v{CWA} offset:{ks*2048 + t*1024}" for t in range(2)]
    def work64(ks, st):
        b = BUF + 8*ks + 32*st
        return [k.mfma_s(ACC, b+4, b)]
    lhi, lend, lend2 = k.new("hiC"), k.new("endC"), k.new("endC2")
    k(f"s_cmp_ge_u32 s{CW}, 4\ns_cbranch_scc1 {lhi}")
    b0 = k.bars
    def c_first():
        for g in range(4): k(f"ds_read_b64 {vr(T+4+2*g,2)}, v{T+16+g}")
        k("s_waitcnt lgkmcnt(0)")
        for i in range(8):
            k(f"v_lshlrev_b32 v{ACC+2*i}, 16, v{T+4+i}\nv_and_b32 v{ACC+2*i+1}, 0xffff0000, v{T+4+i}")
    compute_loop(k, 8, 4, reads64, work64, lambda: k(f"v_add_u32 v{CA}, 8192, v{CA}\nv_add_u32 v{CWA}, 8192, v{CWA}"), 34, pre_first=c_first, mbar=True)
    k(f"""
    v_mov_b32 v{T+12}, 0x3f803f80
    v_mov_b32 v{T+14}, 0
    v_mov_b32 v{T+15}, 0
    s_lshl_b32 s38, s36, 15
    s_lshl_b32 s39, s37, 10
    s_add_u32 s38, s38, s39
    s_add_u32 s38, s38, {WS_HF}
    s_lshl_b32 s39, s36, 12
    s_lshl_b32 s40, s37, 7
    s_add_u32 s39, s39, s40
    s_add_u32 s39, s39, {WS_ST}
    v_lshlrev_b32 v{T+13}, 3, v{MM}
    s_nop 2
    """)
    for i in range(8): k(f"v_cvt_pk_bf16_f32 v{HSAVE+i}, v{ACC+2*i}, v{ACC+2*i+1}")
    k(f"buffer_store_dwordx4 {vr(HSAVE,4)}, v{L16}, s[12:15], s38 offen {HO}")
    k(f"buffer_store_dwordx4 {vr(HSAVE+4,4)}, v{L16}, s[12:15], s38 offen offset:1024 {HO}")
    for i in range(8):
        k(f"v_dot2_f32_bf16 v{T+14}, v{HSAVE+i}, v{T+12}, v{T+14}")
        k(f"v_dot2_f32_bf16 v{T+15}, v{HSAVE+i}, v{HSAVE+i}, v{T+15}")
    k("s_nop 2")
    xhalf_sum(k, T+14, T+16)
    xhalf_sum(k, T+15, T+16)
    k(f"s_mov_b64 exec, 0xffffffff\nbuffer_store_dwordx2 {vr(T+14,2)}, v{T+13}, s[12:15], s39 offen {HO}\ns_mov_b64 exec, -1")
    nC = k.bars - b0
    k(f"s_branch {lend}")
    k.label(lhi)
    k.bars = b0
    k.idle_bars(nC)
    k.label(lend)
    k.mark(7)
    f3_out = lambda: k(f"s_lshl_b32 s46, s{MT64}, 3\ns_add_u32 s46, s46, s{NT8}")
    f4_in = lambda: k(f"s_lshr_b32 s47, s{MT64}, 1\ns_lshl_b32 s47, s47, 4")
    def e_between():
        lh, lj = k.new("ebh"), k.new("ebj")
        k(f"s_cmp_ge_u32 s{CW}, 4\ns_cbranch_scc1 {lh}")
        c_setup()
        k(f"""
        v_add_u32 v{AA}, {E_A}, v{AA}
        s_mov_b32 s33, 0
        v_mov_b32 v{CA}, v{AA}
        v_mov_b32 v{CWA}, v{AW}
        s_mov_b32 s35, 0
        s_lshl_b32 s38, s{CW}, 12
        s_add_u32 s38, s38, {E_PB}
        v_add_u32 v14, s38, v{L16}
        s_lshl_b32 s38, s36, 15
        s_lshl_b32 s39, s37, 5
        s_add_u32 s38, s38, s39
        v_lshlrev_b32 v15, 10, v{MM}
        v_lshl_add_u32 v15, v{HH}, 4, v15
        """)
        k.srd(16, POUT, 2048*1024)
        for i in range(8):
            k(f"v_lshlrev_b32 v{16+2*i}, 16, v{HSAVE+i}\nv_and_b32 v{16+2*i+1}, 0xffff0000, v{HSAVE+i}")
        k(f"s_branch {lj}")
        k.label(lh)
        k(f"""
        s_sub_u32 s29, s{CW}, 4
        s_lshl_b32 s33, s29, 10
        s_lshl_b32 s35, s29, 11
        s_lshl_b32 s29, s29, 4
        s_lshl_b32 s30, s{NT8}, 7
        s_mov_b32 s40, {(E_NR+E_DW)*65536}
        s_mul_i32 s41, s{MT64}, {2*112*1024}
        s_add_u32 s41, s41, s33
        s_add_u32 s41, s41, {WS_AF}
        """)
        w_dma_voff(k, 14, 15, 16, 1024, 29, 30)
        k.srd(16, PW2, 1792*1024)
        k("s_setprio 3")
        k.label(lj)
    lD, lE = k.new("phD"), k.new("phE")
    k(f"s_cmp_lt_u32 s2, 224\ns_cbranch_scc1 {lD}")
    b0 = k.bars
    end_phase(2, f3_out, 3, f4_in, 14, between=e_between)
    k(f"s_branch {lE}")
    bskip = k.bars - b0
    k.bars = b0
    k.label(lD)
    DACC, DBUF, DT = 16, 48, 136
    RS, BB, CS = 8, 14, 15
    def d_between():
        k(f"""
        s_and_b32 s29, s{CW}, 1          ; mp
        s_lshr_b32 s30, s{CW}, 1         ; nq
        s_and_b32 s31, s30, 1
        s_lshl_b32 s31, s31, 6
        s_lshr_b32 s32, s30, 1
        s_lshl_b32 s32, s32, 13
        s_lshl_b32 s33, s29, 13
        s_add_u32 s33, s33, {D_A}
        v_add_u32 v{AA}, s33, v{L16}
        s_lshl_b32 s36, s{MT128}, 2
        s_lshl_b32 s37, s29, 1
        s_add_u32 s36, s36, s37
        s_lshl_b32 s37, s{NT14}, 2
        s_add_u32 s37, s37, s30          ; nt32 (0..55)
        s_lshl_b32 s38, s30, 10
        s_add_u32 s38, s38, {D_ST}
        v_add_u32 v{DT}, s38, v{L16}
        s_lshl_b32 s38, s29, 11
        s_add_u32 s38, s38, {D_ST + 4096}
        v_add_u32 v{DT+1}, s38, v{L16}
        s_mul_i32 s38, s36, {112*1024}
        s_lshl_b32 s39, s37, 11
        s_add_u32 s38, s38, s39
        s_add_u32 s38, s38, {WS_AF}
        s_add_u32 s39, s38, {112*1024}
        v_mov_b32 v{DT+2}, {f32(-2*LN2)}
        """)
        w_tr_addr(k, AW, DT+8, DT+9, 31, 512, D_W)
        k(f"""
        v_add_u32 v{AW}, s32, v{AW}
        v_mov_b32 v{CA}, v{AA}
        v_mov_b32 v{CWA}, v{AW}
        s_mov_b32 s33, 0
        s_mov_b32 s35, 0
        """)
        for i in range(32): k(f"v_mov_b32 v{DACC+i}, 0")
        if E("DPRIO", 1):
            lq = k.new("dp")
            k(f"s_cmp_ge_u32 s{CW}, 4\ns_cbranch_scc1 {lq}\ns_setprio 1")
            k.label(lq)
    end_phase(2, f3_out, 2, lambda: k(f"s_lshl_b32 s47, s{MT128}, 4"), 16, between=d_between)
    k.mark(8)
    def readsD(ks, st):
        b = DBUF + 12*ks + 24*st
        kk = 2*st + ks
        return [f"ds_read_b64_tr_b16 {vr(b+8+2*t,2)}, v{CWA} offset:{kk*2048 + t*1024}" for t in range(2)] + \
               [f"ds_read_b128 {vr(b,4)}, v{CA} offset:{kk*1024}", f"ds_read_b128 {vr(b+4,4)}, v{CA} offset:{4096+kk*1024}"]
    def workD(ks, st):
        b = DBUF + 12*ks + 24*st
        return [k.mfma_s(DACC, b+8, b), k.mfma_s(DACC+16, b+8, b+4)]
    def updD():
        ring_step(k, 33, 16384, D_DA*16384)
        ring_step(k, 35, 16384, D_DW*16384)
        k(f"v_add_u32 v{CA}, s33, v{AA}\nv_add_u32 v{CWA}, s35, v{AW}")
    OA, MB = 96, 100
    def tailD():
        k(f"""
        ds_read_b128 {vr(OA,4)}, v{DT}
        ds_read_b128 {vr(MB,4)}, v{DT+1}
        ds_read_b128 {vr(MB+4,4)}, v{DT+1} offset:1024
        """)
    def tailD2():
        k(f"""
        v_mov_b32 v{RS}, v{MB+3}
        v_mov_b32 v{RS+1}, v{MB+7}
        v_mov_b32 v{MB+3}, 0
        v_mov_b32 v{MB+7}, 0
        s_nop 0
        """)
        k.mfma(DACC, OA, MB)
        k.mfma(DACC+16, OA, MB+4)
    compute_loop(k, 16, 2, readsD, workD, updD, 34, pair=True, tail=(tailD, tailD2), mbar=True)
    k.mark(9)
    k("s_nop 11")
    U, PP = DBUF, DBUF+16
    for ms in range(2):
        a = DACC + 16*ms
        for i in range(16): k(f"v_mul_f32 v{a+i}, v{a+i}, v{RS+ms}")
        for i in range(16): k(f"v_exp_f32 v{U+i}, v{a+i}")
        for i in range(16): k(f"v_add_f32 v{U+i}, 1.0, v{U+i}")
        for i in range(16): k(f"v_fma_f32 v{U+i}, v{U+i}, v{U+i}, 1.0")
        for i in range(16): k(f"v_rcp_f32 v{U+i}, v{U+i}")
        for i in range(16): k(f"v_fmaak_f32 v{U+i}, v{U+i}, v{DT+2}, {f32(LN2)}")
        for i in range(16): k(f"v_mul_f32 v{a+i}, v{a+i}, v{U+i}")
        for i in range(8): k(f"v_cvt_pk_bf16_f32 v{PP+8*ms+i}, v{a+2*i}, v{a+2*i+1}")
        so = "s38" if ms == 0 else "s39"
        k(f"buffer_store_dwordx4 {vr(PP+8*ms,4)}, v{L16}, s[12:15], {so} offen {HO}")
        k(f"buffer_store_dwordx4 {vr(PP+8*ms+4,4)}, v{L16}, s[12:15], {so} offen offset:1024 {HO}")
    k.mark(10)
    k("s_setprio 0")
    end_phase(3, lambda: k(f"s_lshl_b32 s46, s{MT128}, 4\ns_add_u32 s46, s46, s{NT14}"), 3, f4_in, 14, between=e_between)
    cnt['Dextra'] = k.bars - b0 - bskip
    k.label(lE)
    k.mark(11)
    lhi = k.new("hiE")
    k(f"s_cmp_ge_u32 s{CW}, 4\ns_cbranch_scc1 {lhi}")
    b0 = k.bars
    def updE():
        ring_step(k, 33, 16384, E_DA*16384)
        ring_step(k, 35, 8192, E_DW*8192)
        k(f"v_add_u32 v{CA}, s33, v{AA}\nv_add_u32 v{CWA}, s35, v{AW}")
    P2 = 96
    def rdE(st, aoff):
        out = []
        for ks in range(4):
            b = BUF + 8*ks + 32*st
            out += [f"ds_read_b128 {vr(b,4)}, v{CA} offset:{aoff + ks*1024}"] + \
                   [f"ds_read_b64_tr_b16 {vr(b+4+2*t,2)}, v{CWA} offset:{ks*2048 + t*1024}" for t in range(2)]
        return out
    wkE = lambda st: [x for ks in range(4) for x in work64(ks, st)]
    def stageE(st, bar, aoff=0, extra=()):
        k("s_waitcnt lgkmcnt(0)")
        if bar: k("s_barrier")
        w = wkE(1-st)
        for x in interleave(w[:3], rdE(st, aoff)) + [w[3]] + list(extra): k(x)
    updW = lambda: (ring_step(k, 35, 8192, E_DW*8192), k(f"v_add_u32 v{CWA}, s35, v{AW}"))
    k.bar()
    for x in rdE(0, 0): k(x)
    updE()
    k("s_mov_b32 s34, 6")
    lg = k.new("gl")
    k.label(lg)
    stageE(1, True); updE()
    k("s_sub_u32 s34, s34, 1")
    stageE(0, True)
    k("s_cmp_eq_u32 s34, 0")
    lgx = k.new("gx")
    k(f"s_cbranch_scc1 {lgx}")
    updE()
    k(f"s_branch {lg}")
    k.label(lgx)
    k.bars += 12
    updW()
    stageE(1, ETAIL, 8192)
    updE()
    stageE(0, True)
    updW()
    stageE(1, ETAIL, 8192)
    k.bars += 3 if ETAIL else 1
    w = wkE(1)
    k("s_waitcnt lgkmcnt(6)")
    k(w[0])
    for kh in range(2):
        for g in range(4): k(f"ds_read_b128 {vr(P2+16*kh+4*g,4)}, v14 offset:{kh*16384 + g*1024}")
    k(w[1])
    k("s_waitcnt lgkmcnt(11)")
    k(w[2])
    k("s_waitcnt lgkmcnt(8)")
    k(w[3])
    k("s_waitcnt lgkmcnt(0)")
    for i in range(16): k(f"v_add_f32 v{P2+i}, v{P2+i}, v{P2+16+i}")
    cnt['total'] = k.bars
    PQ = 128
    for p in range(2):
        for i in range(8*p, 8*p+8): k(f"v_add_f32 v{ACC+i}, v{ACC+i}, v{P2+i}")
        for i in range(4*p, 4*p+4): k(f"v_cvt_pk_bf16_f32 v{PQ+i}, v{ACC+2*i}, v{ACC+2*i+1}")
        k("s_nop 1")
        k(f"v_permlane32_swap_b32 v{PQ+4*p}, v{PQ+4*p+2}\nv_permlane32_swap_b32 v{PQ+4*p+1}, v{PQ+4*p+3}")
        k(f"buffer_store_dwordx4 {vr(PQ+4*p,4)}, v15, s[16:19], s38 offen offset:{32*p}")
    if E("DBGT", 0):
        k.srd(16, PDBG, 256)
        k("""
        s_waitcnt vmcnt(0)
        s_memrealtime s[44:45]
        v_mov_b32 v4, 0
        buffer_load_dword v5, v4, s[16:19], 0 offen sc1
        s_waitcnt vmcnt(0) lgkmcnt(0)
        v_sub_u32 v5, s44, v5
        s_mov_b64 exec, 1
        buffer_atomic_umax v5, v4, s[16:19], 0 offen offset:16
        """)
    stamp_out(k)
    k("s_endpgm")
    k.label(lhi)
    k.bars = b0
    ops = Ops(k)
    def iAE(s):
        b = E_A + (s % E_DA)*16384
        g0 = E_NR*4096 + (s - E_NR)*4096 if s >= E_NR else E_NR*4096
        g1 = g0 + 4096 if s >= E_NR else 0
        parts = [(0, g0), (4096, g0 + 112*1024), (8192, g1), (12288, g1 + 112*1024)]
        for (lo, go) in parts:
            k(f"s_add_u32 m0, s33, {b + lo}\ns_add_u32 s32, s41, {go}")
            k(f"buffer_load_dwordx4 v{L16}, s[12:15], s32 offen {HOL} lds")
        k("s_add_u32 s41, s41, 4096")
        ops.add(("A", s), len(parts))
    def iWE(mm):
        b = E_W + (mm % E_DW)*8192
        for e in range(2):
            k(f"s_add_u32 m0, s35, {b + e*1024}\ns_add_u32 s32, s40, {e*8192}")
            k("buffer_load_dwordx4 v14, s[16:19], s32 offen lds")
        k("s_add_u32 s40, s40, 65536")
        ops.add(("W", 12 + (mm-12)//2), 2)
    WD = E("E_WD", 1)
    ab = {WD + 2*i: (lambda i=i: iWE(12+i)) for i in range(4)}
    if E("EMARK", 0): ab.update({s: (lambda s=s: k.mark(s//2)) for s in range(0, 14, 2)})
    if ETAIL: ab[12] = lambda: k.bar()
    ring_loader_main(k, ops, E_S, E_DA, 99, E("E_LA", 3), iAE, None, 0, E_S, after_bar=ab)
    if ETAIL: k.bars += 1
    assert k.bars == cnt['total']
    stamp_out(k)
    k("s_endpgm")
    return cnt

def build(path):
    k = K()
    if STAMP:
        k("s_memrealtime s[60:61]\ns_memtime s[62:63]\ns_waitcnt lgkmcnt(0)\ns_mov_b32 s63, s60")
        for i in range(12): k(f"s_mov_b32 s{88+i}, 0")
    k(f"""
    s_cmp_ge_u32 s2, 256
    s_cbranch_scc1 Lexit
    s_load_dwordx16 s[64:79], s[0:1], 0
    s_load_dwordx4 s[80:83], s[0:1], 64
    v_lshrrev_b32 v1, 6, v0
    v_and_b32 v0, 63, v0
    s_and_b32 s20, s2, 7
    v_readfirstlane_b32 s3, v1
    s_lshr_b32 s21, s2, 3
    v_lshrrev_b32 v{HH}, 5, v0
    v_lshlrev_b32 v{L16}, 4, v0
    v_and_b32 v{MM}, 31, v0
    s_and_b32 s28, s20, 3
    s_lshr_b32 s29, s20, 2
    s_lshl_b32 s{MTA}, s28, 3
    s_and_b32 s30, s21, 7
    s_add_u32 s{MTA}, s{MTA}, s30
    s_lshl_b32 s{NTA}, s29, 2
    s_lshr_b32 s30, s21, 3
    s_add_u32 s{NTA}, s{NTA}, s30
    s_lshl_b32 s{HEAD}, s20, 2
    s_and_b32 s30, s21, 3
    s_add_u32 s{HEAD}, s{HEAD}, s30
    s_lshr_b32 s{QB}, s21, 2
    s_mov_b32 s{MT64}, s{HEAD}
    s_mov_b32 s{NT8}, s{QB}
    s_lshl_b32 s{MT128}, s28, 2
    s_add_u32 s{MT128}, s{MT128}, s30
    s_mul_i32 s{NT14}, s29, 7
    s_add_u32 s{NT14}, s{NT14}, s{QB}
    """)
    if E("CFIRST", 1):
        k("s_cmp_lt_u32 s3, 4\ns_cbranch_scc1 Lloader")
        k.bars = 0
        c2 = compute(k)
        k.label("Lloader")
        k.bars = 0
        c1 = loader(k)
    else:
        k("s_cmp_ge_u32 s3, 4\ns_cbranch_scc1 Lcompute")
        k.bars = 0
        c1 = loader(k)
        k.label("Lcompute")
        k.bars = 0
        c2 = compute(k)
    assert c1 == c2, (c1, c2)
    k.label("Lexit")
    k("s_endpgm")
    ref = open(f"cdna_kernels/{NAME}.s.ref").read().split("\n")
    head = [l for l in ref if l.startswith(";") and "@launch" not in l]
    out = "\n".join(head) + f"\n; @launch grid=(256,1,1) block=(768,1,1) lds={LDS_TOTAL}\n"
    out += f'.amdgcn_target "amdgcn-amd-amdhsa--gfx950"\n.text\n.globl {NAME}_kernel\n.p2align 8\n.type {NAME}_kernel,@function\n{NAME}_kernel:\n'
    out += "\n".join(k.L).replace("CODE_SPAN", f"Lexit - {NAME}_kernel - 4") + "\n"
    out += f""".section .rodata,"a"
.p2align 6
.amdhsa_kernel {NAME}_kernel
  .amdhsa_next_free_vgpr 168
  .amdhsa_next_free_sgpr 102
  .amdhsa_accum_offset 168
  .amdhsa_group_segment_fixed_size 0
  .amdhsa_kernarg_size 80
  .amdhsa_user_sgpr_count 2
  .amdhsa_user_sgpr_kernarg_segment_ptr 1
  .amdhsa_system_sgpr_workgroup_id_x 1
.end_amdhsa_kernel
"""
    open(path, "w").write(out)
    print("barriers", c1, "lines", len(k.L))
if __name__ == "__main__":
    build(sys.argv[1])
```

```python
import sys
from fz import *

A_DP = 4
A_SUB = 12288
A_WB = 65536
A_RS = LDS_TOTAL - 256
assert A_WB + A_DP*2*A_SUB <= LDS_TOTAL
B_SLAB = 141312
B_SYNC = 157696
ONESB = 131072
C_W, C_A, C_X = 0, 65536, 149504
D_DW, D_DA = E("D_DW", 5), E("D_DA", 4)
D_W, D_A, D_ST = 0, D_DW*16384, (D_DW+D_DA)*16384
assert D_ST + 8192 <= LDS_TOTAL
E_DW, E_DA = 12, 4
E_S = 14
E_NR = 12
RW = 72
ETAIL = E('ETAIL', 1)
E_PB = 4*8192
E_W, E_A = 0, E_DW*8192
assert E_DW*8192 + E_DA*16384 <= LDS_TOTAL
STG = 24
MT64, NT8, HEAD, QB, MT128, NT14 = 22, 23, 24, 25, 26, 27
MTA, NTA = 56, 57
NT_A = "nt" if E("NT_A", 0) else ""
NT_B = "nt" if E("NT_B", 0) else ""
NT_W1 = "nt" if E("NT_W1", 0) else ""
NT_WO = "nt" if E("NT_WO", 0) else ""
NT_OH = "nt" if E("NT_OH", 0) else ""

def stamp_out(k):
    if not STAMP: return
    if E("DBGW", 0):
        l = k.new("nodbg")
        k(f"""
        s_cmp_lg_u32 s2, {E("DBGWG", 0)}
        s_cbranch_scc1 {l}
        s_cmp_lg_u32 s3, 4
        s_cbranch_scc1 {l}
        s_waitcnt vmcnt(0) lgkmcnt(0)
        s_memrealtime s[60:61]
        s_memtime s[86:87]
        s_waitcnt lgkmcnt(0)
        s_sub_u32 s86, s86, s62
        s_sub_u32 s60, s60, s63
        s_mov_b64 exec, 1
        v_mov_b32 v0, 0
        v_mov_b32 v4, s60
        v_mov_b32 v5, s86
        global_store_dwordx2 v0, v[4:5], s[80:81] offset:8
        """)
        for j in range(3):
            for i in range(4): k(f"s_sub_u32 s{88+4*j+i}, s{88+4*j+i}, s63\nv_mov_b32 v{8+4*j+i}, s{88+4*j+i}")
            k(f"global_store_dwordx4 v0, v[{8+4*j}:{11+4*j}], s[80:81] offset:{16+16*j}")
        k.label(l)
        return
    k(f"""
    s_waitcnt vmcnt(0) lgkmcnt(0)
    s_memrealtime s[60:61]
    s_memtime s[86:87]
    s_lshl_b32 s44, s2, 4
    s_add_u32 s44, s44, s3
    s_lshl_b32 s44, s44, 6
    s_add_u32 s44, s44, {WS_DBG}
    s_waitcnt lgkmcnt(0)
    s_sub_u32 s86, s86, s62
    s_mov_b64 exec, 1
    v_mov_b32 v0, s44
    v_mov_b32 v4, s63
    v_mov_b32 v5, s60
    v_mov_b32 v6, s86
    v_mov_b32 v7, 0
    global_store_dwordx4 v0, v[4:7], s[82:83]
    """)
    for j in range(3):
        for i in range(4): k(f"v_mov_b32 v{8+4*j+i}, s{88+4*j+i}")
        k(f"global_store_dwordx4 v0, v[{8+4*j}:{11+4*j}], s[82:83] offset:{16+16*j}")

def loader(k):
    cnt = {}
    ops = Ops(k)
    if E("CODEPF", 1):
        lnp = k.new("ncp")
        k(f"""
        s_getpc_b64 s[40:41]
        LPC0:
        s_sub_u32 s40, s40, LPC0 - {NAME}_kernel
        s_subb_u32 s41, s41, 0
        v_lshlrev_b32 v5, 7, v0
        s_lshl_b32 s42, s3, 13
        v_add_u32 v5, s42, v5
        v_min_u32 v5, CODE_SPAN, v5
        global_load_dword v6, v5, s[40:41]
        """)
    k(f"""
    s_add_u32 s28, s{MTA}, s{NTA}
    s_and_b32 s28, s28, 7
    s_mul_i32 s28, s28, {64*3072}
    s_lshl_b32 s29, s3, 3            ; 8*w rows
    s_lshl_b32 s30, s{NTA}, 7
    s_lshl_b32 s33, s3, 10           ; w*1024
    s_lshl_b32 s35, s3, 11           ; w*2048
    s_mul_i32 s31, s3, 3072
    s_add_u32 s31, s31, {A_WB}
    """)
    w_dma_voff(k, 4, 9, 10, 3072, 29, 30)
    k("s_waitcnt lgkmcnt(0)")
    k.srd(16, PWQKV, 512*1536*2)
    k.srd(12, PWS, WS_SIZE)
    if E("TLBW", 0):
        ltl = k.new("tl")
        k(f"""
        v_lshlrev_b32 v9, 21, v0
        s_cmp_lg_u32 s3, 0
        s_cbranch_scc1 {ltl}
        s_mov_b64 exec, 0x3ff
        buffer_load_dword v10, v4, s[16:19], s28 offen
        buffer_load_dword v11, v9, s[12:15], 0 offen
        s_mov_b64 exec, -1
        """)
        k.label(ltl)
    PBAR = E("PBAR", 0)
    def issueW_A(p):
        b = (p % A_DP) * 2*A_SUB
        k(f"s_add_u32 m0, s31, {b}\ns_add_u32 s32, s28, {32*3072}")
        for pn in range(3): k(f"buffer_load_dwordx4 v4, s[16:19], s28 offen offset:{pn*1024} {NT_A} lds")
        k(f"s_add_u32 m0, s31, {b + A_SUB}")
        ring_step(k, 28, 64*3072, 512*3072)
        n2 = 2 if p == 3 else 3
        for pn in range(n2): k(f"buffer_load_dwordx4 v4, s[16:19], s32 offen offset:{pn*1024} {NT_A} lds")
        if p == 3: k("s_mov_b32 s36, s32")
        ops.add(("W", p), 3 + n2)
    def late_piece():
        k(f"s_add_u32 m0, s31, {3*2*A_SUB + A_SUB}\ns_nop 0")
        k(f"buffer_load_dwordx4 v4, s[16:19], s36 offen offset:2048 {NT_A} lds")
        ops.add(("W", 3), 1)
    def issueW_A2(p):
        if p == 4: late_piece()
        issueW_A(p)
    for p in range(E("A_PRE", 2)):
        if p == PBAR: k.bar()
        issueW_A(p)
    k.mark(0)
    ring_loader_main(k, ops, 8, 99, A_DP, 99, None, issueW_A2, 8, E("A_PRE", 2), bmark=E("AMARK", 0))
    if E("AMARK", 0): k.mark = lambda i: None
    k.mark(1)
    k.bar()
    k(f"""
    s_lshl_b32 s28, s{HEAD}, 17
    s_add_u32 s28, s28, s33
    s_add_u32 s28, s28, {WS_KV}
    s_lshl_b32 s29, s3, 2
    s_add_u32 s29, s29, {B_SYNC}
    v_mov_b32 v22, s29
    v_mov_b32 v23, 0
    ds_write_b32 v22, v23
    """)
    k.srd(16, PWO, 512*1024)
    k.srd(36, PW1, 512*3584)
    k.srd(48, PW2, 1792*1024)
    k.srd(52, PX, 2048*1024)
    k(f"""
    s_lshl_b32 s29, s3, 4            ; 16w
    s_lshl_b32 s30, s{NT8}, 7
    s_lshl_b32 s31, s{MT64}, 6
    s_add_u32 s31, s31, s29
    s_lshl_b32 s32, s{NT14}, 8
    """)
    w_dma_voff(k, 4, 5, 6, 1024, 29, 30)
    x_dma_voff(k, 7, 8, 5, 6, 31, 30)
    w_dma_voff(k, 9, 5, 6, 3584, 29, 32)
    k(f"""
    v_lshlrev_b32 v5, 7, v0
    v_lshrrev_b32 v11, 4, v0
    v_mul_u32_u24 v11, 3584, v11
    v_and_b32 v12, 15, v0
    v_min_u32 v12, 13, v12
    v_lshl_add_u32 v11, v12, 7, v11
    s_lshl_b32 s41, s21, 2
    s_add_u32 s41, s41, s3
    s_lshl_b32 s42, s41, 13          ; j*8KB
    s_mul_i32 s40, s41, {4*3584}
    s_lshr_b32 s45, s20, 2
    s_mul_i32 s45, s45, 1792
    s_add_u32 s40, s40, s45
    s_add_u32 s47, s42, {768*1024}
    s_lshl_b32 s44, s20, 6
    s_add_u32 s44, s44, s29
    s_min_u32 s45, s21, 27
    s_lshl_b32 s45, s45, 7
    """)
    w_dma_voff(k, 18, 19, 20, 3584, 44, 45)
    k(f"s_mov_b32 s45, 0")
    w_tr_addr(k, 19, 20, 21, 45, 512, B_SLAB)
    k(f"""
    v_add_u32 v19, s35, v19
    v_xor_b32 v21, 64, v19
    v_mov_b32 v24, 0x3f803f80
    v_mov_b32 v25, 0x3f803f80
    v_mov_b32 v26, 0x3f803f80
    v_mov_b32 v27, 0x3f803f80
    s_lshl_b32 s44, s20, 2
    s_add_u32 s44, s44, s3
    s_mul_i32 s44, s44, {1792*4}
    s_lshl_b32 s45, s21, 8
    s_add_u32 s44, s44, s45
    s_add_u32 s44, s44, {WS_C1}
    v_lshlrev_b32 v20, 2, v{MM}
    s_and_b32 s29, s3, 1             ; nh
    s_lshr_b32 s31, s3, 1            ; kh
    s_lshl_b32 s29, s29, 6
    s_lshl_b32 s32, s{NT8}, 7
    s_add_u32 s29, s29, s32
    s_lshl_b32 s31, s31, 15
    s_add_u32 s46, s29, s31
    v_lshrrev_b32 v10, 2, v0
    v_lshlrev_b32 v10, 10, v10
    v_and_b32 v12, 3, v0
    v_lshl_add_u32 v10, v12, 4, v10  ; 16 rows x 64B
    v_add_u32 v17, 16384, v10
    v_lshlrev_b32 v13, 8, v{HH}
    v_bfe_u32 v6, v0, 2, 2
    v_lshl_add_u32 v13, v6, 6, v13
    v_bfe_u32 v6, v0, 4, 1
    v_lshl_add_u32 v13, v6, 5, v13
    v_lshl_add_u32 v13, v12, 3, v13
    s_add_u32 s29, s35, {B_SLAB}
    v_add_u32 v13, s29, v13
    v_add_u32 v12, s29, v{L16}
    v_mov_b32 v23, 1
    s_mov_b32 m0, s33
    s_mov_b32 s30, 29
    s_waitcnt lgkmcnt(0)
    s_setprio 3
    """)
    k.bar()
    cnt['A'] = k.bars
    k.mark(2)
    BWIN = E("B_WIN", 5)
    for i in range(3):
        k(f"buffer_load_dwordx4 v{L16}, s[12:15], s28 offen {HOL} lds\ns_add_u32 m0, m0, 4096\ns_add_u32 s28, s28, 4096")
    k(f"s_waitcnt vmcnt(2)\nds_write_b32 v22, v23\ns_mov_b32 s31, {3 - BWIN}")
    l = k.new("rd")
    k.label(l)
    k(f"""
    buffer_load_dwordx4 v{L16}, s[12:15], s28 offen {HOL} lds
    s_add_u32 m0, m0, 4096
    s_add_u32 s28, s28, 4096
    s_add_u32 s31, s31, 1
    s_max_i32 s32, s31, 1
    v_mov_b32 v23, s32
    s_waitcnt vmcnt({BWIN})
    ds_write_b32 v22, v23
    s_sub_u32 s30, s30, 1
    s_cmp_lg_u32 s30, 0
    s_cbranch_scc1 {l}
    v_mov_b32 v23, 32
    s_waitcnt vmcnt(0)
    ds_write_b32 v22, v23
    """)
    lns = k.new("nosl")
    k(f"""
    buffer_load_dword v14, v5, s[16:19], s42 offen
    buffer_load_dword v15, v11, s[36:39], s40 offen
    buffer_load_dword v16, v5, s[48:51], s47 offen
    s_add_u32 m0, s35, {C_X}
    s_mov_b32 s45, {8*3584}
    buffer_load_dwordx4 v7, s[52:55], 0 offen lds
    s_add_u32 m0, s35, {C_X + 1024}
    s_nop 0
    buffer_load_dwordx4 v8, s[52:55], 0 offen lds
    s_cmp_ge_u32 s2, 224
    s_cbranch_scc1 {lns}
    s_add_u32 m0, s35, {B_SLAB}
    s_nop 0
    buffer_load_dwordx4 v18, s[36:39], 0 offen lds
    s_add_u32 m0, s35, {B_SLAB + 1024}
    s_nop 0
    buffer_load_dwordx4 v18, s[36:39], s45 offen lds
    s_waitcnt vmcnt(0)
    ds_read_b64_tr_b16 v[28:29], v19
    ds_read_b64_tr_b16 v[30:31], v19 offset:1024
    ds_read_b64_tr_b16 v[32:33], v21
    ds_read_b64_tr_b16 v[34:35], v21 offset:1024
    s_waitcnt lgkmcnt(0)
    """)
    k.mfma(36, 24, 28, "0")
    k.mfma(52, 24, 32, "0")
    k(f"""
    s_nop 15
    s_mov_b64 exec, 0xffffffff
    buffer_store_dword v36, v20, s[12:15], s44 offen {HO}
    buffer_store_dword v52, v20, s[12:15], s44 offen offset:128 {HO}
    s_mov_b64 exec, -1
    """)
    k.label(lns)
    NF = 2*E_NR
    for j in range(NF):
        k(f"buffer_load_dwordx4 {vr(RW+4*j,4)}, v{10 if j % 2 == 0 else 17}, s[48:51], s46 offen")
        if j % 2 == 1: k("s_add_u32 s46, s46, 65536")
    k("s_waitcnt vmcnt(0)")
    def bounce():
        for j in range(0, NF, 2):
            k(f"""
            ds_write_b128 v12, {vr(RW+4*j,4)}
            ds_write_b128 v12, {vr(RW+4*j+4,4)} offset:1024
            ds_read_b64_tr_b16 {vr(RW+4*j,2)}, v13
            ds_read_b64_tr_b16 {vr(RW+4*j+2,2)}, v13 offset:512
            ds_read_b64_tr_b16 {vr(RW+4*j+4,2)}, v13 offset:1024
            ds_read_b64_tr_b16 {vr(RW+4*j+6,2)}, v13 offset:1536
            s_waitcnt lgkmcnt(6)
            """)
        k("s_waitcnt lgkmcnt(0)")
    if E("BOUNCE", 0) == 1:
        k("s_setprio 0"); bounce()
    ops.ops = []
    k.mark(3)
    k.bar()
    k.mark(4)
    k("s_setprio 0")
    def issueW64(wsrd, b):
        for e in range(2):
            k(f"s_add_u32 m0, s35, {b + e*1024}\ns_add_u32 s32, s40, {e*8192}")
            k(f"buffer_load_dwordx4 v4, s[{wsrd}:{wsrd+3}], s32 offen {NT_WO if wsrd == 16 else str()} lds")
        k("s_add_u32 s40, s40, 65536")
    def issueA64(b, KS):
        k(f"s_add_u32 m0, s33, {b}\ns_add_u32 s32, s41, {KS*1024}")
        k(f"buffer_load_dwordx4 v{L16}, s[12:15], s41 offen {HOL} {NT_OH if KS == 32 else str()} lds")
        k(f"s_add_u32 m0, s33, {b + 4096}\ns_add_u32 s41, s41, 4096")
        k(f"buffer_load_dwordx4 v{L16}, s[12:15], s32 offen {HOL} {NT_OH if KS == 32 else str()} lds")
    def setup64(KS, ACT):
        k(f"""
        s_mov_b32 s40, 0
        s_mul_i32 s41, s{MT64}, {2*KS*1024}
        s_add_u32 s41, s41, s33
        s_add_u32 s41, s41, {ACT}
        """)
    setup64(32, WS_OF)
    if E("PRESLEEP", 0): k(f"s_sleep {E('PRESLEEP', 0)}")
    for s in range(8):
        issueW64(16, C_W + s*8192); ops.add(("W", s), 2)
        if E("C_PREWIN", 0) and s < 7: k(f"s_waitcnt vmcnt({E('C_PREWIN', 0)})")
    if E("BOUNCE", 0) == 0: bounce()
    k.bar()
    k("s_setprio 3")
    cnt['B'] = k.bars
    k.mark(5)
    def iAC(s):
        issueA64(C_A + s*8192, 32); ops.add(("A", s), 2)
    SL, LC, LT = 24, 56, 40
    def issue_cols():
        k.srd(16, PB1, 3584)
        k(f"""
        s_min_u32 s44, s{NT14}, 13
        s_lshl_b32 s44, s44, 2
        s_add_u32 s44, s44, s3           ; nt32
        s_lshl_b32 s45, s44, 7
        s_add_u32 s45, s45, {WS_C1}
        s_lshl_b32 s44, s44, 6
        v_lshrrev_b32 v12, 3, v0
        v_mul_u32_u24 v12, {1792*4}, v12
        v_and_b32 v13, 7, v0
        v_lshl_add_u32 v12, v13, 4, v12
        v_lshlrev_b32 v14, 1, v{MM}
        buffer_load_ushort v10, v14, s[16:19], s44 offen
        """)
        for i in range(4):
            k(f"buffer_load_dwordx4 {vr(LC+4*i,4)}, v12, s[12:15], s45 offen {HO}\ns_add_u32 s45, s45, {8*1792*4}")
        ops.add(("CO", 0), 5)
    ring_loader_main(k, ops, 8, 8, 8, E("C_LA", 6), iAC, None, 0, 8, after_bar={3: issue_cols})
    k.bar()
    ops.ops = []
    lE = k.new("ldE")
    k(f"""
    s_lshl_b32 s46, s21, 2
    s_add_u32 s46, s46, s3
    s_add_u32 s46, s46, {E("PFB", 96)}
    s_lshl_b32 s46, s46, 13
    """)
    lE0 = k.new("ldE0")
    k(f"s_cmp_ge_u32 s2, 224\ns_cbranch_scc1 {lE0}")
    b0 = k.bars
    k(f"""
    s_mov_b32 s40, 0
    s_lshl_b32 s41, s{MT128}, 2
    s_add_u32 s41, s41, s3
    s_lshl_b32 s43, s41, 12
    s_add_u32 s43, s43, {WS_ST}
    s_lshl_b32 s41, s41, 15
    s_add_u32 s41, s41, {WS_HF}
    s_lshl_b32 s42, s3, 12           ; w*4096
    """)
    def issueW_D(s):
        b = D_W + (s % D_DW) * 16384
        for i in range(4):
            pn, e = i >> 1, i & 1
            k(f"s_add_u32 m0, s35, {b + pn*8192 + e*1024}\ns_add_u32 s32, s40, {e*8*3584 + pn*128}")
            k(f"buffer_load_dwordx4 v9, s[36:39], s32 offen {NT_W1} lds")
        k(f"s_add_u32 s40, s40, {64*3584}")
        ops.add(("W", s), 4)
    def issueA_D(s):
        k(f"s_add_u32 m0, s42, {D_A + (s % D_DA) * 16384}\ns_nop 0")
        for i in range(4):
            k(f"buffer_load_dwordx4 v{L16}, s[12:15], s41 offen offset:{i*1024} {HOL} {NT_OH} lds")
        k("s_add_u32 s41, s41, 4096")
        ops.add(("A", s), 4)
    def issue_stats():
        k("v_lshlrev_b32 v12, 3, v0")
        for i in range(8):
            k(f"buffer_load_dwordx2 {vr(SL+2*i,2)}, v12, s[12:15], s43 offen offset:{i*512} {HO}")
        ops.add(("ST", 0), 8)
    def prep_stats():
        ops.wait({("ST", 0)})
        b, MB, RS = SL, LT+12, LT+4
        for i in range(1, 8):
            k(f"v_add_f32 v{b}, v{b}, v{b+2*i}\nv_add_f32 v{b+1}, v{b+1}, v{b+2*i+1}")
        xhalf_sum(k, b, LT)
        xhalf_sum(k, b+1, LT)
        k(f"""
        v_mul_f32 v{b}, {f32(-1.0/512)}, v{b}
        v_mul_f32 v{b+1}, {f32(1.0/512)}, v{b+1}
        v_fma_f32 v{b+1}, -v{b}, v{b}, v{b+1}
        v_max_f32 v{b+1}, 0, v{b+1}
        v_add_f32 v{b+1}, {f32(1e-5)}, v{b+1}
        v_rsq_f32 v{RS}, v{b+1}
        s_nop 0
        v_mul_f32 v{b+1}, v{b+1}, v{RS}
        v_mul_f32 v{MB+3}, {f32(LOG2E)}, v{RS}
        """)
        split_hilo(k, b, LT, LT+1, LT+2)
        k(f"v_cvt_pk_bf16_f32 v{MB}, v{LT}, v{LT+1}")
        split_hilo(k, b+1, LT+3, LT+1, LT+2)
        k(f"v_cvt_pk_bf16_f32 v{MB+1}, v{LT}, v{LT+3}\nv_cvt_pk_bf16_f32 v{MB+2}, v{LT+1}, 0")
        k(f"ds_write_b128 v11, {vr(MB,4)} offset:4096\ns_waitcnt lgkmcnt(0)")
    def retouch():
        if E("W2MODE", 1) == 1:
            k("buffer_load_dword v16, v5, s[48:51], s47 offen"); ops.add(("PF", 0), 1)
    def prep_cols():
        OA = LT+8
        for j in range(4):
            k(f"v_add_f32 v{LC+j}, v{LC+j}, v{LC+4+j}\nv_add_f32 v{LC+8+j}, v{LC+8+j}, v{LC+12+j}")
        for j in range(4): k(f"v_add_f32 v{LC+j}, v{LC+j}, v{LC+8+j}")
        k(f"""
        v_add_u32 v11, s33, v{L16}
        v_add_u32 v11, {D_ST}, v11
        ds_write_b128 v11, {vr(LC,4)}
        v_lshlrev_b32 v12, 9, v{HH}
        v_lshl_add_u32 v12, v{MM}, 2, v12
        v_add_u32 v12, s33, v12
        v_add_u32 v12, {D_ST}, v12
        v_cmp_gt_u32 vcc, 32, v0
        s_waitcnt lgkmcnt(0)
        ds_read2_b32 {vr(LC,2)}, v12 offset0:0 offset1:32
        ds_read2_b32 {vr(LC+2,2)}, v12 offset0:64 offset1:96
        v_cndmask_b32 v{LC+4}, 0, v10, vcc
        s_waitcnt lgkmcnt(0)
        v_add_f32 v{LC}, v{LC}, v{LC+1}
        v_add_f32 v{LC+2}, v{LC+2}, v{LC+3}
        v_add_f32 v{LC}, v{LC}, v{LC+2}
        """)
        split_hilo(k, LC, LT, LT+1, LT+2)
        k(f"""
        v_cvt_pk_bf16_f32 v{OA}, v{LT}, v{LT}
        v_cvt_pk_bf16_f32 v{OA+1}, v{LT+1}, 0
        v_lshl_or_b32 v{OA+1}, v{LC+4}, 16, v{OA+1}
        v_mov_b32 v{OA+2}, v{LC+4}
        v_mov_b32 v{OA+3}, 0
        ds_write_b128 v11, {vr(OA,4)}
        """)
    DP1 = E("D_PRE1", 5)
    for s in range(DP1):
        issueW_D(s)
        if E("D_PREWIN", 4): k(f"s_waitcnt vmcnt({E('D_PREWIN', 4)})")
    k.bar()
    if DP1 < D_DW and E("PRESLEEP", 0): k(f"s_sleep {E('PRESLEEP', 0)}")
    for s in range(DP1, D_DW):
        issueW_D(s)
        if E("D_PREWIN", 4) and s < D_DW-1: k(f"s_waitcnt vmcnt({E('D_PREWIN', 4)})")
    prep_cols()
    k.bar()
    k.mark(6)
    if E("DMARK", 0): k.mark(0)
    ring_loader_main(k, ops, 8, D_DA, D_DW, E("D_LA", 3), issueA_D, issueW_D, 0, D_DW,
                     after_bar={E("D_STAT0", 4): issue_stats, E("D_STAT1", 6): prep_stats, E("W2RT", 5): retouch}, bmark=E("DMARK", 0))
    k.bar()
    if E("DMARK", 0):
        k.mark(9); k.mark = lambda i: None
    cnt['Dextra'] = k.bars - b0
    ops.ops = []
    k(f"s_branch {lE}")
    k.label(lE0)
    k.label(lE)
    k.mark(7)
    k(f"s_mov_b32 s40, {E_NR*65536}")
    EP1 = E("E_PRE1", 8)
    for s in range(EP1):
        issueW64(48, E_W + s*8192)
    k.bar()
    for s in range(EP1, E_DW):
        issueW64(48, E_W + s*8192)
        if E("E_PREWIN", 4): k(f"s_waitcnt vmcnt({E('E_PREWIN', 4)})")
    lrt = k.new("rt")
    k(f"s_cmp_lt_u32 s2, 224\ns_cbranch_scc1 {lrt}\nbuffer_load_dword v16, v5, s[48:51], s47 offen")
    k.label(lrt)
    RA, RB = 24, (56, 8)
    k(f"""
    s_waitcnt vmcnt(0)
    s_lshr_b32 s29, s3, 1
    s_lshl_b32 s30, s29, 11
    s_add_u32 s30, s30, {E_A}
    v_add_u32 v6, s30, v{L16}
    s_lshl_b32 s29, s29, 14
    s_and_b32 s30, s3, 1
    s_lshl_b32 s30, s30, 13
    s_add_u32 s29, s29, s30
    s_add_u32 s29, s29, {E_PB}
    v_add_u32 v7, s29, v{L16}
    s_setprio 0
    """)
    k.bar()
    k.mark(8)
    def r_reads(s):
        b = RB[s & 1]
        return [f"ds_read_b128 {vr(b+8*kk+4*ms,4)}, v6 offset:{(s % E_DA)*16384 + 8192 + ms*4096 + kk*1024}" for kk in range(2) for ms in range(2)]
    def r_work(s):
        b = RB[s & 1]
        return [k.mfma_s(RA+16*ms, RW+4*(2*s+kk), b+8*kk+4*ms, "0" if (s == 0 and kk == 0) else None) for kk in range(2) for ms in range(2)]
    for s in range(E_NR):
        if s > 0: k("s_waitcnt lgkmcnt(0)")
        k.bar()
        if s == 0:
            for x in r_reads(0): k(x)
        else:
            w = r_work(s-1)
            for x in interleave(w[:2], r_reads(s)) + w[2:]: k(x)
    k("s_waitcnt lgkmcnt(0)")
    for x in r_work(E_NR-1): k(x)
    k.bar()
    k("s_nop 10")
    wr = [f"ds_write_b128 v7, {vr(RA+16*ms+4*g,4)} offset:{ms*4096 + g*1024}" for ms in range(2) for g in range(4)]
    for grp in ((wr[:3], wr[3:6], wr[6:] + ["s_waitcnt lgkmcnt(0)"]) if ETAIL else (wr + ["s_waitcnt lgkmcnt(0)"],)):
        for x in grp: k(x)
        k.bar()
    cnt['total'] = k.bars
    k.mark(9)
    stamp_out(k)
    k("s_endpgm")
    return cnt

def compute(k):
    cnt = {}
    CW = 28
    k(f"s_sub_u32 s{CW}, s3, 4")
    X, T = 64, 128
    ACC = 16
    k(f"""
    s_lshl_b32 s29, s{MTA}, 6
    s_lshl_b32 s30, s{CW}, 3
    s_add_u32 s29, s29, s30          ; row0
    v_lshrrev_b32 v6, 3, v0
    v_add_u32 v7, s29, v6
    v_lshlrev_b32 v7, 10, v7
    v_and_b32 v8, 7, v0
    v_lshl_add_u32 v7, v8, 4, v7
    s_add_u32 s33, s{MTA}, s{NTA}
    s_lshl_b32 s33, s33, 7
    s_and_b32 s33, s33, 1023
    s_waitcnt lgkmcnt(0)
    """)
    k.srd(16, PX, 2048*1024)
    for i in range(8):
        k(f"buffer_load_dwordx4 {vr(X+4*i,4)}, v7, s[16:19], s33 offen {NT_A}")
        if i < 7: k("s_add_u32 s33, s33, 128\ns_and_b32 s33, s33, 1023")
        if i == 0 and E("XMARK", 0): k.mark(2)
    k.bar()
    if E("XMARK", 0): k.mark(3)
    k.srd(12, PWS, WS_SIZE)
    k(f"""
    s_lshr_b32 s29, s{CW}, 2
    s_lshl_b32 s29, s29, 15
    s_and_b32 s30, s{CW}, 3
    s_lshl_b32 s30, s30, 7
    s_add_u32 s29, s29, s30
    v_xor_b32 v9, v6, v8
    v_lshlrev_b32 v9, 4, v9
    v_lshl_add_u32 v9, v8, 9, v9
    v_add_u32 v9, s29, v9
    s_lshl_b32 s30, s{CW}, 5
    s_add_u32 s30, s30, {A_RS}
    v_lshlrev_b32 v10, 2, v6
    v_add_u32 v10, s30, v10
    v_mov_b32 v{T}, 0x3f803f80
    v_mov_b32 v{T+1}, 0x00003f80
    v_mov_b32 v{T+2}, 0x3f800000
    s_and_b32 s29, s{CW}, 1          ; ms
    s_bfe_u32 s30, s{CW}, 0x10001    ; nh
    s_lshl_b32 s31, s30, 6
    """)
    CX, AW, CWA, VA = 4, 11, 12, 15
    w_tr_addr(k, AW, 13, 14, 31, 3072, A_WB)
    k(f"""
    s_lshl_b32 s32, s29, 15
    v_xor_b32 v13, v{MM}, v{HH}
    v_lshlrev_b32 v13, 4, v13
    v_lshlrev_b32 v14, 9, v{HH}
    v_add_u32 v14, s32, v14
    """)
    for ks in range(4):
        k(f"v_xor_b32 v{CX+ks}, {ks*32}, v13\nv_add_u32 v{CX+ks}, v{CX+ks}, v14")
    k(f"""
    v_mov_b32 v{CWA}, v{AW}
    s_mov_b32 s35, 0
    s_lshl_b32 s36, s29, 7
    s_add_u32 s36, s36, {A_RS}
    v_lshlrev_b32 v13, 2, v{MM}
    v_add_u32 v13, s36, v13
    v_lshlrev_b32 v14, 4, v{HH}
    v_add_u32 v14, s36, v14
    s_lshl_b32 s32, s{NTA}, 2
    s_lshl_b32 s33, s30, 1
    s_add_u32 s32, s32, s33            ; head0
    s_lshl_b32 s33, s{MTA}, 1
    s_add_u32 s33, s33, s29
    s_lshl_b32 s39, s32, 16
    s_lshl_b32 s36, s33, 10
    s_add_u32 s39, s39, s36
    s_add_u32 s39, s39, {WS_QF}
    s_add_u32 s36, s39, 65536
    s_lshl_b32 s37, s32, 17
    s_lshl_b32 s38, s33, 11
    s_add_u32 s37, s37, s38
    s_add_u32 s37, s37, {WS_KV}
    s_add_u32 s38, s37, 131072
    v_and_b32 v{VA}, 15, v0
    v_lshlrev_b32 v{VA}, 4, v{VA}
    v_lshl_add_u32 v{VA}, v{HH}, 8, v{VA}
    v_bfe_u32 v{T+6}, v0, 4, 1
    v_lshl_add_u32 v{VA}, v{T+6}, 17, v{VA}
    """)
    for i in range(48): k(f"v_mov_b32 v{ACC+i}, 0")
    SA, SB, QA, QB_, TM = T+4, T+5, T+6, T+7, T+8
    for r_ in (SA, SB, QA, QB_): k(f"v_mov_b32 v{r_}, 0")
    for i in range(8):
        k(f"s_waitcnt vmcnt({7-i})")
        for j in range(4):
            k(f"v_dot2_f32_bf16 v{SA+(j&1)}, v{X+4*i+j}, v{T}, v{SA+(j&1)}")
            k(f"v_dot2_f32_bf16 v{QA+(j&1)}, v{X+4*i+j}, v{X+4*i+j}, v{QA+(j&1)}")
    k.mark(0)
    k(f"s_nop 1\nv_add_f32 v{SA}, v{SA}, v{SB}\nv_add_f32 v{QA}, v{QA}, v{QB_}")
    for ctl in ("quad_perm:[1,0,3,2]", "quad_perm:[2,3,0,1]", "row_half_mirror"):
        k(f"s_nop 0\nv_add_f32_dpp v{SA}, v{SA}, v{SA} {ctl} row_mask:0xf bank_mask:0xf")
        k(f"v_add_f32_dpp v{QA}, v{QA}, v{QA} {ctl} row_mask:0xf bank_mask:0xf")
    NM = SA
    k(f"v_mul_f32 v{NM}, {f32(-1.0/512)}, v{SA}\nv_mul_f32 v{QA}, {f32(1.0/512)}, v{QA}")
    fin = [f"v_fma_f32 v{QA}, -v{NM}, v{NM}, v{QA}", f"v_max_f32 v{QA}, 0, v{QA}", f"v_add_f32 v{QA}, {f32(1e-5)}, v{QA}", f"v_rsq_f32 v{QA}, v{QA}"]
    for i in range(9):
        t = TM + 8*(i & 1)
        if i < 8:
            for j in range(4):
                k(f"v_dot2_f32_bf16 v{t+2*j}, v{X+4*i+j}, v{T+1}, v{NM}")
                k(f"v_dot2_f32_bf16 v{t+2*j+1}, v{X+4*i+j}, v{T+2}, v{NM}")
        else:
            for x_ in fin: k(x_)
        if i > 0:
            tp = TM + 8*((i-1) & 1)
            for j in range(4):
                k(f"v_cvt_pk_bf16_f32 v{X+4*(i-1)+j}, v{tp+2*j}, v{tp+2*j+1}")
            k(f"ds_write_b128 v9, {vr(X+4*(i-1),4)} offset:{(i-1)*4096}")
    k(f"ds_write_b32 v10, v{QA}")
    lhiA, lendA = k.new("hiA"), k.new("endA")
    k(f"s_waitcnt lgkmcnt(0)")
    k.mark(1)
    k(f"s_cmp_ge_u32 s{CW}, 4\ns_cbranch_scc1 {lhiA}")
    b0 = k.bars
    RSTD, RF, BUF = T+3, T+8, X
    def pre_first():
        k(f"ds_read_b32 v{RSTD}, v13")
        for g in range(4): k(f"ds_read_b128 {vr(RF+4*g,4)}, v14 offset:{g*32}")
        k("s_waitcnt lgkmcnt(1)")
    def reads(ks, st):
        b = BUF + 16*ks + 32*st
        r = [f"ds_read_b128 {vr(b,4)}, v{CX+2*st+ks} offset:{(2*st+ks)*1024}"]
        for pn in range(3):
            for t in range(2):
                r.append(f"ds_read_b64_tr_b16 {vr(b+4+4*pn+2*t,2)}, v{CWA} offset:{st*A_SUB + ks*6144 + pn*1024 + t*512}")
        return r
    def work(ks, st):
        b = BUF + 16*ks + 32*st
        return [k.mfma_s(ACC+16, b+8, b), k.mfma_s(ACC+32, b, b+12), k.mfma_s(ACC, b+4, b)]
    def addr_update():
        ring_step(k, 35, 2*A_SUB, A_DP*2*A_SUB)
        for i in range(4): k(f"v_add_u32 v{CX+i}, 4096, v{CX+i}")
        k(f"v_add_u32 v{CWA}, s35, v{AW}")
    compute_loop(k, 16, 2, reads, work, addr_update, 34, pair=True, pre_first=pre_first)
    if not E("XMARK", 0): k.mark(2)
    k(f"v_mul_f32 v{T+2}, {f32(0.25*LOG2E)}, v{RSTD}\ns_nop 8")
    P = X
    for (a, sc, st) in ((ACC+16, None, [(f"v{L16}", "s37", ""), (f"v{L16}", "s38", "")]),
                        (ACC+32, "rf", [(f"v{VA}", "s37", "offset:1024"), (f"v{VA}", "s37", "offset:1536")]),
                        (ACC, "q", [(f"v{L16}", "s39", ""), (f"v{L16}", "s36", "")])):
        for j in range(2):
            for i in range(8*j, 8*j+8):
                mm_ = f"v{RSTD}" if sc is None else (f"v{RF+i}" if sc == "rf" else f"v{T+2}")
                k(f"v_mul_f32 v{a+i}, v{a+i}, {mm_}")
            for i in range(4*j, 4*j+4):
                k(f"v_cvt_pk_bf16_f32 v{P+i}, v{a+2*i}, v{a+2*i+1}")
            k(f"buffer_store_dwordx4 {vr(P+4*j,4)}, {st[j][0]}, s[12:15], {st[j][1]} offen {st[j][2]} {HO}")
        P += 8
    nA = k.bars - b0
    k(f"s_branch {lendA}")
    k.label(lhiA)
    k.bars = b0
    lnn, ltp, lnt = k.new("nn"), k.new("tp"), k.new("nt")
    k.srd(16, PDBG, 256)
    k(f"""
    v_mov_b32 v10, 0
    s_cmp_lg_u32 s{CW}, 7
    s_cbranch_scc1 {lnt}
    s_cmp_lg_u32 s2, 0
    s_cbranch_scc1 {lnn}
    s_memrealtime s[84:85]
    s_waitcnt lgkmcnt(0)
    s_or_b32 s84, s84, 1
    v_mov_b32 v8, s84
    v_mov_b32 v9, s85
    s_mov_b64 exec, 1
    buffer_store_dwordx2 v[8:9], v10, s[16:19], 0 offen {HO}
    s_mov_b64 exec, -1
    """)
    k.label(lnn)
    k.idle_bars(nA)
    k("s_mov_b32 s45, 30000")
    k.label(ltp)
    k(f"""
    buffer_load_dwordx2 v[8:9], v10, s[16:19], 0 offen {HO}
    s_waitcnt vmcnt(0)
    v_readfirstlane_b32 s84, v8
    v_readfirstlane_b32 s85, v9
    s_nop 3
    s_cmp_lg_u32 s84, 0
    s_cbranch_scc1 {lendA}
    s_sub_u32 s45, s45, 1
    s_cmp_lg_u32 s45, 0
    s_cbranch_scc1 {ltp}
    s_branch {lendA}
    """)
    k.label(lnt)
    k.bars = b0
    k.idle_bars(nA)
    k.label(lendA)
    def end_phase(out_arr, out_line, in_arr, in_line, n_in, between=None):
        out_line()
        k(f"""
        s_lshl_b32 s46, s46, 7
        s_add_u32 s46, s46, {WS_FL + out_arr*32768}
        v_mov_b32 v4, s84
        v_mov_b32 v5, s85
        v_mov_b32 v6, 0
        s_cmp_lg_u32 s{CW}, 7
        s_waitcnt vmcnt(0)
        """)
        k.bar()
        ls = k.new("ns")
        k(f"""
        s_cbranch_scc1 {ls}
        s_mov_b64 exec, 1
        buffer_store_dwordx2 v[4:5], v6, s[12:15], s46 offen {HO}
        s_mov_b64 exec, -1
        """)
        k.label(ls)
        if between: between()
        ls = k.new("np")
        k(f"s_cmp_lg_u32 s{CW}, 7\ns_cbranch_scc1 {ls}")
        in_line()
        signal_and_wait(k, None, 46, in_arr, 47, n_in)
        k.label(ls)
        k.bar()
    AK, AV, Q, KF, VF, P, C, O, S0, M, T = 10, 11, 12, 16, 24, 40, 48, 64, 80, 112, 113
    AV0, AVS, VSY, VFM, VF4 = 118, 119, 120, 121, 124
    NIT = 16
    SW = E("SW", 12)
    def zero_state():
        for i in range(16): k(f"v_mov_b32 v{O+i}, 0")
        for i in range(4): k(f"v_mov_b32 v{P+4+i}, 0\nv_mov_b32 v{VF+12+i}, 0")
    def b_setup():
        lp = k.new("pr")
        k(f"""
        s_lshl_b32 s29, s{QB}, 3
        s_add_u32 s29, s29, s{CW}
        s_lshl_b32 s30, s{HEAD}, 16
        s_lshl_b32 s31, s29, 10
        s_add_u32 s30, s30, s31
        s_add_u32 s30, s30, {WS_QF}
        v_and_b32 v{T+1}, 11, v0
        v_cmp_eq_u32 vcc, 0, v{T+1}
        v_mov_b32 v{T+2}, 0x3f803f80
        s_lshl_b32 s31, s{CW}, 10
        s_add_u32 s31, s31, {ONESB}
        v_cndmask_b32 v{S0}, 0, v{T+2}, vcc
        v_add_u32 v{T+1}, s31, v{L16}
        v_mov_b32 v{S0+1}, v{S0}
        v_mov_b32 v{S0+2}, v{S0}
        v_mov_b32 v{S0+3}, v{S0}
        ds_write_b128 v{T+1}, {vr(S0,4)}
        ds_write_b128 v{T+1}, {vr(S0,4)} offset:2048
        v_and_b32 v{AV0}, 15, v0
        v_lshlrev_b32 v{AV0}, 4, v{AV0}
        v_lshl_add_u32 v{AV0}, v{HH}, 8, v{AV0}
        v_and_b32 v{T+1}, 16, v0
        v_cmp_eq_u32 vcc, 0, v{T+1}
        v_mov_b32 v{T+1}, {ONESB}
        v_mov_b32 v{T+2}, 1024
        v_mov_b32 v{T+3}, 8192
        v_cndmask_b32 v{T+1}, v{T+1}, v{T+2}, vcc
        v_cndmask_b32 v{AVS}, 0, v{T+3}, vcc
        v_add_u32 v{AV0}, v{AV0}, v{T+1}
        v_mov_b32 v{VSY}, {B_SYNC}
        s_mov_b32 s40, 0x400000
        s_mov_b32 s36, 0
        s_lshl_b32 s29, s29, 15
        s_lshl_b32 s31, s{HEAD}, 10
        s_add_u32 s29, s29, s31
        s_add_u32 s29, s29, {WS_OF}
        s_setprio 1
        s_cmp_lt_u32 s{CW}, 4
        s_cbranch_scc1 {lp}
        s_setprio 2
        """)
        k.label(lp)
        zero_state()
        k("s_waitcnt lgkmcnt(0)")
    if not E("XMARK", 0): k.mark(3)
    end_phase(0, lambda: k(f"s_lshl_b32 s46, s{NTA}, 5\ns_add_u32 s46, s46, s{MTA}"),
              0, lambda: k(f"s_lshr_b32 s47, s{HEAD}, 2\ns_lshl_b32 s47, s47, 5"), 32, between=b_setup)
    cnt['A'] = k.bars
    k.mark(4)
    k(f"buffer_load_dwordx4 {vr(Q,4)}, v{L16}, s[12:15], s30 offen {HO}")
    def spin(need):
        l = k.new("sp")
        k.label(l)
        k(f"""
        ds_read_b128 {vr(VF4,4)}, v{VSY}
        s_sub_u32 s40, s40, 1
        s_cbranch_scc1 Lexit
        s_waitcnt lgkmcnt(0)
        v_min3_u32 v{VFM}, v{VF4}, v{VF4+1}, v{VF4+2}
        v_min_u32 v{VFM}, v{VFM}, v{VF4+3}
        v_cmp_gt_u32 vcc, {need}, v{VFM}
        s_cbranch_vccnz {l}
        """)
    k("s_waitcnt vmcnt(0)")
    spin(1)
    k(f"ds_read_b128 {vr(KF,4)}, v{L16}\ns_waitcnt lgkmcnt(0)")
    k.mfma(S0, KF, Q, "0")
    k("s_nop 15")
    def max16(src, dst, first):
        if first:
            k(f"v_max3_f32 v{dst}, v{src}, v{src+1}, v{src+2}\nv_max_f32 v{dst}, v{dst}, v{src+3}")
            rng = range(4, 16, 2)
        else: rng = range(0, 16, 2)
        for i in rng: k(f"v_max3_f32 v{dst}, v{dst}, v{src+i}, v{src+i+1}")
    max16(S0, M, True)
    lhave, lnob, lloop, lswp, ldone, lmax, lfin = [k.new(x) for x in ("have","nobar","aloop","swp","adone","maxl","afin")]
    k.label(lhave)
    k(f"""
    v_mov_b32 v{T+1}, v{M}
    v_mov_b32 v{AK}, v{L16}
    v_mov_b32 v{AV}, v{AV0}
    v_permlane32_swap_b32 v{M}, v{T+1}
    ds_read_b128 {vr(KF,4)}, v{AK}
    ds_read_b128 {vr(KF+4,4)}, v{AK} offset:2048
    ds_read_b128 {vr(VF,4)}, v{AV}
    ds_read_b128 {vr(VF+4,4)}, v{AV} offset:512
    v_max_f32 v{M}, v{M}, v{T+1}
    """)
    for i in range(16): k(f"v_sub_f32 v{C+i}, 0, v{M}")
    k("s_waitcnt lgkmcnt(3)\ns_mov_b32 s37, 0")
    k.mfma(S0, KF, Q, C)
    lcp = k.new("cp")
    k("s_mov_b32 s42, 3")
    if E("CYC", 0): k.mark(0)
    k.label(lcp)
    spin("s42")
    k(f"""
    v_readfirstlane_b32 s38, v{VFM}
    s_mov_b32 s41, 0
    s_add_u32 s43, s37, 1
    s_max_u32 s43, s43, {SW}
    s_sub_u32 s39, s38, 1
    s_lshr_b32 s39, s39, 1
    s_min_u32 s39, s39, s43
    s_lshl_b32 s42, s39, 1
    s_add_u32 s42, s42, 3
    s_min_u32 s42, s42, 32
    s_cmp_ge_u32 s38, 32
    s_cselect_b32 s39, s43, s39
    s_cselect_b32 s41, 1, 0
    """)
    k.label(lloop)
    for t in range(4):
        sb = S0 + 16*(t & 1); sn = S0 + 16*((t+1) & 1)
        kn = KF + 4*((t+1) & 1); kf = KF + 4*(t & 1)
        vc = VF + 8*(t & 1); vn = VF + 8*((t+1) & 1)
        ex = lambda i: k(f"v_exp_f32 v{sb+i}, v{sb+i}")
        cv = lambda i: k(f"v_cvt_pk_bf16_f32 v{P+i}, v{sb+2*i}, v{sb+2*i+1}")
        k("s_waitcnt lgkmcnt(0)")
        k.mfma(sn, kn, Q, C)
        ex(0); ex(1); ex(2); ex(3)
        k.mfma(O, vn+4, P+4)
        k(f"ds_read_b128 {vr(kf,4)}, v{AK} offset:{(t+2)*2048}")
        k(f"ds_read_b128 {vr(vn,4)}, v{AV} offset:{(t+1)*2048}")
        k(f"ds_read_b128 {vr(vn+4,4)}, v{AV} offset:{(t+1)*2048+512}")
        ex(4); ex(5); ex(6); ex(7)
        for i in range(4): cv(i)
        ex(8); ex(9)
        k.mfma(O, vc, P)
        if t == 3: k("s_add_u32 s37, s37, 1\ns_cmp_lt_u32 s37, s39")
        for i in range(10, 16): ex(i)
        if t == 3:
            k(f"v_add_u32 v{AK}, 8192, v{AK}\nv_add_u32 v{AV}, v{AVS}, v{AV}")
        for i in range(4, 8): cv(i)
    k(f"""
    s_cbranch_scc1 {lloop}
    s_cmp_eq_u32 s37, {NIT}
    s_cbranch_scc1 {ldone}
    s_cmp_eq_u32 s41, 0
    s_cbranch_scc1 {lcp}
    """)
    k.label(lswp)
    if E("CYC", 0): k.mark(2)
    k(f"""
    s_mov_b32 s39, {NIT}
    s_cmp_lt_u32 s{CW}, 4
    s_cbranch_scc1 {lloop}
    s_setprio 0
    s_branch {lloop}
    """)
    k.label(ldone)
    k.mfma(O, VF+12, P+4)
    if E("CYC", 0): k.mark(3)
    k(f"""
    s_waitcnt lgkmcnt(0)
    s_mov_b32 s38, {f32(2.0**60)}
    s_nop 13
    v_cmp_nlt_f32 vcc, v{O+8}, s38
    v_rcp_f32 v{T+3}, v{O+8}
    s_cmp_lg_u32 s36, 0
    s_cbranch_scc1 {lfin}
    s_cbranch_vccz {lfin}
    s_mov_b32 s36, 1
    s_mov_b32 s37, 0
    v_mov_b32 v{AK}, v{L16}
    v_mov_b32 v{M}, 0xff800000
    """)
    zero_state()
    k.label(lmax)
    k(f"ds_read_b128 {vr(KF,4)}, v{AK}\ns_waitcnt lgkmcnt(0)")
    k.mfma(S0, KF, Q, "0")
    k("s_nop 15")
    max16(S0, M, False)
    k(f"""
    v_add_u32 v{AK}, 2048, v{AK}
    s_add_u32 s37, s37, 1
    s_cmp_lt_u32 s37, 64
    s_cbranch_scc1 {lmax}
    s_branch {lhave}
    """)
    k.label(lfin)
    for i in range(8): k(f"v_mul_f32 v{O+i}, v{O+i}, v{T+3}")
    for i in range(4): k(f"v_cvt_pk_bf16_f32 v{P+i}, v{O+2*i}, v{O+2*i+1}")
    k(f"buffer_store_dwordx4 {vr(P,4)}, v{L16}, s[12:15], s29 offen {HO}")
    k("s_setprio 0")
    k.mark(5)
    AA, AW, CA, CWA = 10, 11, 12, 13
    ACC, BUF, T = 16, 32, 96
    def c_setup():
        k(f"""
        s_and_b32 s29, s{CW}, 1          ; ms
        s_bfe_u32 s30, s{CW}, 0x10001    ; nh
        s_lshl_b32 s31, s30, 6
        s_lshl_b32 s32, s29, 12
        v_add_u32 v{AA}, s32, v{L16}
        s_lshl_b32 s36, s{MT64}, 1
        s_add_u32 s36, s36, s29          ; mt32
        s_lshl_b32 s37, s{NT8}, 2
        s_lshl_b32 s38, s30, 1
        s_add_u32 s37, s37, s38          ; 2*nt32
        """)
        w_tr_addr(k, AW, 14, 15, 31, 512, 0)
    def c_between():
        c_setup()
        k(f"""
        v_add_u32 v{CA}, {C_A}, v{AA}
        v_mov_b32 v{CWA}, v{AW}
        v_lshlrev_b32 v14, 7, v{MM}
        v_add_u32 v14, s32, v14
        v_lshl_add_u32 v14, v{HH}, 3, v14
        v_add_u32 v14, {C_X}, v14
        v_bfe_u32 v15, v0, 1, 3
        v_lshlrev_b32 v15, 4, v15
        v_xor_b32 v15, s31, v15
        """)
        for g in range(4):
            k(f"v_xor_b32 v{T+16+g}, {g*16}, v15\nv_add_u32 v{T+16+g}, v{T+16+g}, v14")
    end_phase(1, lambda: k(f"s_lshl_b32 s46, s{QB}, 5\ns_add_u32 s46, s46, s{HEAD}"),
              1, lambda: k(f"s_lshr_b32 s47, s{MT64}, 2\ns_lshl_b32 s47, s47, 5"), -2, between=c_between)
    cnt['B'] = k.bars
    k.mark(6)
    def reads64(ks, st):
        b = BUF + 8*ks + 32*st
        return [f"ds_read_b128 {vr(b,4)}, v{CA} offset:{ks*1024}"] + \
               [f"ds_read_b64_tr_b16 {vr(b+4+2*t,2)}, v{CWA} offset:{ks*2048 + t*1024}" for t in range(2)]
    def work64(ks, st):
        b = BUF + 8*ks + 32*st
        return [k.mfma_s(ACC, b+4, b)]
    lhi, lend, lend2 = k.new("hiC"), k.new("endC"), k.new("endC2")
    k(f"s_cmp_ge_u32 s{CW}, 4\ns_cbranch_scc1 {lhi}")
    b0 = k.bars
    def c_first():
        for g in range(4): k(f"ds_read_b64 {vr(T+4+2*g,2)}, v{T+16+g}")
        k("s_waitcnt lgkmcnt(0)")
        for i in range(8):
            k(f"v_lshlrev_b32 v{ACC+2*i}, 16, v{T+4+i}\nv_and_b32 v{ACC+2*i+1}, 0xffff0000, v{T+4+i}")
    compute_loop(k, 8, 4, reads64, work64, lambda: k(f"v_add_u32 v{CA}, 8192, v{CA}\nv_add_u32 v{CWA}, 8192, v{CWA}"), 34, pre_first=c_first, mbar=True)
    k(f"""
    v_mov_b32 v{T+12}, 0x3f803f80
    v_mov_b32 v{T+14}, 0
    v_mov_b32 v{T+15}, 0
    s_lshl_b32 s38, s36, 15
    s_lshl_b32 s39, s37, 10
    s_add_u32 s38, s38, s39
    s_add_u32 s38, s38, {WS_HF}
    s_lshl_b32 s39, s36, 12
    s_lshl_b32 s40, s37, 7
    s_add_u32 s39, s39, s40
    s_add_u32 s39, s39, {WS_ST}
    v_lshlrev_b32 v{T+13}, 3, v{MM}
    s_nop 2
    """)
    for i in range(8): k(f"v_cvt_pk_bf16_f32 v{HSAVE+i}, v{ACC+2*i}, v{ACC+2*i+1}")
    k(f"buffer_store_dwordx4 {vr(HSAVE,4)}, v{L16}, s[12:15], s38 offen {HO}")
    k(f"buffer_store_dwordx4 {vr(HSAVE+4,4)}, v{L16}, s[12:15], s38 offen offset:1024 {HO}")
    for i in range(8):
        k(f"v_dot2_f32_bf16 v{T+14}, v{HSAVE+i}, v{T+12}, v{T+14}")
        k(f"v_dot2_f32_bf16 v{T+15}, v{HSAVE+i}, v{HSAVE+i}, v{T+15}")
    k("s_nop 2")
    xhalf_sum(k, T+14, T+16)
    xhalf_sum(k, T+15, T+16)
    k(f"s_mov_b64 exec, 0xffffffff\nbuffer_store_dwordx2 {vr(T+14,2)}, v{T+13}, s[12:15], s39 offen {HO}\ns_mov_b64 exec, -1")
    nC = k.bars - b0
    k(f"s_branch {lend}")
    k.label(lhi)
    k.bars = b0
    k.idle_bars(nC)
    k.label(lend)
    k.mark(7)
    f3_out = lambda: k(f"s_lshl_b32 s46, s{MT64}, 3\ns_add_u32 s46, s46, s{NT8}")
    f4_in = lambda: k(f"s_lshr_b32 s47, s{MT64}, 1\ns_lshl_b32 s47, s47, 4")
    def e_between():
        lh, lj = k.new("ebh"), k.new("ebj")
        k(f"s_cmp_ge_u32 s{CW}, 4\ns_cbranch_scc1 {lh}")
        c_setup()
        k(f"""
        v_add_u32 v{AA}, {E_A}, v{AA}
        s_mov_b32 s33, 0
        v_mov_b32 v{CA}, v{AA}
        v_mov_b32 v{CWA}, v{AW}
        s_mov_b32 s35, 0
        s_lshl_b32 s38, s{CW}, 12
        s_add_u32 s38, s38, {E_PB}
        v_add_u32 v14, s38, v{L16}
        s_lshl_b32 s38, s36, 15
        s_lshl_b32 s39, s37, 5
        s_add_u32 s38, s38, s39
        v_lshlrev_b32 v15, 10, v{MM}
        v_lshl_add_u32 v15, v{HH}, 4, v15
        """)
        k.srd(16, POUT, 2048*1024)
        for i in range(8):
            k(f"v_lshlrev_b32 v{16+2*i}, 16, v{HSAVE+i}\nv_and_b32 v{16+2*i+1}, 0xffff0000, v{HSAVE+i}")
        k(f"s_branch {lj}")
        k.label(lh)
        k(f"""
        s_sub_u32 s29, s{CW}, 4
        s_lshl_b32 s33, s29, 10
        s_lshl_b32 s35, s29, 11
        s_lshl_b32 s29, s29, 4
        s_lshl_b32 s30, s{NT8}, 7
        s_mov_b32 s40, {(E_NR+E_DW)*65536}
        s_mul_i32 s41, s{MT64}, {2*112*1024}
        s_add_u32 s41, s41, s33
        s_add_u32 s41, s41, {WS_AF}
        """)
        w_dma_voff(k, 14, 15, 16, 1024, 29, 30)
        k.srd(16, PW2, 1792*1024)
        k("s_setprio 3")
        k.label(lj)
    lD, lE = k.new("phD"), k.new("phE")
    k(f"s_cmp_lt_u32 s2, 224\ns_cbranch_scc1 {lD}")
    b0 = k.bars
    end_phase(2, f3_out, 3, f4_in, 14, between=e_between)
    k(f"s_branch {lE}")
    bskip = k.bars - b0
    k.bars = b0
    k.label(lD)
    DACC, DBUF, DT = 16, 48, 136
    RS, BB, CS = 8, 14, 15
    def d_between():
        k(f"""
        s_and_b32 s29, s{CW}, 1          ; mp
        s_lshr_b32 s30, s{CW}, 1         ; nq
        s_and_b32 s31, s30, 1
        s_lshl_b32 s31, s31, 6
        s_lshr_b32 s32, s30, 1
        s_lshl_b32 s32, s32, 13
        s_lshl_b32 s33, s29, 13
        s_add_u32 s33, s33, {D_A}
        v_add_u32 v{AA}, s33, v{L16}
        s_lshl_b32 s36, s{MT128}, 2
        s_lshl_b32 s37, s29, 1
        s_add_u32 s36, s36, s37
        s_lshl_b32 s37, s{NT14}, 2
        s_add_u32 s37, s37, s30          ; nt32 (0..55)
        s_lshl_b32 s38, s30, 10
        s_add_u32 s38, s38, {D_ST}
        v_add_u32 v{DT}, s38, v{L16}
        s_lshl_b32 s38, s29, 11
        s_add_u32 s38, s38, {D_ST + 4096}
        v_add_u32 v{DT+1}, s38, v{L16}
        s_mul_i32 s38, s36, {112*1024}
        s_lshl_b32 s39, s37, 11
        s_add_u32 s38, s38, s39
        s_add_u32 s38, s38, {WS_AF}
        s_add_u32 s39, s38, {112*1024}
        v_mov_b32 v{DT+2}, {f32(-2*LN2)}
        """)
        w_tr_addr(k, AW, DT+8, DT+9, 31, 512, D_W)
        k(f"""
        v_add_u32 v{AW}, s32, v{AW}
        v_mov_b32 v{CA}, v{AA}
        v_mov_b32 v{CWA}, v{AW}
        s_mov_b32 s33, 0
        s_mov_b32 s35, 0
        """)
        for i in range(32): k(f"v_mov_b32 v{DACC+i}, 0")
        if E("DPRIO", 1):
            lq = k.new("dp")
            k(f"s_cmp_ge_u32 s{CW}, 4\ns_cbranch_scc1 {lq}\ns_setprio 1")
            k.label(lq)
    end_phase(2, f3_out, 2, lambda: k(f"s_lshl_b32 s47, s{MT128}, 4"), 16, between=d_between)
    k.mark(8)
    def readsD(ks, st):
        b = DBUF + 12*ks + 24*st
        kk = 2*st + ks
        return [f"ds_read_b64_tr_b16 {vr(b+8+2*t,2)}, v{CWA} offset:{kk*2048 + t*1024}" for t in range(2)] + \
               [f"ds_read_b128 {vr(b,4)}, v{CA} offset:{kk*1024}", f"ds_read_b128 {vr(b+4,4)}, v{CA} offset:{4096+kk*1024}"]
    def workD(ks, st):
        b = DBUF + 12*ks + 24*st
        return [k.mfma_s(DACC, b+8, b), k.mfma_s(DACC+16, b+8, b+4)]
    def updD():
        ring_step(k, 33, 16384, D_DA*16384)
        ring_step(k, 35, 16384, D_DW*16384)
        k(f"v_add_u32 v{CA}, s33, v{AA}\nv_add_u32 v{CWA}, s35, v{AW}")
    OA, MB = 96, 100
    def tailD():
        k(f"""
        ds_read_b128 {vr(OA,4)}, v{DT}
        ds_read_b128 {vr(MB,4)}, v{DT+1}
        ds_read_b128 {vr(MB+4,4)}, v{DT+1} offset:1024
        """)
    def tailD2():
        k(f"""
        v_mov_b32 v{RS}, v{MB+3}
        v_mov_b32 v{RS+1}, v{MB+7}
        v_mov_b32 v{MB+3}, 0
        v_mov_b32 v{MB+7}, 0
        s_nop 0
        """)
        k.mfma(DACC, OA, MB)
        k.mfma(DACC+16, OA, MB+4)
    compute_loop(k, 16, 2, readsD, workD, updD, 34, pair=True, tail=(tailD, tailD2), mbar=True)
    k.mark(9)
    k("s_nop 11")
    U, PP = DBUF, DBUF+16
    for ms in range(2):
        a = DACC + 16*ms
        for i in range(16): k(f"v_mul_f32 v{a+i}, v{a+i}, v{RS+ms}")
        for i in range(16): k(f"v_exp_f32 v{U+i}, v{a+i}")
        for i in range(16): k(f"v_add_f32 v{U+i}, 1.0, v{U+i}")
        for i in range(16): k(f"v_fma_f32 v{U+i}, v{U+i}, v{U+i}, 1.0")
        for i in range(16): k(f"v_rcp_f32 v{U+i}, v{U+i}")
        for i in range(16): k(f"v_fmaak_f32 v{U+i}, v{U+i}, v{DT+2}, {f32(LN2)}")
        for i in range(16): k(f"v_mul_f32 v{a+i}, v{a+i}, v{U+i}")
        for i in range(8): k(f"v_cvt_pk_bf16_f32 v{PP+8*ms+i}, v{a+2*i}, v{a+2*i+1}")
        so = "s38" if ms == 0 else "s39"
        k(f"buffer_store_dwordx4 {vr(PP+8*ms,4)}, v{L16}, s[12:15], {so} offen {HO}")
        k(f"buffer_store_dwordx4 {vr(PP+8*ms+4,4)}, v{L16}, s[12:15], {so} offen offset:1024 {HO}")
    k.mark(10)
    k("s_setprio 0")
    end_phase(3, lambda: k(f"s_lshl_b32 s46, s{MT128}, 4\ns_add_u32 s46, s46, s{NT14}"), 3, f4_in, 14, between=e_between)
    cnt['Dextra'] = k.bars - b0 - bskip
    k.label(lE)
    k.mark(11)
    lhi = k.new("hiE")
    k(f"s_cmp_ge_u32 s{CW}, 4\ns_cbranch_scc1 {lhi}")
    b0 = k.bars
    def updE():
        ring_step(k, 33, 16384, E_DA*16384)
        ring_step(k, 35, 8192, E_DW*8192)
        k(f"v_add_u32 v{CA}, s33, v{AA}\nv_add_u32 v{CWA}, s35, v{AW}")
    P2 = 96
    def rdE(st, aoff):
        out = []
        for ks in range(4):
            b = BUF + 8*ks + 32*st
            out += [f"ds_read_b128 {vr(b,4)}, v{CA} offset:{aoff + ks*1024}"] + \
                   [f"ds_read_b64_tr_b16 {vr(b+4+2*t,2)}, v{CWA} offset:{ks*2048 + t*1024}" for t in range(2)]
        return out
    wkE = lambda st: [x for ks in range(4) for x in work64(ks, st)]
    def stageE(st, bar, aoff=0, extra=()):
        k("s_waitcnt lgkmcnt(0)")
        if bar: k("s_barrier")
        w = wkE(1-st)
        for x in interleave(w[:3], rdE(st, aoff)) + [w[3]] + list(extra): k(x)
    updW = lambda: (ring_step(k, 35, 8192, E_DW*8192), k(f"v_add_u32 v{CWA}, s35, v{AW}"))
    k.bar()
    for x in rdE(0, 0): k(x)
    updE()
    k("s_mov_b32 s34, 6")
    lg = k.new("gl")
    k.label(lg)
    stageE(1, True); updE()
    k("s_sub_u32 s34, s34, 1")
    stageE(0, True)
    k("s_cmp_eq_u32 s34, 0")
    lgx = k.new("gx")
    k(f"s_cbranch_scc1 {lgx}")
    updE()
    k(f"s_branch {lg}")
    k.label(lgx)
    k.bars += 12
    updW()
    stageE(1, ETAIL, 8192)
    updE()
    stageE(0, True)
    updW()
    stageE(1, ETAIL, 8192)
    k.bars += 3 if ETAIL else 1
    w = wkE(1)
    k("s_waitcnt lgkmcnt(6)")
    k(w[0])
    for kh in range(2):
        for g in range(4): k(f"ds_read_b128 {vr(P2+16*kh+4*g,4)}, v14 offset:{kh*16384 + g*1024}")
    k(w[1])
    k("s_waitcnt lgkmcnt(11)")
    k(w[2])
    k("s_waitcnt lgkmcnt(8)")
    k(w[3])
    k("s_waitcnt lgkmcnt(0)")
    for i in range(16): k(f"v_add_f32 v{P2+i}, v{P2+i}, v{P2+16+i}")
    cnt['total'] = k.bars
    PQ = 128
    for p in range(2):
        for i in range(8*p, 8*p+8): k(f"v_add_f32 v{ACC+i}, v{ACC+i}, v{P2+i}")
        for i in range(4*p, 4*p+4): k(f"v_cvt_pk_bf16_f32 v{PQ+i}, v{ACC+2*i}, v{ACC+2*i+1}")
        k("s_nop 1")
        k(f"v_permlane32_swap_b32 v{PQ+4*p}, v{PQ+4*p+2}\nv_permlane32_swap_b32 v{PQ+4*p+1}, v{PQ+4*p+3}")
        k(f"buffer_store_dwordx4 {vr(PQ+4*p,4)}, v15, s[16:19], s38 offen offset:{32*p}")
    if E("DBGT", 0):
        k.srd(16, PDBG, 256)
        k("""
        s_waitcnt vmcnt(0)
        s_memrealtime s[44:45]
        v_mov_b32 v4, 0
        buffer_load_dword v5, v4, s[16:19], 0 offen sc1
        s_waitcnt vmcnt(0) lgkmcnt(0)
        v_sub_u32 v5, s44, v5
        s_mov_b64 exec, 1
        buffer_atomic_umax v5, v4, s[16:19], 0 offen offset:16
        """)
    stamp_out(k)
    k("s_endpgm")
    k.label(lhi)
    k.bars = b0
    ops = Ops(k)
    def iAE(s):
        b = E_A + (s % E_DA)*16384
        g0 = E_NR*4096 + (s - E_NR)*4096 if s >= E_NR else E_NR*4096
        g1 = g0 + 4096 if s >= E_NR else 0
        parts = [(0, g0), (4096, g0 + 112*1024), (8192, g1), (12288, g1 + 112*1024)]
        for (lo, go) in parts:
            k(f"s_add_u32 m0, s33, {b + lo}\ns_add_u32 s32, s41, {go}")
            k(f"buffer_load_dwordx4 v{L16}, s[12:15], s32 offen {HOL} lds")
        k("s_add_u32 s41, s41, 4096")
        ops.add(("A", s), len(parts))
    def iWE(mm):
        b = E_W + (mm % E_DW)*8192
        for e in range(2):
            k(f"s_add_u32 m0, s35, {b + e*1024}\ns_add_u32 s32, s40, {e*8192}")
            k("buffer_load_dwordx4 v14, s[16:19], s32 offen lds")
        k("s_add_u32 s40, s40, 65536")
        ops.add(("W", 12 + (mm-12)//2), 2)
    WD = E("E_WD", 1)
    ab = {WD + 2*i: (lambda i=i: iWE(12+i)) for i in range(4)}
    if E("EMARK", 0): ab.update({s: (lambda s=s: k.mark(s//2)) for s in range(0, 14, 2)})
    if ETAIL: ab[12] = lambda: k.bar()
    ring_loader_main(k, ops, E_S, E_DA, 99, E("E_LA", 3), iAE, None, 0, E_S, after_bar=ab)
    if ETAIL: k.bars += 1
    assert k.bars == cnt['total']
    stamp_out(k)
    k("s_endpgm")
    return cnt

def build(path):
    k = K()
    if STAMP:
        k("s_memrealtime s[60:61]\ns_memtime s[62:63]\ns_waitcnt lgkmcnt(0)\ns_mov_b32 s63, s60")
        for i in range(12): k(f"s_mov_b32 s{88+i}, 0")
    k(f"""
    s_cmp_ge_u32 s2, 256
    s_cbranch_scc1 Lexit
    {"s_and_b32 s3, s2, 31" if E("BADMAP", 0) else ""}
    {"s_lshl_b32 s3, s3, 3" if E("BADMAP", 0) else ""}
    {"s_lshr_b32 s2, s2, 5" if E("BADMAP", 0) else ""}
    {"s_or_b32 s2, s2, s3" if E("BADMAP", 0) else ""}
    s_load_dwordx16 s[64:79], s[0:1], 0
    s_load_dwordx4 s[80:83], s[0:1], 64
    v_lshrrev_b32 v1, 6, v0
    v_and_b32 v0, 63, v0
    s_and_b32 s20, s2, 7
    v_readfirstlane_b32 s3, v1
    s_lshr_b32 s21, s2, 3
    v_lshrrev_b32 v{HH}, 5, v0
    v_lshlrev_b32 v{L16}, 4, v0
    v_and_b32 v{MM}, 31, v0
    s_and_b32 s28, s20, 3
    s_lshr_b32 s29, s20, 2
    s_lshl_b32 s{MTA}, s28, 3
    s_and_b32 s30, s21, 7
    s_add_u32 s{MTA}, s{MTA}, s30
    s_lshl_b32 s{NTA}, s29, 2
    s_lshr_b32 s30, s21, 3
    s_add_u32 s{NTA}, s{NTA}, s30
    s_lshl_b32 s{HEAD}, s20, 2
    s_and_b32 s30, s21, 3
    s_add_u32 s{HEAD}, s{HEAD}, s30
    s_lshr_b32 s{QB}, s21, 2
    s_mov_b32 s{MT64}, s{HEAD}
    s_mov_b32 s{NT8}, s{QB}
    s_lshl_b32 s{MT128}, s28, 2
    s_add_u32 s{MT128}, s{MT128}, s30
    s_mul_i32 s{NT14}, s29, 7
    s_add_u32 s{NT14}, s{NT14}, s{QB}
    """)
    if E("CFIRST", 1):
        k("s_cmp_lt_u32 s3, 4\ns_cbranch_scc1 Lloader")
        k.bars = 0
        c2 = compute(k)
        k.label("Lloader")
        k.bars = 0
        c1 = loader(k)
    else:
        k("s_cmp_ge_u32 s3, 4\ns_cbranch_scc1 Lcompute")
        k.bars = 0
        c1 = loader(k)
        k.label("Lcompute")
        k.bars = 0
        c2 = compute(k)
    assert c1 == c2, (c1, c2)
    k.label("Lexit")
    k("s_endpgm")
    ref = open(f"cdna_kernels/{NAME}.s.ref").read().split("\n")
    head = [l for l in ref if l.startswith(";") and "@launch" not in l]
    out = "\n".join(head) + f"\n; @launch grid=(256,1,1) block=(768,1,1) lds={LDS_TOTAL}\n"
    out += f'.amdgcn_target "amdgcn-amd-amdhsa--gfx950"\n.text\n.globl {NAME}_kernel\n.p2align 8\n.type {NAME}_kernel,@function\n{NAME}_kernel:\n'
    out += "\n".join(k.L).replace("CODE_SPAN", f"Lexit - {NAME}_kernel - 4") + "\n"
    out += f""".section .rodata,"a"
.p2align 6
.amdhsa_kernel {NAME}_kernel
  .amdhsa_next_free_vgpr 168
  .amdhsa_next_free_sgpr 102
  .amdhsa_accum_offset 168
  .amdhsa_group_segment_fixed_size 0
  .amdhsa_kernarg_size 80
  .amdhsa_user_sgpr_count 2
  .amdhsa_user_sgpr_kernarg_segment_ptr 1
  .amdhsa_system_sgpr_workgroup_id_x 1
.end_amdhsa_kernel
"""
    open(path, "w").write(out)
    print("barriers", c1, "lines", len(k.L))
if __name__ == "__main__":
    build(sys.argv[1])
```

```python
import os, struct, sys
NAME = "sequential_preLN__softmax_full_mha__dense_activation_mish__prompt"
STAMP = int(os.environ.get("STAMP", "0"))
E = lambda n, d: int(os.environ.get(n, str(d)))

WS_QF = 0
WS_KV = 2 << 20
WS_OF = 6 << 20
WS_HF = 8 << 20
WS_ST = 10 << 20
WS_C1 = (10 << 20) + (512 << 10)
WS_FL = 11 << 20
WS_AF = 12 << 20
WS_SIZE = 20 << 20
WS_DBG = 24 << 20
LOG2E = 1.4426950408889634
LN2 = 0.6931471805599453
LDS_TOTAL = 163840
def f32(x): return "0x%08x" % struct.unpack("<I", struct.pack("<f", x))[0]
def vr(a, n=1): return f"v{a}" if n == 1 else f"v[{a}:{a+n-1}]"

PX, PWQKV, PWO, PW1, PB1, PW2, POUT, PDBG, PWS = 64, 66, 68, 72, 74, 76, 78, 80, 82
LANE, HH, L16, MM = 0, 1, 2, 3
HSAVE = 160
HO = "sc1"
HOL = os.environ.get("HOL", "sc1")

class K:
    def __init__(self):
        self.L = []
        self.bars = 0
        self.uid = 0
    def __call__(self, s):
        for line in s.strip("\n").split("\n"):
            line = line.strip()
            if line: self.L.append("    " + line)
    def label(self, l): self.L.append(f"{l}:")
    def new(self, p):
        self.uid += 1
        return f"L{p}_{self.uid}"
    def bar(self, n=1):
        self("s_barrier"); self.bars += n
    def mark(self, i):
        if STAMP:
            self(f"{'s_memtime' if E('CYC', 0) else 's_memrealtime'} s[86:87]\ns_waitcnt lgkmcnt(0)\ns_mov_b32 s{88+i}, s86")
    def srd(self, d, base, nbytes):
        self(f"s_mov_b32 s{d}, s{base}\ns_mov_b32 s{d+1}, s{base+1}\ns_mov_b32 s{d+2}, {nbytes}\ns_mov_b32 s{d+3}, 0x00020000")
    def mfma_s(self, d, a, b, c=None):
        cs = vr(d, 16) if c is None else (c if isinstance(c, str) else vr(c, 16))
        return f"v_mfma_f32_32x32x16_bf16 {vr(d,16)}, {vr(a,4)}, {vr(b,4)}, {cs}"
    def mfma(self, d, a, b, c=None): self(self.mfma_s(d, a, b, c))
    def idle_bars(self, n):
        if n == 0: return
        l = self.new("idle")
        self(f"s_mov_b32 s34, {n}")
        self.label(l)
        self(f"s_barrier\ns_sub_u32 s34, s34, 1\ns_cmp_lg_u32 s34, 0\ns_cbranch_scc1 {l}")
        self.bars += n

def xhalf_sum(k, x, tmp):
    k(f"v_mov_b32 v{tmp}, v{x}\ns_nop 1\nv_permlane32_swap_b32 v{x}, v{tmp}\ns_nop 1\nv_add_f32 v{x}, v{x}, v{tmp}")
def split_hilo(k, x, hi, lo, tmp):
    k(f"v_cvt_pk_bf16_f32 v{tmp}, v{x}, v{x}\nv_and_b32 v{hi}, 0xffff0000, v{tmp}\nv_sub_f32 v{lo}, v{x}, v{hi}")

def w_tr_addr(k, dst, tmp, tmp2, half_sgpr, hstride, base):
    k(f"""
    v_mul_u32_u24 v{dst}, {hstride}, v{HH}
    v_bfe_u32 v{tmp}, v0, 2, 2
    v_lshl_add_u32 v{dst}, v{tmp}, 7, v{dst}
    v_bfe_u32 v{tmp}, v0, 4, 1
    v_lshlrev_b32 v{tmp}, 5, v{tmp}
    v_and_b32 v{tmp2}, 3, v0
    v_lshl_add_u32 v{tmp}, v{tmp2}, 3, v{tmp}
    v_add_u32 v{tmp}, s{half_sgpr}, v{tmp}
    v_bfe_u32 v{tmp2}, v0, 3, 1
    v_lshlrev_b32 v{tmp2}, 6, v{tmp2}
    v_xor_b32 v{tmp}, v{tmp}, v{tmp2}
    v_add_u32 v{dst}, v{dst}, v{tmp}
    """)
    if base: k(f"v_add_u32 v{dst}, {base}, v{dst}")

def w_dma_voff(k, dst, tmp, tmp2, pitch, row_sgpr, col_sgpr):
    k(f"""
    v_lshrrev_b32 v{tmp}, 3, v0
    v_add_u32 v{tmp}, s{row_sgpr}, v{tmp}
    v_mul_u32_u24 v{dst}, {pitch}, v{tmp}
    v_and_b32 v{tmp}, 7, v0
    v_bfe_u32 v{tmp2}, v0, 4, 1
    v_lshlrev_b32 v{tmp2}, 2, v{tmp2}
    v_xor_b32 v{tmp}, v{tmp}, v{tmp2}
    v_lshl_add_u32 v{dst}, v{tmp}, 4, v{dst}
    v_add_u32 v{dst}, s{col_sgpr}, v{dst}
    """)

def x_dma_voff(k, dst0, dst1, tmp, tmp2, row0_sgpr, col_sgpr):
    k(f"""
    v_lshrrev_b32 v{tmp}, 3, v0
    v_add_u32 v{tmp}, s{row0_sgpr}, v{tmp}
    v_lshlrev_b32 v{dst0}, 10, v{tmp}
    v_add_u32 v{dst0}, s{col_sgpr}, v{dst0}
    v_add_u32 v{dst1}, 8192, v{dst0}
    v_and_b32 v{tmp}, 7, v0
    v_lshrrev_b32 v{tmp2}, 4, v0
    v_xor_b32 v{tmp}, v{tmp}, v{tmp2}
    v_lshl_add_u32 v{dst0}, v{tmp}, 4, v{dst0}
    v_xor_b32 v{tmp}, 4, v{tmp}
    v_lshl_add_u32 v{dst1}, v{tmp}, 4, v{dst1}
    """)

class Ops:
    def __init__(self, k): self.k = k; self.ops = []
    def add(self, tag, n): self.ops += [tag] * n
    def wait(self, tags):
        idx = [i for i, t in enumerate(self.ops) if t in tags]
        if not idx: return
        n = len(self.ops) - 1 - max(idx)
        assert n <= 63, n
        self.k(f"s_waitcnt vmcnt({n})")

def interleave(mf, rd):
    out = []
    n, m = len(mf), len(rd)
    j = 0
    for i, x in enumerate(mf):
        out.append(x)
        tgt = (m * (i + 1) + n - 1) // n
        while j < tgt:
            out.append(rd[j]); j += 1
    return out

def compute_loop(k, S, SPS, reads, work, addr_update, sctr, pair=False, pre_first=None, hook=None, front=0, tail=None, mbar=False, skip_last=False):
    assert S % 2 == 0 and S >= 4
    if E("AB_NOMFMA", 0):
        work0 = work
        work = lambda ks, st: ["s_nop 0"] * len(work0(ks, st))
    if E("AB_NOREAD", 0):
        reads0 = reads
        reads = lambda ks, st: reads0(ks, st)[:1]
    R = len(reads(0, 0))
    def emit(lst, out=0):
        for x in lst:
            if x.startswith("ds_"):
                if out >= 15:
                    k("s_waitcnt lgkmcnt(12)"); out = 12
                out += 1
            k(x)
    allreads = lambda b: [x for ks in range(SPS) for x in reads(ks, b)]
    allwork = lambda b: [x for ks in range(SPS) for x in work(ks, b)]
    def body(b):
        w = allwork(1-b)
        n = len(w) - 1 if not front else len(w) // front
        emit(interleave(w[:n], allreads(b)) + w[n:])
    k.bar()
    if pre_first: pre_first()
    emit(allreads(0))
    if not pair: addr_update()
    k(f"s_mov_b32 s{sctr}, {(S-2)//2 - (1 if skip_last else 0)}")
    l = k.new("cl")
    k.label(l)
    k("s_waitcnt lgkmcnt(0)")
    if not pair: k("s_barrier")
    body(1)
    addr_update()
    k(f"s_sub_u32 s{sctr}, s{sctr}, 1")
    k("s_waitcnt lgkmcnt(0)")
    k("s_barrier")
    body(0)
    if hook: hook()
    if not pair: addr_update()
    k(f"s_cmp_lg_u32 s{sctr}, 0\ns_cbranch_scc1 {l}")
    k.bars += (S-2)//2 * (1 if pair else 2)
    if skip_last:
        assert pair
        k.bars -= 1
        k("s_waitcnt lgkmcnt(0)")
        body(1)
        addr_update()
        k("s_waitcnt lgkmcnt(0)")
        body(0)
    if pair:
        if tail: tail[0]()
        k("s_waitcnt lgkmcnt(0)")
        if tail: tail[1]()
        body(1)
    else:
        for ks in range(SPS):
            k(f"s_waitcnt lgkmcnt({min(15, (SPS-ks-1)*R)})")
            for x in work(ks, 0): k(x)
        if tail: tail[0]()
        k.bar()
        emit(allreads(1))
    for ks in range(SPS):
        k(f"s_waitcnt lgkmcnt({min(15, (SPS-ks-1)*R)})")
        if mbar and ks == SPS-1:
            if callable(mbar): mbar()
            else: k.bar()
        for x in work(ks, 1): k(x)

W2X = E('W2X', 0)
def ring_loader_main(k, ops, S, DA, DW, LA, issueA, issueW, na, nw, extra_need=None, after_bar=None, ldsw=False, LA2=None, bmark=0, wdelay=0, merge_last=False):
    while na < min(LA, S, DA):
        issueA(na); na += 1
    for s in range(S - (1 if merge_last else 0)):
        need = {("A", s), ("W", s)} | set((extra_need or {}).get(s, []))
        if merge_last and s == S-2: need |= {("A", S-1), ("W", S-1)}
        ops.wait(need)
        if ldsw and s >= DW: k("s_waitcnt lgkmcnt(0)")
        if bmark == 1: k.mark(s+1)
        k.bar()
        if bmark == 2: k.mark(s+1)
        for rep in range(2 if LA2 else 1):
            if na < S and (na < DA or na - DA <= s - 1) and na <= s + (LA2 or LA) and (rep == 0 or s >= 1):
                issueA(na); na += 1
        for rep in range(2):
            if nw < S and (nw < DW or (nw - DW <= s - 1 - wdelay and rep == 0)) and (rep == 0 or W2X):
                issueW(nw); nw += 1
        if after_bar and s in after_bar: after_bar[s]()
    assert na == S and nw == S, (na, nw)

def ring_step(k, s, size, total):
    k(f"s_add_u32 s{s}, s{s}, {size}\ns_cmp_eq_u32 s{s}, {total}\ns_cselect_b32 s{s}, 0, s{s}")

def poll_addr(k, in_arr, in_line_sgpr, n_in):
    if n_in > 0:
        k(f"""
        s_lshl_b32 s44, s{in_line_sgpr}, 7
        s_add_u32 s44, s44, {WS_FL + in_arr*32768}
        v_lshlrev_b32 v6, 7, v0
        s_mov_b32 s48, {hex((1 << n_in) - 1)}
        s_mov_b32 s49, 0
        """)
    else:
        k(f"""
        s_mov_b32 s44, {WS_FL + in_arr*32768}
        v_add_u32 v6, s{in_line_sgpr}, v0
        s_lshl_b32 s45, s27, 1
        s_min_u32 s45, s45, 26
        v_bfe_u32 v7, v0, 3, 1
        v_add_u32 v7, s45, v7             ; idx
        v_lshrrev_b32 v8, 2, v7
        v_lshlrev_b32 v8, 5, v8
        v_and_b32 v7, 3, v7
        v_add_u32 v8, v8, v7
        v_and_b32 v7, 7, v0
        v_lshl_add_u32 v8, v7, 2, v8
        v_cmp_lt_u32 vcc, 31, v0
        s_mov_b32 s48, -1
        s_mov_b32 s49, 0xffff
        v_cndmask_b32 v6, v6, v8, vcc
        v_lshlrev_b32 v6, 7, v6
        """)

def poll_issue(k):
    k(f"""
    s_mov_b64 exec, s[48:49]
    buffer_load_dwordx2 v[8:9], v6, s[12:15], s44 offen {HO}
    s_mov_b64 exec, -1
    """)

def poll_loop(k):
    lp, done = k.new("poll"), k.new("polld")
    k("s_mov_b32 s45, 30000\ns_mov_b64 exec, s[48:49]")
    k.label(lp)
    k(f"""
    s_waitcnt vmcnt(0)
    v_cmp_ne_u64 vcc, s[84:85], v[8:9]
    s_cbranch_vccz {done}
    {"s_mov_b64 exec, vcc" if E("PMASK", 1) else ""}
    {"s_sleep %d" % E("PSLEEP", 0) if E("PSLEEP", 0) else ""}
    buffer_load_dwordx2 v[8:9], v6, s[12:15], s44 offen {HO}
    s_sub_u32 s45, s45, 1
    s_cmp_lg_u32 s45, 0
    s_cbranch_scc1 {lp}
    """)
    k.label(done)
    k("s_mov_b64 exec, -1")
```

```python
import sys, os
from fz import *

A_DP = 4
A_SUB = 12288
A_WB = 65536
A_RS = LDS_TOTAL - 256
assert A_WB + A_DP*2*A_SUB <= LDS_TOTAL
B_SLAB = 141312
B_SYNC = 157696
ONESB = 131072
C_W, C_A, C_X = 0, 65536, 149504
D_DW, D_DA = E("D_DW", 5), E("D_DA", 4)
D_W, D_A, D_ST = 0, D_DW*16384, (D_DW+D_DA)*16384
assert D_ST + 8192 <= LDS_TOTAL
E_DW, E_DA = 12, 4
E_S = 14
E_NR = 12
RW = 72
GB = E('GB', 14)
GW = E('GW', 63)
DTAIL = E('DTAIL', 0)
MISH2 = E('MISH2', 1)
ETAIL = E('ETAIL', 1)
E_PB = 4*8192
E_W, E_A = 0, E_DW*8192
assert E_DW*8192 + E_DA*16384 <= LDS_TOTAL
STG = 24
MT64, NT8, HEAD, QB, MT128, NT14 = 22, 23, 24, 25, 26, 27
MTA, NTA = 56, 57
NT_A = "nt" if E("NT_A", 0) else ""
NT_B = "nt" if E("NT_B", 0) else ""
NT_W1 = "nt" if E("NT_W1", 0) else ""
NT_WO = "nt" if E("NT_WO", 0) else ""
NT_OH = "nt" if E("NT_OH", 0) else ""

def stamp_out(k):
    if not STAMP: return
    if E("DBGW", 0):
        l = k.new("nodbg")
        k(f"""
        s_cmp_lg_u32 s2, {E("DBGWG", 0)}
        s_cbranch_scc1 {l}
        s_cmp_lg_u32 s3, 4
        s_cbranch_scc1 {l}
        s_waitcnt vmcnt(0) lgkmcnt(0)
        s_memrealtime s[60:61]
        s_memtime s[86:87]
        s_waitcnt lgkmcnt(0)
        s_sub_u32 s86, s86, s62
        s_sub_u32 s60, s60, s63
        s_mov_b64 exec, 1
        v_mov_b32 v0, 0
        v_mov_b32 v4, s60
        v_mov_b32 v5, s86
        global_store_dwordx2 v0, v[4:5], s[80:81] offset:8
        """)
        for j in range(3):
            for i in range(4): k(f"s_sub_u32 s{88+4*j+i}, s{88+4*j+i}, s63\nv_mov_b32 v{8+4*j+i}, s{88+4*j+i}")
            k(f"global_store_dwordx4 v0, v[{8+4*j}:{11+4*j}], s[80:81] offset:{16+16*j}")
        k.label(l)
        return
    k(f"""
    s_waitcnt vmcnt(0) lgkmcnt(0)
    s_memrealtime s[60:61]
    s_memtime s[86:87]
    s_lshl_b32 s44, s2, 4
    s_add_u32 s44, s44, s3
    s_lshl_b32 s44, s44, 6
    s_add_u32 s44, s44, {WS_DBG}
    s_waitcnt lgkmcnt(0)
    s_sub_u32 s86, s86, s62
    s_mov_b64 exec, 1
    v_mov_b32 v0, s44
    v_mov_b32 v4, s63
    v_mov_b32 v5, s60
    v_mov_b32 v6, s86
    v_mov_b32 v7, 0
    global_store_dwordx4 v0, v[4:7], s[82:83]
    """)
    for j in range(3):
        for i in range(4): k(f"v_mov_b32 v{8+4*j+i}, s{88+4*j+i}")
        k(f"global_store_dwordx4 v0, v[{8+4*j}:{11+4*j}], s[82:83] offset:{16+16*j}")

def loader(k):
    cnt = {}
    ops = Ops(k)
    if E("CODEPF", 1):
        lnp = k.new("ncp")
        k(f"""
        s_getpc_b64 s[40:41]
        LPC0:
        s_sub_u32 s40, s40, LPC0 - {NAME}_kernel
        s_subb_u32 s41, s41, 0
        v_lshlrev_b32 v5, 7, v0
        s_lshl_b32 s42, s3, 13
        v_add_u32 v5, s42, v5
        v_min_u32 v5, CODE_SPAN, v5
        global_load_dword v6, v5, s[40:41]
        """)
    k(f"""
    s_add_u32 s28, s{MTA}, s{NTA}
    s_and_b32 s28, s28, 7
    s_mul_i32 s28, s28, {64*3072}
    s_lshl_b32 s29, s3, 3            ; 8*w rows
    s_lshl_b32 s30, s{NTA}, 7
    s_lshl_b32 s33, s3, 10           ; w*1024
    s_lshl_b32 s35, s3, 11           ; w*2048
    s_mul_i32 s31, s3, 3072
    s_add_u32 s31, s31, {A_WB}
    """)
    w_dma_voff(k, 4, 9, 10, 3072, 29, 30)
    k("s_waitcnt lgkmcnt(0)")
    k.srd(16, PWQKV, 512*1536*2)
    k.srd(12, PWS, WS_SIZE)
    if E("TLBW", 0):
        ltl = k.new("tl")
        k(f"""
        v_lshlrev_b32 v9, 21, v0
        s_cmp_lg_u32 s3, 0
        s_cbranch_scc1 {ltl}
        s_mov_b64 exec, 0x3ff
        buffer_load_dword v10, v4, s[16:19], s28 offen
        buffer_load_dword v11, v9, s[12:15], 0 offen
        s_mov_b64 exec, -1
        """)
        k.label(ltl)
    PBAR = E("PBAR", 0)
    def issueW_A(p):
        b = (p % A_DP) * 2*A_SUB
        k(f"s_add_u32 m0, s31, {b}\ns_add_u32 s32, s28, {32*3072}")
        for pn in range(3): k(f"buffer_load_dwordx4 v4, s[16:19], s28 offen offset:{pn*1024} {NT_A} lds")
        k(f"s_add_u32 m0, s31, {b + A_SUB}")
        ring_step(k, 28, 64*3072, 512*3072)
        n2 = 2 if p == 3 else 3
        for pn in range(n2): k(f"buffer_load_dwordx4 v4, s[16:19], s32 offen offset:{pn*1024} {NT_A} lds")
        if p == 3: k("s_mov_b32 s36, s32")
        ops.add(("W", p), 3 + n2)
    def late_piece():
        k(f"s_add_u32 m0, s31, {3*2*A_SUB + A_SUB}\ns_nop 0")
        k(f"buffer_load_dwordx4 v4, s[16:19], s36 offen offset:2048 {NT_A} lds")
        ops.add(("W", 3), 1)
    def issueW_A2(p):
        if p == 4: late_piece()
        issueW_A(p)
    for p in range(E("A_PRE", 2)):
        if p == PBAR: k.bar()
        issueW_A(p)
    k.mark(0)
    ring_loader_main(k, ops, 8, 99, A_DP, 99, None, issueW_A2, 8, E("A_PRE", 2), bmark=E("AMARK", 0))
    if E("AMARK", 0): k.mark = lambda i: None
    k.mark(1)
    k.bar()
    if E('FBAR', 1): k.bar()
    k(f"""
    s_lshl_b32 s28, s{HEAD}, 17
    s_add_u32 s28, s28, s33
    s_add_u32 s28, s28, {WS_KV}
    s_lshl_b32 s29, s3, 2
    s_add_u32 s29, s29, {B_SYNC}
    v_mov_b32 v22, s29
    v_mov_b32 v23, 0
    ds_write_b32 v22, v23
    """)
    k.srd(16, PWO, 512*1024)
    k.srd(36, PW1, 512*3584)
    k.srd(48, PW2, 1792*1024)
    k.srd(52, PX, 2048*1024)
    k(f"""
    s_lshl_b32 s29, s3, 4            ; 16w
    s_lshl_b32 s30, s{NT8}, 7
    s_lshl_b32 s31, s{MT64}, 6
    s_add_u32 s31, s31, s29
    s_lshl_b32 s32, s{NT14}, 8
    """)
    w_dma_voff(k, 4, 5, 6, 1024, 29, 30)
    x_dma_voff(k, 7, 8, 5, 6, 31, 30)
    w_dma_voff(k, 9, 5, 6, 3584, 29, 32)
    k(f"""
    v_lshlrev_b32 v5, 7, v0
    v_lshrrev_b32 v11, 4, v0
    v_mul_u32_u24 v11, 3584, v11
    v_and_b32 v12, 15, v0
    v_min_u32 v12, 13, v12
    v_lshl_add_u32 v11, v12, 7, v11
    s_lshl_b32 s41, s21, 2
    s_add_u32 s41, s41, s3
    s_lshl_b32 s42, s41, 13          ; j*8KB
    s_mul_i32 s40, s41, {4*3584}
    s_lshr_b32 s45, s20, 2
    s_mul_i32 s45, s45, 1792
    s_add_u32 s40, s40, s45
    s_add_u32 s47, s42, {768*1024}
    s_lshl_b32 s44, s20, 6
    s_add_u32 s44, s44, s29
    s_min_u32 s45, s21, 27
    s_lshl_b32 s45, s45, 7
    """)
    w_dma_voff(k, 18, 19, 20, 3584, 44, 45)
    k(f"s_mov_b32 s45, 0")
    w_tr_addr(k, 19, 20, 21, 45, 512, B_SLAB)
    k(f"""
    v_add_u32 v19, s35, v19
    v_xor_b32 v21, 64, v19
    v_mov_b32 v24, 0x3f803f80
    v_mov_b32 v25, 0x3f803f80
    v_mov_b32 v26, 0x3f803f80
    v_mov_b32 v27, 0x3f803f80
    s_lshl_b32 s44, s20, 2
    s_add_u32 s44, s44, s3
    s_mul_i32 s44, s44, {1792*4}
    s_lshl_b32 s45, s21, 8
    s_add_u32 s44, s44, s45
    s_add_u32 s44, s44, {WS_C1}
    v_lshlrev_b32 v20, 2, v{MM}
    s_and_b32 s29, s3, 1             ; nh
    s_lshr_b32 s31, s3, 1            ; kh
    s_lshl_b32 s29, s29, 6
    s_lshl_b32 s32, s{NT8}, 7
    s_add_u32 s29, s29, s32
    s_lshl_b32 s31, s31, 15
    s_add_u32 s46, s29, s31
    v_lshrrev_b32 v10, 2, v0
    v_lshlrev_b32 v10, 10, v10
    v_and_b32 v12, 3, v0
    v_lshl_add_u32 v10, v12, 4, v10  ; 16 rows x 64B
    v_add_u32 v17, 16384, v10
    v_lshlrev_b32 v13, 8, v{HH}
    v_bfe_u32 v6, v0, 2, 2
    v_lshl_add_u32 v13, v6, 6, v13
    v_bfe_u32 v6, v0, 4, 1
    v_lshl_add_u32 v13, v6, 5, v13
    v_lshl_add_u32 v13, v12, 3, v13
    s_add_u32 s29, s35, {B_SLAB}
    v_add_u32 v13, s29, v13
    v_add_u32 v12, s29, v{L16}
    v_mov_b32 v23, 1
    s_mov_b32 m0, s33
    s_mov_b32 s30, 29
    s_waitcnt lgkmcnt(0)
    s_setprio 3
    """)
    k.bar()
    cnt['A'] = k.bars
    k.mark(2)
    BWIN = E("B_WIN", 5)
    for i in range(3):
        k(f"buffer_load_dwordx4 v{L16}, s[12:15], s28 offen {HOL} lds\ns_add_u32 m0, m0, 4096\ns_add_u32 s28, s28, 4096")
    k(f"s_waitcnt vmcnt(2)\nds_write_b32 v22, v23\ns_mov_b32 s31, {3 - BWIN}")
    l = k.new("rd")
    k.label(l)
    k(f"""
    buffer_load_dwordx4 v{L16}, s[12:15], s28 offen {HOL} lds
    s_add_u32 m0, m0, 4096
    s_add_u32 s28, s28, 4096
    s_add_u32 s31, s31, 1
    s_max_i32 s32, s31, 1
    v_mov_b32 v23, s32
    s_waitcnt vmcnt({BWIN})
    ds_write_b32 v22, v23
    s_sub_u32 s30, s30, 1
    s_cmp_lg_u32 s30, 0
    s_cbranch_scc1 {l}
    v_mov_b32 v23, 32
    s_waitcnt vmcnt(0)
    ds_write_b32 v22, v23
    """)
    lns = k.new("nosl")
    k(f"""
    buffer_load_dword v14, v5, s[16:19], s42 offen
    buffer_load_dword v15, v11, s[36:39], s40 offen
    buffer_load_dword v16, v5, s[48:51], s47 offen
    s_add_u32 m0, s35, {C_X}
    s_mov_b32 s45, {8*3584}
    buffer_load_dwordx4 v7, s[52:55], 0 offen lds
    s_add_u32 m0, s35, {C_X + 1024}
    s_nop 0
    buffer_load_dwordx4 v8, s[52:55], 0 offen lds
    s_cmp_ge_u32 s2, 224
    s_cbranch_scc1 {lns}
    s_add_u32 m0, s35, {B_SLAB}
    s_nop 0
    buffer_load_dwordx4 v18, s[36:39], 0 offen lds
    s_add_u32 m0, s35, {B_SLAB + 1024}
    s_nop 0
    buffer_load_dwordx4 v18, s[36:39], s45 offen lds
    s_waitcnt vmcnt(0)
    ds_read_b64_tr_b16 v[28:29], v19
    ds_read_b64_tr_b16 v[30:31], v19 offset:1024
    ds_read_b64_tr_b16 v[32:33], v21
    ds_read_b64_tr_b16 v[34:35], v21 offset:1024
    s_waitcnt lgkmcnt(0)
    """)
    k.mfma(36, 24, 28, "0")
    k.mfma(52, 24, 32, "0")
    k(f"""
    s_nop 15
    s_mov_b32 exec_hi, 0
    buffer_store_dword v36, v20, s[12:15], s44 offen {HO}
    buffer_store_dword v52, v20, s[12:15], s44 offen offset:128 {HO}
    s_mov_b64 exec, -1
    """)
    k.label(lns)
    NF = 2*E_NR
    for j in range(NF):
        k(f"buffer_load_dwordx4 {vr(RW+4*j,4)}, v{10 if j % 2 == 0 else 17}, s[48:51], s46 offen")
        if j % 2 == 1: k("s_add_u32 s46, s46, 65536")
    k("s_waitcnt vmcnt(0)")
    def bounce():
        for j in range(0, NF, 2):
            k(f"""
            ds_write_b128 v12, {vr(RW+4*j,4)}
            ds_write_b128 v12, {vr(RW+4*j+4,4)} offset:1024
            ds_read_b64_tr_b16 {vr(RW+4*j,2)}, v13
            ds_read_b64_tr_b16 {vr(RW+4*j+2,2)}, v13 offset:512
            ds_read_b64_tr_b16 {vr(RW+4*j+4,2)}, v13 offset:1024
            ds_read_b64_tr_b16 {vr(RW+4*j+6,2)}, v13 offset:1536
            s_waitcnt lgkmcnt(6)
            """)
        k("s_waitcnt lgkmcnt(0)")
    if E("BOUNCE", 2) == 1:
        k("s_setprio 0"); bounce()
    ops.ops = []
    k.mark(3)
    k.bar()
    if E('FBAR', 1): k.bar()
    k.mark(4)
    k("s_setprio 0")
    def issueW64(wsrd, b):
        for e in range(2):
            k(f"s_add_u32 m0, s35, {b + e*1024}\ns_add_u32 s32, s40, {e*8192}")
            k(f"buffer_load_dwordx4 v4, s[{wsrd}:{wsrd+3}], s32 offen {NT_WO if wsrd == 16 else str()} lds")
        k("s_add_u32 s40, s40, 65536")
    def issueA64(b, KS):
        k(f"s_add_u32 m0, s33, {b}\ns_add_u32 s32, s41, {KS*1024}")
        k(f"buffer_load_dwordx4 v{L16}, s[12:15], s41 offen {HOL} {NT_OH if KS == 32 else str()} lds")
        k(f"s_add_u32 m0, s33, {b + 4096}\ns_add_u32 s41, s41, 4096")
        k(f"buffer_load_dwordx4 v{L16}, s[12:15], s32 offen {HOL} {NT_OH if KS == 32 else str()} lds")
    def setup64(KS, ACT):
        k(f"""
        s_mov_b32 s40, 0
        s_mul_i32 s41, s{MT64}, {2*KS*1024}
        s_add_u32 s41, s41, s33
        s_add_u32 s41, s41, {ACT}
        """)
    setup64(32, WS_OF)
    if E("PRESLEEP", 0): k(f"s_sleep {E('PRESLEEP', 0)}")
    for s in range(8):
        issueW64(16, C_W + s*8192); ops.add(("W", s), 2)
        if E("C_PREWIN", 0) and s < 7: k(f"s_waitcnt vmcnt({E('C_PREWIN', 0)})")
    if GB & 2:
        k(f"s_waitcnt vmcnt({GW})")
        k.bar()
    if E("BOUNCE", 2) == 0: bounce()
    k.bar()
    k("s_setprio 3")
    cnt['B'] = k.bars
    k.mark(5)
    def iAC(s):
        issueA64(C_A + s*8192, 32); ops.add(("A", s), 2)
    SL, LC, LT = 24, 56, 40
    def issue_cols():
        k.srd(16, PB1, 3584)
        k(f"""
        s_min_u32 s44, s{NT14}, 13
        s_lshl_b32 s44, s44, 2
        s_add_u32 s44, s44, s3           ; nt32
        s_lshl_b32 s45, s44, 7
        s_add_u32 s45, s45, {WS_C1}
        s_lshl_b32 s44, s44, 6
        v_lshrrev_b32 v12, 3, v0
        v_mul_u32_u24 v12, {1792*4}, v12
        v_and_b32 v13, 7, v0
        v_lshl_add_u32 v12, v13, 4, v12
        v_lshlrev_b32 v14, 1, v{MM}
        buffer_load_ushort v10, v14, s[16:19], s44 offen
        """)
        for i in range(4):
            k(f"buffer_load_dwordx4 {vr(LC+4*i,4)}, v12, s[12:15], s45 offen {HO}\ns_add_u32 s45, s45, {8*1792*4}")
        ops.add(("CO", 0), 5)
    ring_loader_main(k, ops, 8, 8, 8, E("C_LA", 6), iAC, None, 0, 8, after_bar={3: issue_cols})
    k.bar()
    if E("LLOW", 1): k("s_setprio 0")
    ops.ops = []
    lE = k.new("ldE")
    k(f"""
    s_lshl_b32 s46, s21, 2
    s_add_u32 s46, s46, s3
    s_add_u32 s46, s46, {E("PFB", 96)}
    s_lshl_b32 s46, s46, 13
    """)
    lE0 = k.new("ldE0")
    k(f"s_cmp_ge_u32 s2, 224\ns_cbranch_scc1 {lE0}")
    b0 = k.bars
    k(f"""
    s_mov_b32 s40, 0
    s_lshl_b32 s41, s{MT128}, 2
    s_add_u32 s41, s41, s3
    s_lshl_b32 s43, s41, 12
    s_add_u32 s43, s43, {WS_ST}
    s_lshl_b32 s41, s41, 15
    s_add_u32 s41, s41, {WS_HF}
    s_lshl_b32 s42, s3, 12           ; w*4096
    """)
    def issueW_D(s):
        b = D_W + (s % D_DW) * 16384
        for i in range(4):
            pn, e = i >> 1, i & 1
            k(f"s_add_u32 m0, s35, {b + pn*8192 + e*1024}\ns_add_u32 s32, s40, {e*8*3584 + pn*128}")
            k(f"buffer_load_dwordx4 v9, s[36:39], s32 offen {NT_W1} lds")
        k(f"s_add_u32 s40, s40, {64*3584}")
        ops.add(("W", s), 4)
    def issueA_D(s):
        k(f"s_add_u32 m0, s42, {D_A + (s % D_DA) * 16384}\ns_nop 0")
        for i in range(4):
            k(f"buffer_load_dwordx4 v{L16}, s[12:15], s41 offen offset:{i*1024} {HOL} {NT_OH} lds")
        k("s_add_u32 s41, s41, 4096")
        ops.add(("A", s), 4)
    def issue_stats():
        k("v_lshlrev_b32 v12, 3, v0")
        for i in range(8):
            k(f"buffer_load_dwordx2 {vr(SL+2*i,2)}, v12, s[12:15], s43 offen offset:{i*512} {HO}")
        ops.add(("ST", 0), 8)
    def prep_stats():
        ops.wait({("ST", 0)})
        b, MB, RS = SL, LT+12, LT+4
        for i in range(1, 8):
            k(f"v_add_f32 v{b}, v{b}, v{b+2*i}\nv_add_f32 v{b+1}, v{b+1}, v{b+2*i+1}")
        xhalf_sum(k, b, LT)
        xhalf_sum(k, b+1, LT)
        k(f"""
        v_mul_f32 v{b}, {f32(-1.0/512)}, v{b}
        v_mul_f32 v{b+1}, {f32(1.0/512)}, v{b+1}
        v_fma_f32 v{b+1}, -v{b}, v{b}, v{b+1}
        v_max_f32 v{b+1}, 0, v{b+1}
        v_add_f32 v{b+1}, {f32(1e-5)}, v{b+1}
        v_rsq_f32 v{RS}, v{b+1}
        s_nop 0
        v_mul_f32 v{b+1}, v{b+1}, v{RS}
        v_mul_f32 v{MB+3}, {f32(LOG2E)}, v{RS}
        """)
        split_hilo(k, b, LT, LT+1, LT+2)
        k(f"v_cvt_pk_bf16_f32 v{MB}, v{LT}, v{LT+1}")
        split_hilo(k, b+1, LT+3, LT+1, LT+2)
        k(f"v_cvt_pk_bf16_f32 v{MB+1}, v{LT}, v{LT+3}\nv_cvt_pk_bf16_f32 v{MB+2}, v{LT+1}, 0")
        k(f"ds_write_b128 v11, {vr(MB,4)} offset:4096\ns_waitcnt lgkmcnt(0)")
    def retouch():
        if E("W2MODE", 1) == 1:
            k("buffer_load_dword v16, v5, s[48:51], s47 offen"); ops.add(("PF", 0), 1)
    def prep_cols():
        OA = LT+8
        for j in range(4):
            k(f"v_add_f32 v{LC+j}, v{LC+j}, v{LC+4+j}\nv_add_f32 v{LC+8+j}, v{LC+8+j}, v{LC+12+j}")
        for j in range(4): k(f"v_add_f32 v{LC+j}, v{LC+j}, v{LC+8+j}")
        k(f"""
        v_add_u32 v11, s33, v{L16}
        v_add_u32 v11, {D_ST}, v11
        ds_write_b128 v11, {vr(LC,4)}
        v_lshlrev_b32 v12, 9, v{HH}
        v_lshl_add_u32 v12, v{MM}, 2, v12
        v_add_u32 v12, s33, v12
        v_add_u32 v12, {D_ST}, v12
        v_cmp_gt_u32 vcc, 32, v0
        s_waitcnt lgkmcnt(0)
        ds_read2_b32 {vr(LC,2)}, v12 offset0:0 offset1:32
        ds_read2_b32 {vr(LC+2,2)}, v12 offset0:64 offset1:96
        v_cndmask_b32 v{LC+4}, 0, v10, vcc
        s_waitcnt lgkmcnt(0)
        v_add_f32 v{LC}, v{LC}, v{LC+1}
        v_add_f32 v{LC+2}, v{LC+2}, v{LC+3}
        v_add_f32 v{LC}, v{LC}, v{LC+2}
        """)
        split_hilo(k, LC, LT, LT+1, LT+2)
        k(f"""
        v_cvt_pk_bf16_f32 v{OA}, v{LT}, v{LT}
        v_cvt_pk_bf16_f32 v{OA+1}, v{LT+1}, 0
        v_lshl_or_b32 v{OA+1}, v{LC+4}, 16, v{OA+1}
        v_mov_b32 v{OA+2}, v{LC+4}
        v_mov_b32 v{OA+3}, 0
        ds_write_b128 v11, {vr(OA,4)}
        """)
    DP1 = E("D_PRE1", 2)
    for s in range(DP1):
        issueW_D(s)
        if E("D_PREWIN", 4): k(f"s_waitcnt vmcnt({E('D_PREWIN', 4)})")
    k.bar()
    if E('FBAR', 1): k.bar()
    if DP1 < D_DW and E("PRESLEEP", 0): k(f"s_sleep {E('PRESLEEP', 0)}")
    for s in range(DP1, D_DW):
        issueW_D(s)
        if E("D_PREWIN", 4) and s < D_DW-1: k(f"s_waitcnt vmcnt({E('D_PREWIN', 4)})")
    if GB & 4:
        k(f"s_waitcnt vmcnt({GW})")
        k.bar()
    prep_cols()
    k("s_setprio 3")
    k.bar()
    k.mark(6)
    if E("DMARK", 0): k.mark(0)
    ring_loader_main(k, ops, 8, D_DA, D_DW, E("D_LA", 3), issueA_D, issueW_D, 0, D_DW,
                     after_bar=({3: issue_stats, 5: prep_stats, 6: retouch} if DTAIL else {4: issue_stats, 6: prep_stats, 5: retouch}), bmark=E("DMARK", 0), merge_last=bool(DTAIL))
    k.bar()
    if E("LLOW", 1): k("s_setprio 0")
    if E("DMARK", 0):
        k.mark(9); k.mark = lambda i: None
    cnt['Dextra'] = k.bars - b0
    ops.ops = []
    k(f"s_branch {lE}")
    k.label(lE0)
    k.label(lE)
    k.mark(7)
    k(f"s_mov_b32 s40, {E_NR*65536}")
    EP1 = E("E_PRE1", 6)
    for s in range(EP1):
        issueW64(48, E_W + s*8192)
    def bounce2():
        k(f"""
        v_and_b32 v12, 3, v0
        v_lshlrev_b32 v13, 8, v{HH}
        v_bfe_u32 v6, v0, 2, 2
        v_lshl_add_u32 v13, v6, 6, v13
        v_bfe_u32 v6, v0, 4, 1
        v_lshl_add_u32 v13, v6, 5, v13
        v_lshl_add_u32 v13, v12, 3, v13
        s_add_u32 s29, s35, {E_A}
        v_add_u32 v13, s29, v13
        v_add_u32 v12, s29, v{L16}
        """)
        bounce()
    lb1, lb2 = k.new("b1"), k.new("b2")
    if E("BOUNCE", 2) == 2:
        fb = "\ns_barrier" if E("FBAR", 1) else ""
        k(f"s_cmp_lt_u32 s2, 224\ns_cbranch_scc1 {lb1}\ns_barrier{fb}")
        k.label(lb1)
        bounce2()
        k(f"s_cmp_ge_u32 s2, 224\ns_cbranch_scc1 {lb2}\ns_barrier{fb}")
        k.label(lb2)
        k.bars += 2 if E("FBAR", 1) else 1
    else:
        k.bar()
        if E('FBAR', 1): k.bar()
    for s in range(EP1, E_DW):
        issueW64(48, E_W + s*8192)
        if E("E_PREWIN", 4): k(f"s_waitcnt vmcnt({E('E_PREWIN', 4)})")
    lrt = k.new("rt")
    k(f"s_cmp_lt_u32 s2, 224\ns_cbranch_scc1 {lrt}\nbuffer_load_dword v16, v5, s[48:51], s47 offen")
    k.label(lrt)
    assert ((GB >> 2) & 1) == ((GB >> 3) & 1)
    if GB & 8:
        k(f"s_waitcnt vmcnt({GW})")
        k.bar()
    RA, RB = 24, (56, 8)
    k(f"""
    s_waitcnt vmcnt(0)
    s_lshr_b32 s29, s3, 1
    s_lshl_b32 s30, s29, 11
    s_add_u32 s30, s30, {E_A}
    v_add_u32 v6, s30, v{L16}
    s_lshl_b32 s29, s29, 14
    s_and_b32 s30, s3, 1
    s_lshl_b32 s30, s30, 13
    s_add_u32 s29, s29, s30
    s_add_u32 s29, s29, {E_PB}
    v_add_u32 v7, s29, v{L16}
    s_setprio 0
    """)
    k.bar()
    k.mark(8)
    def r_reads(s):
        b = RB[s & 1]
        return [f"ds_read_b128 {vr(b+8*kk+4*ms,4)}, v6 offset:{(s % E_DA)*16384 + 8192 + ms*4096 + kk*1024}" for kk in range(2) for ms in range(2)]
    def r_work(s):
        b = RB[s & 1]
        return [k.mfma_s(RA+16*ms, RW+4*(2*s+kk), b+8*kk+4*ms, "0" if (s == 0 and kk == 0) else None) for kk in range(2) for ms in range(2)]
    for s in range(E_NR):
        if s > 0: k("s_waitcnt lgkmcnt(0)")
        k.bar()
        if s == 0:
            for x in r_reads(0): k(x)
        else:
            w = r_work(s-1)
            for x in interleave(w[:2], r_reads(s)) + w[2:]: k(x)
    k("s_waitcnt lgkmcnt(0)")
    for x in r_work(E_NR-1): k(x)
    k.bar()
    k("s_nop 10")
    wr = [f"ds_write_b128 v7, {vr(RA+16*ms+4*g,4)} offset:{ms*4096 + g*1024}" for ms in range(2) for g in range(4)]
    for grp in ((wr[:3], wr[3:6], wr[6:] + ["s_waitcnt lgkmcnt(0)"]) if ETAIL else (wr + ["s_waitcnt lgkmcnt(0)"],)):
        for x in grp: k(x)
        k.bar()
    cnt['total'] = k.bars
    k.mark(9)
    stamp_out(k)
    k("s_endpgm")
    return cnt

def compute(k):
    cnt = {}
    CW = 28
    k(f"s_sub_u32 s{CW}, s3, 4")
    X, T = 64, 128
    ACC = 16
    k(f"""
    s_lshl_b32 s29, s{MTA}, 6
    s_lshl_b32 s30, s{CW}, 3
    s_add_u32 s29, s29, s30          ; row0
    v_lshrrev_b32 v6, 3, v0
    v_add_u32 v7, s29, v6
    v_lshlrev_b32 v7, 10, v7
    v_and_b32 v8, 7, v0
    v_lshl_add_u32 v7, v8, 4, v7
    s_add_u32 s33, s{MTA}, s{NTA}
    s_lshl_b32 s33, s33, 7
    s_and_b32 s33, s33, 1023
    s_waitcnt lgkmcnt(0)
    """)
    k.srd(16, PX, 2048*1024)
    for i in range(8):
        k(f"buffer_load_dwordx4 {vr(X+4*i,4)}, v7, s[16:19], s33 offen {NT_A}")
        if i < 7: k("s_add_u32 s33, s33, 128\ns_and_b32 s33, s33, 1023")
        if i == 0 and E("XMARK", 0): k.mark(2)
    k.bar()
    if E("XMARK", 0): k.mark(3)
    k.srd(12, PWS, WS_SIZE)
    k(f"""
    s_lshr_b32 s29, s{CW}, 2
    s_lshl_b32 s29, s29, 15
    s_and_b32 s30, s{CW}, 3
    s_lshl_b32 s30, s30, 7
    s_add_u32 s29, s29, s30
    v_xor_b32 v9, v6, v8
    v_lshlrev_b32 v9, 4, v9
    v_lshl_add_u32 v9, v8, 9, v9
    v_add_u32 v9, s29, v9
    s_lshl_b32 s30, s{CW}, 5
    s_add_u32 s30, s30, {A_RS}
    v_lshlrev_b32 v10, 2, v6
    v_add_u32 v10, s30, v10
    v_mov_b32 v{T}, 0x3f803f80
    v_mov_b32 v{T+1}, 0x00003f80
    v_mov_b32 v{T+2}, 0x3f800000
    s_and_b32 s29, s{CW}, 1          ; ms
    s_bfe_u32 s30, s{CW}, 0x10001    ; nh
    s_lshl_b32 s31, s30, 6
    """)
    CX, AW, CWA, VA = 4, 11, 12, 15
    w_tr_addr(k, AW, 13, 14, 31, 3072, A_WB)
    k(f"""
    s_lshl_b32 s32, s29, 15
    v_xor_b32 v13, v{MM}, v{HH}
    v_lshlrev_b32 v13, 4, v13
    v_lshlrev_b32 v14, 9, v{HH}
    v_add_u32 v14, s32, v14
    """)
    for ks in range(4):
        k(f"v_xor_b32 v{CX+ks}, {ks*32}, v13\nv_add_u32 v{CX+ks}, v{CX+ks}, v14")
    k(f"""
    v_mov_b32 v{CWA}, v{AW}
    s_mov_b32 s35, 0
    s_lshl_b32 s36, s29, 7
    s_add_u32 s36, s36, {A_RS}
    v_lshlrev_b32 v13, 2, v{MM}
    v_add_u32 v13, s36, v13
    v_lshlrev_b32 v14, 4, v{HH}
    v_add_u32 v14, s36, v14
    s_lshl_b32 s32, s{NTA}, 2
    s_lshl_b32 s33, s30, 1
    s_add_u32 s32, s32, s33            ; head0
    s_lshl_b32 s33, s{MTA}, 1
    s_add_u32 s33, s33, s29
    s_lshl_b32 s39, s32, 16
    s_lshl_b32 s36, s33, 10
    s_add_u32 s39, s39, s36
    s_add_u32 s39, s39, {WS_QF}
    s_add_u32 s36, s39, 65536
    s_lshl_b32 s37, s32, 17
    s_lshl_b32 s38, s33, 11
    s_add_u32 s37, s37, s38
    s_add_u32 s37, s37, {WS_KV}
    s_add_u32 s38, s37, 131072
    v_and_b32 v{VA}, 15, v0
    v_lshlrev_b32 v{VA}, 4, v{VA}
    v_lshl_add_u32 v{VA}, v{HH}, 8, v{VA}
    v_bfe_u32 v{T+6}, v0, 4, 1
    v_lshl_add_u32 v{VA}, v{T+6}, 17, v{VA}
    """)
    for i in range(48): k(f"v_mov_b32 v{ACC+i}, 0")
    SA, SB, QA, QB_, TM = T+4, T+5, T+6, T+7, T+8
    for r_ in (SA, SB, QA, QB_): k(f"v_mov_b32 v{r_}, 0")
    for i in range(8):
        k(f"s_waitcnt vmcnt({7-i})")
        for j in range(4):
            k(f"v_dot2_f32_bf16 v{SA+(j&1)}, v{X+4*i+j}, v{T}, v{SA+(j&1)}")
            k(f"v_dot2_f32_bf16 v{QA+(j&1)}, v{X+4*i+j}, v{X+4*i+j}, v{QA+(j&1)}")
    k.mark(0)
    k(f"s_nop 1\nv_add_f32 v{SA}, v{SA}, v{SB}\nv_add_f32 v{QA}, v{QA}, v{QB_}")
    for ctl in ("quad_perm:[1,0,3,2]", "quad_perm:[2,3,0,1]", "row_half_mirror"):
        k(f"s_nop 0\nv_add_f32_dpp v{SA}, v{SA}, v{SA} {ctl} row_mask:0xf bank_mask:0xf")
        k(f"v_add_f32_dpp v{QA}, v{QA}, v{QA} {ctl} row_mask:0xf bank_mask:0xf")
    NM = SA
    k(f"v_mul_f32 v{NM}, {f32(-1.0/512)}, v{SA}\nv_mul_f32 v{QA}, {f32(1.0/512)}, v{QA}")
    fin = [f"v_fma_f32 v{QA}, -v{NM}, v{NM}, v{QA}", f"v_max_f32 v{QA}, 0, v{QA}", f"v_add_f32 v{QA}, {f32(1e-5)}, v{QA}", f"v_rsq_f32 v{QA}, v{QA}"]
    for i in range(9):
        t = TM + 8*(i & 1)
        if i < 8:
            for j in range(4):
                k(f"v_dot2_f32_bf16 v{t+2*j}, v{X+4*i+j}, v{T+1}, v{NM}")
                k(f"v_dot2_f32_bf16 v{t+2*j+1}, v{X+4*i+j}, v{T+2}, v{NM}")
        else:
            for x_ in fin: k(x_)
        if i > 0:
            tp = TM + 8*((i-1) & 1)
            for j in range(4):
                k(f"v_cvt_pk_bf16_f32 v{X+4*(i-1)+j}, v{tp+2*j}, v{tp+2*j+1}")
            k(f"ds_write_b128 v9, {vr(X+4*(i-1),4)} offset:{(i-1)*4096}")
    k(f"ds_write_b32 v10, v{QA}")
    lhiA, lendA = k.new("hiA"), k.new("endA")
    k(f"s_waitcnt lgkmcnt(0)")
    k.mark(1)
    k(f"s_cmp_ge_u32 s{CW}, 4\ns_cbranch_scc1 {lhiA}")
    b0 = k.bars
    RSTD, RF, BUF = T+3, T+8, X
    def pre_first():
        k(f"ds_read_b32 v{RSTD}, v13")
        for g in range(4): k(f"ds_read_b128 {vr(RF+4*g,4)}, v14 offset:{g*32}")
        k("s_waitcnt lgkmcnt(1)")
    def reads(ks, st):
        b = BUF + 16*ks + 32*st
        r = [f"ds_read_b128 {vr(b,4)}, v{CX+2*st+ks} offset:{(2*st+ks)*1024}"]
        for pn in range(3):
            for t in range(2):
                r.append(f"ds_read_b64_tr_b16 {vr(b+4+4*pn+2*t,2)}, v{CWA} offset:{st*A_SUB + ks*6144 + pn*1024 + t*512}")
        return r
    def work(ks, st):
        b = BUF + 16*ks + 32*st
        return [k.mfma_s(ACC+16, b+8, b), k.mfma_s(ACC+32, b, b+12), k.mfma_s(ACC, b+4, b)]
    def addr_update():
        ring_step(k, 35, 2*A_SUB, A_DP*2*A_SUB)
        for i in range(4): k(f"v_add_u32 v{CX+i}, 4096, v{CX+i}")
        k(f"v_add_u32 v{CWA}, s35, v{AW}")
    compute_loop(k, 16, 2, reads, work, addr_update, 34, pair=True, pre_first=pre_first)
    if not E("XMARK", 0): k.mark(2)
    k(f"v_mul_f32 v{T+2}, {f32(0.25*LOG2E)}, v{RSTD}\ns_nop 8")
    P = X
    for (a, sc, st) in ((ACC+16, None, [(f"v{L16}", "s37", ""), (f"v{L16}", "s38", "")]),
                        (ACC+32, "rf", [(f"v{VA}", "s37", "offset:1024"), (f"v{VA}", "s37", "offset:1536")]),
                        (ACC, "q", [(f"v{L16}", "s39", ""), (f"v{L16}", "s36", "")])):
        for j in range(2):
            for i in range(8*j, 8*j+8):
                mm_ = f"v{RSTD}" if sc is None else (f"v{RF+i}" if sc == "rf" else f"v{T+2}")
                k(f"v_mul_f32 v{a+i}, v{a+i}, {mm_}")
            for i in range(4*j, 4*j+4):
                k(f"v_cvt_pk_bf16_f32 v{P+i}, v{a+2*i}, v{a+2*i+1}")
            k(f"buffer_store_dwordx4 {vr(P+4*j,4)}, {st[j][0]}, s[12:15], {st[j][1]} offen {st[j][2]} {HO}")
        P += 8
    nA = k.bars - b0
    k(f"s_branch {lendA}")
    k.label(lhiA)
    k.bars = b0
    lnn, ltp, lnt = k.new("nn"), k.new("tp"), k.new("nt")
    k.srd(16, PDBG, 256)
    k(f"""
    v_mov_b32 v10, 0
    s_cmp_lg_u32 s{CW}, 7
    s_cbranch_scc1 {lnt}
    s_cmp_lg_u32 s2, 0
    s_cbranch_scc1 {lnn}
    s_memrealtime s[84:85]
    s_waitcnt lgkmcnt(0)
    s_or_b32 s84, s84, 1
    v_mov_b32 v8, s84
    v_mov_b32 v9, s85
    s_mov_b64 exec, 1
    buffer_store_dwordx2 v[8:9], v10, s[16:19], 0 offen {HO}
    s_mov_b64 exec, -1
    """)
    k.label(lnn)
    k.idle_bars(nA)
    k("s_mov_b32 s45, 30000")
    k.label(ltp)
    k(f"""
    buffer_load_dwordx2 v[8:9], v10, s[16:19], 0 offen {HO}
    s_waitcnt vmcnt(0)
    v_readfirstlane_b32 s84, v8
    v_readfirstlane_b32 s85, v9
    s_nop 3
    s_cmp_lg_u32 s84, 0
    s_cbranch_scc1 {lendA}
    s_sub_u32 s45, s45, 1
    s_cmp_lg_u32 s45, 0
    s_cbranch_scc1 {ltp}
    s_branch {lendA}
    """)
    k.label(lnt)
    k.bars = b0
    k.idle_bars(nA)
    k.label(lendA)
    def end_phase(out_arr, out_line, in_arr, in_line, n_in, between=None, after_prio=0):
        HM = E("HMARK", -1) == out_arr
        l0, ls, lp = k.new("na"), k.new("ns"), k.new("np")
        k(f"s_cmp_lg_u32 s{CW}, 7\ns_cbranch_scc1 {l0}")
        out_line(); in_line()
        poll_addr(k, in_arr, 47, n_in)
        k(f"""
        s_lshl_b32 s46, s46, 7
        s_add_u32 s46, s46, {WS_FL + out_arr*32768}
        v_mov_b32 v4, s84
        v_mov_b32 v5, s85
        v_mov_b32 v7, 0
        {"s_setprio 3" if E("SPRIO", 0) else ""}
        """)
        k.label(l0)
        k("s_waitcnt vmcnt(0)")
        if HM: k.mark(0)
        k(f"s_cmp_lg_u32 s{CW}, 7")
        k.bar()
        if HM:
            k.mark(1); k(f"s_cmp_lg_u32 s{CW}, 7")
        k(f"""
        s_cbranch_scc1 {ls}
        s_mov_b64 exec, 1
        buffer_store_dwordx2 v[4:5], v7, s[12:15], s46 offen {HO}
        """)
        if E("EARLYPOLL", 0): poll_issue(k)
        else: k("s_mov_b64 exec, -1")
        k.label(ls)
        if E("FBAR", 1): k.bar()
        if between: between()
        if (GB >> out_arr) & 1: k.bar()
        k(f"s_cmp_lg_u32 s{CW}, 7\ns_cbranch_scc1 {lp}")
        if HM: k.mark(2)
        if E("SPRIO", 0): k("s_setprio 3")
        if not E("EARLYPOLL", 0): poll_issue(k)
        poll_loop(k)
        if E("SPRIO", 0): k(f"s_setprio {after_prio}")
        if HM: k.mark(3)
        k.label(lp)
        k.bar()
    AK, AV, Q, KF, VF, P, C, O, S0, M, T = 10, 11, 12, 16, 24, 40, 48, 64, 80, 112, 113
    AV0, AVS, VSY, VFM, VF4 = 118, 119, 120, 121, 124
    NIT = 16
    SW = E("SW", 12)
    def zero_state():
        for i in range(16): k(f"v_mov_b32 v{O+i}, 0")
        for i in range(4): k(f"v_mov_b32 v{P+4+i}, 0\nv_mov_b32 v{VF+12+i}, 0")
    def b_setup():
        lp = k.new("pr")
        k(f"""
        s_lshl_b32 s29, s{QB}, 3
        s_add_u32 s29, s29, s{CW}
        s_lshl_b32 s30, s{HEAD}, 16
        s_lshl_b32 s31, s29, 10
        s_add_u32 s30, s30, s31
        s_add_u32 s30, s30, {WS_QF}
        s_lshl_b32 s43, s{HEAD}, 17
        s_add_u32 s43, s43, {WS_KV}
        v_and_b32 v{T+1}, 11, v0
        v_cmp_eq_u32 vcc, 0, v{T+1}
        v_mov_b32 v{T+2}, 0x3f803f80
        s_lshl_b32 s31, s{CW}, 10
        s_add_u32 s31, s31, {ONESB}
        v_cndmask_b32 v{S0}, 0, v{T+2}, vcc
        v_add_u32 v{T+1}, s31, v{L16}
        v_mov_b32 v{S0+1}, v{S0}
        v_mov_b32 v{S0+2}, v{S0}
        v_mov_b32 v{S0+3}, v{S0}
        ds_write_b128 v{T+1}, {vr(S0,4)}
        ds_write_b128 v{T+1}, {vr(S0,4)} offset:2048
        v_and_b32 v{AV0}, 15, v0
        v_lshlrev_b32 v{AV0}, 4, v{AV0}
        v_lshl_add_u32 v{AV0}, v{HH}, 8, v{AV0}
        v_and_b32 v{T+1}, 16, v0
        v_cmp_eq_u32 vcc, 0, v{T+1}
        v_mov_b32 v{T+1}, {ONESB}
        v_mov_b32 v{T+2}, 1024
        v_mov_b32 v{T+3}, 8192
        v_cndmask_b32 v{T+1}, v{T+1}, v{T+2}, vcc
        v_cndmask_b32 v{AVS}, 0, v{T+3}, vcc
        v_add_u32 v{AV0}, v{AV0}, v{T+1}
        v_mov_b32 v{VSY}, {B_SYNC}
        s_mov_b32 s40, 0x400000
        s_mov_b32 s36, 0
        s_lshl_b32 s29, s29, 15
        s_lshl_b32 s31, s{HEAD}, 10
        s_add_u32 s29, s29, s31
        s_add_u32 s29, s29, {WS_OF}
        s_setprio 1
        s_cmp_lt_u32 s{CW}, 4
        s_cbranch_scc1 {lp}
        s_setprio 2
        """)
        k.label(lp)
        zero_state()
        k("s_waitcnt lgkmcnt(0)")
    if not E("XMARK", 0): k.mark(3)
    if E("HMARK", -1) == 0:
        k.mark(5)
    end_phase(0, lambda: k(f"s_lshl_b32 s46, s{NTA}, 5\ns_add_u32 s46, s46, s{MTA}"),
              0, lambda: k(f"s_lshr_b32 s47, s{HEAD}, 2\ns_lshl_b32 s47, s47, 5"), 32, between=b_setup, after_prio=2)
    cnt['A'] = k.bars
    k.mark(4)
    if E("HMARK", -1) == 0: k.mark = lambda i: None
    k(f"buffer_load_dwordx4 {vr(Q,4)}, v{L16}, s[12:15], s30 offen {HO}")
    def spin(need):
        l = k.new("sp")
        k.label(l)
        k(f"""
        ds_read_b128 {vr(VF4,4)}, v{VSY}
        s_sub_u32 s40, s40, 1
        s_cbranch_scc1 Lexit
        s_waitcnt lgkmcnt(0)
        v_min3_u32 v{VFM}, v{VF4}, v{VF4+1}, v{VF4+2}
        v_min_u32 v{VFM}, v{VFM}, v{VF4+3}
        v_cmp_gt_u32 vcc, {need}, v{VFM}
        s_cbranch_vccnz {l}
        """)
    if E("K0G", 1):
        k(f"buffer_load_dwordx4 {vr(KF,4)}, v{L16}, s[12:15], s43 offen {HO}\ns_waitcnt vmcnt(0)")
    else:
        k("s_waitcnt vmcnt(0)")
        spin(1)
        k(f"ds_read_b128 {vr(KF,4)}, v{L16}\ns_waitcnt lgkmcnt(0)")
    k.mfma(S0, KF, Q, "0")
    k("s_nop 15")
    def max16(src, dst, first):
        if first:
            k(f"v_max3_f32 v{dst}, v{src}, v{src+1}, v{src+2}\nv_max_f32 v{dst}, v{dst}, v{src+3}")
            rng = range(4, 16, 2)
        else: rng = range(0, 16, 2)
        for i in rng: k(f"v_max3_f32 v{dst}, v{dst}, v{src+i}, v{src+i+1}")
    max16(S0, M, True)
    lhave, lnob, lloop, lswp, ldone, lmax, lfin = [k.new(x) for x in ("have","nobar","aloop","swp","adone","maxl","afin")]
    k.label(lhave)
    k(f"""
    v_mov_b32 v{T+1}, v{M}
    v_mov_b32 v{AK}, v{L16}
    v_mov_b32 v{AV}, v{AV0}
    v_permlane32_swap_b32 v{M}, v{T+1}
    s_mov_b32 s37, 0
    s_mov_b32 s42, 3
    v_max_f32 v{M}, v{M}, v{T+1}
    """)
    for i in range(16): k(f"v_sub_f32 v{C+i}, 0, v{M}")
    k("s_nop 1")
    k.mfma(S0, KF, Q, C)
    spin(1)
    k(f"""
    ds_read_b128 {vr(KF+4,4)}, v{AK} offset:2048
    ds_read_b128 {vr(VF,4)}, v{AV}
    ds_read_b128 {vr(VF+4,4)}, v{AV} offset:512
    """)
    lcp = k.new("cp")
    if E("CYC", 0): k.mark(0)
    k.label(lcp)
    spin("s42")
    k(f"""
    v_readfirstlane_b32 s38, v{VFM}
    s_mov_b32 s41, 0
    s_add_u32 s43, s37, 1
    s_max_u32 s43, s43, {SW}
    s_sub_u32 s39, s38, 1
    s_lshr_b32 s39, s39, 1
    s_min_u32 s39, s39, s43
    s_lshl_b32 s42, s39, 1
    s_add_u32 s42, s42, 3
    s_min_u32 s42, s42, 32
    s_cmp_ge_u32 s38, 32
    s_cselect_b32 s39, s43, s39
    s_cselect_b32 s41, 1, 0
    """)
    k.label(lloop)
    for t in range(4):
        sb = S0 + 16*(t & 1); sn = S0 + 16*((t+1) & 1)
        kn = KF + 4*((t+1) & 1); kf = KF + 4*(t & 1)
        vc = VF + 8*(t & 1); vn = VF + 8*((t+1) & 1)
        ex = lambda i: k(f"v_exp_f32 v{sb+i}, v{sb+i}")
        cv = lambda i: k(f"v_cvt_pk_bf16_f32 v{P+i}, v{sb+2*i}, v{sb+2*i+1}")
        k("s_waitcnt lgkmcnt(0)")
        k.mfma(sn, kn, Q, C)
        ex(0); ex(1); ex(2); ex(3)
        k.mfma(O, vn+4, P+4)
        k(f"ds_read_b128 {vr(kf,4)}, v{AK} offset:{(t+2)*2048}")
        k(f"ds_read_b128 {vr(vn,4)}, v{AV} offset:{(t+1)*2048}")
        k(f"ds_read_b128 {vr(vn+4,4)}, v{AV} offset:{(t+1)*2048+512}")
        ex(4); ex(5); ex(6); ex(7)
        for i in range(4): cv(i)
        ex(8); ex(9)
        k.mfma(O, vc, P)
        if t == 3: k("s_add_u32 s37, s37, 1\ns_cmp_lt_u32 s37, s39")
        for i in range(10, 16): ex(i)
        if t == 3:
            k(f"v_add_u32 v{AK}, 8192, v{AK}\nv_add_u32 v{AV}, v{AVS}, v{AV}")
        for i in range(4, 8): cv(i)
    k(f"""
    s_cbranch_scc1 {lloop}
    s_cmp_eq_u32 s37, {NIT}
    s_cbranch_scc1 {ldone}
    s_cmp_eq_u32 s41, 0
    s_cbranch_scc1 {lcp}
    """)
    k.label(lswp)
    if E("CYC", 0): k.mark(2)
    k(f"""
    s_mov_b32 s39, {NIT}
    s_cmp_lt_u32 s{CW}, 4
    s_cbranch_scc1 {lloop}
    s_setprio 0
    s_branch {lloop}
    """)
    k.label(ldone)
    k.mfma(O, VF+12, P+4)
    if E("CYC", 0): k.mark(3)
    k(f"""
    s_waitcnt lgkmcnt(0)
    s_mov_b32 s38, {f32(2.0**60)}
    s_nop 13
    v_cmp_nlt_f32 vcc, v{O+8}, s38
    v_rcp_f32 v{T+3}, v{O+8}
    s_cmp_lg_u32 s36, 0
    s_cbranch_scc1 {lfin}
    s_cbranch_vccz {lfin}
    s_mov_b32 s36, 1
    s_mov_b32 s37, 0
    v_mov_b32 v{AK}, v{L16}
    v_mov_b32 v{M}, 0xff800000
    """)
    zero_state()
    k.label(lmax)
    k(f"ds_read_b128 {vr(KF,4)}, v{AK}\ns_waitcnt lgkmcnt(0)")
    k.mfma(S0, KF, Q, "0")
    k("s_nop 15")
    max16(S0, M, False)
    k(f"""
    v_add_u32 v{AK}, 2048, v{AK}
    s_add_u32 s37, s37, 1
    s_cmp_lt_u32 s37, 64
    s_cbranch_scc1 {lmax}
    ds_read_b128 {vr(KF,4)}, v{L16}
    s_waitcnt lgkmcnt(0)
    s_branch {lhave}
    """)
    k.label(lfin)
    for i in range(8): k(f"v_mul_f32 v{O+i}, v{O+i}, v{T+3}")
    for i in range(4): k(f"v_cvt_pk_bf16_f32 v{P+i}, v{O+2*i}, v{O+2*i+1}")
    k(f"buffer_store_dwordx4 {vr(P,4)}, v{L16}, s[12:15], s29 offen {HO}")
    k("s_setprio 0")
    k.mark(5)
    AA, AW, CA, CWA = 10, 11, 12, 13
    ACC, BUF, T = 16, 32, 96
    def c_setup():
        k(f"""
        s_and_b32 s29, s{CW}, 1          ; ms
        s_bfe_u32 s30, s{CW}, 0x10001    ; nh
        s_lshl_b32 s31, s30, 6
        s_lshl_b32 s32, s29, 12
        v_add_u32 v{AA}, s32, v{L16}
        s_lshl_b32 s36, s{MT64}, 1
        s_add_u32 s36, s36, s29          ; mt32
        s_lshl_b32 s37, s{NT8}, 2
        s_lshl_b32 s38, s30, 1
        s_add_u32 s37, s37, s38          ; 2*nt32
        """)
        w_tr_addr(k, AW, 14, 15, 31, 512, 0)
    def c_between():
        c_setup()
        k(f"""
        v_add_u32 v{CA}, {C_A}, v{AA}
        v_mov_b32 v{CWA}, v{AW}
        v_lshlrev_b32 v14, 7, v{MM}
        v_add_u32 v14, s32, v14
        v_lshl_add_u32 v14, v{HH}, 3, v14
        v_add_u32 v14, {C_X}, v14
        v_bfe_u32 v15, v0, 1, 3
        v_lshlrev_b32 v15, 4, v15
        v_xor_b32 v15, s31, v15
        """)
        for g in range(4):
            k(f"v_xor_b32 v{T+16+g}, {g*16}, v15\nv_add_u32 v{T+16+g}, v{T+16+g}, v14")
    end_phase(1, lambda: k(f"s_lshl_b32 s46, s{QB}, 5\ns_add_u32 s46, s46, s{HEAD}"),
              1, lambda: k(f"s_lshr_b32 s47, s{MT64}, 2\ns_lshl_b32 s47, s47, 5"), -2, between=c_between)
    cnt['B'] = k.bars
    k.mark(6)
    def reads64(ks, st):
        b = BUF + 8*ks + 32*st
        return [f"ds_read_b128 {vr(b,4)}, v{CA} offset:{ks*1024}"] + \
               [f"ds_read_b64_tr_b16 {vr(b+4+2*t,2)}, v{CWA} offset:{ks*2048 + t*1024}" for t in range(2)]
    def work64(ks, st):
        b = BUF + 8*ks + 32*st
        return [k.mfma_s(ACC, b+4, b)]
    lhi, lend, lend2 = k.new("hiC"), k.new("endC"), k.new("endC2")
    k(f"s_cmp_ge_u32 s{CW}, 4\ns_cbranch_scc1 {lhi}")
    b0 = k.bars
    def c_first():
        for g in range(4): k(f"ds_read_b64 {vr(T+4+2*g,2)}, v{T+16+g}")
        k("s_waitcnt lgkmcnt(0)")
        for i in range(8):
            k(f"v_lshlrev_b32 v{ACC+2*i}, 16, v{T+4+i}\nv_and_b32 v{ACC+2*i+1}, 0xffff0000, v{T+4+i}")
    compute_loop(k, 8, 4, reads64, work64, lambda: k(f"v_add_u32 v{CA}, 8192, v{CA}\nv_add_u32 v{CWA}, 8192, v{CWA}"), 34, pre_first=c_first, mbar=True)
    k(f"""
    v_mov_b32 v{T+12}, 0x3f803f80
    v_mov_b32 v{T+14}, 0
    v_mov_b32 v{T+15}, 0
    s_lshl_b32 s38, s36, 15
    s_lshl_b32 s39, s37, 10
    s_add_u32 s38, s38, s39
    s_add_u32 s38, s38, {WS_HF}
    s_lshl_b32 s39, s36, 12
    s_lshl_b32 s40, s37, 7
    s_add_u32 s39, s39, s40
    s_add_u32 s39, s39, {WS_ST}
    v_lshlrev_b32 v{T+13}, 3, v{MM}
    s_nop 2
    """)
    for i in range(8): k(f"v_cvt_pk_bf16_f32 v{HSAVE+i}, v{ACC+2*i}, v{ACC+2*i+1}")
    k(f"buffer_store_dwordx4 {vr(HSAVE,4)}, v{L16}, s[12:15], s38 offen {HO}")
    k(f"buffer_store_dwordx4 {vr(HSAVE+4,4)}, v{L16}, s[12:15], s38 offen offset:1024 {HO}")
    for i in range(8):
        k(f"v_dot2_f32_bf16 v{T+14}, v{HSAVE+i}, v{T+12}, v{T+14}")
        k(f"v_dot2_f32_bf16 v{T+15}, v{HSAVE+i}, v{HSAVE+i}, v{T+15}")
    k("s_nop 2")
    xhalf_sum(k, T+14, T+16)
    xhalf_sum(k, T+15, T+16)
    k(f"s_mov_b32 exec_hi, 0\nbuffer_store_dwordx2 {vr(T+14,2)}, v{T+13}, s[12:15], s39 offen {HO}\ns_mov_b64 exec, -1")
    nC = k.bars - b0
    k(f"s_branch {lend}")
    k.label(lhi)
    k.bars = b0
    k.idle_bars(nC)
    k.label(lend)
    k.mark(7)
    f3_out = lambda: k(f"s_lshl_b32 s46, s{MT64}, 3\ns_add_u32 s46, s46, s{NT8}")
    f4_in = lambda: k(f"s_lshr_b32 s47, s{MT64}, 1\ns_lshl_b32 s47, s47, 4")
    def e_between():
        lh, lj = k.new("ebh"), k.new("ebj")
        k(f"s_cmp_ge_u32 s{CW}, 4\ns_cbranch_scc1 {lh}")
        c_setup()
        k(f"""
        v_add_u32 v{AA}, {E_A}, v{AA}
        s_mov_b32 s33, 0
        v_mov_b32 v{CA}, v{AA}
        v_mov_b32 v{CWA}, v{AW}
        s_mov_b32 s35, 0
        s_lshl_b32 s38, s{CW}, 12
        s_add_u32 s38, s38, {E_PB}
        v_add_u32 v14, s38, v{L16}
        s_lshl_b32 s38, s36, 15
        s_lshl_b32 s39, s37, 5
        s_add_u32 s38, s38, s39
        v_lshlrev_b32 v15, 10, v{MM}
        v_lshl_add_u32 v15, v{HH}, 4, v15
        """)
        k.srd(16, POUT, 2048*1024)
        hb = 136 if MISH2 else 16
        for i in range(8):
            k(f"v_lshlrev_b32 v{hb+2*i}, 16, v{HSAVE+i}\nv_and_b32 v{hb+2*i+1}, 0xffff0000, v{HSAVE+i}")
        if MISH2:
            for i in range(16): k(f"v_mov_b32 v{16+i}, 0")
            k(f"v_mov_b32 v152, {f32(LN2)}")
        k(f"s_branch {lj}")
        k.label(lh)
        k(f"""
        s_sub_u32 s29, s{CW}, 4
        s_lshl_b32 s33, s29, 10
        s_lshl_b32 s35, s29, 11
        s_lshl_b32 s29, s29, 4
        s_lshl_b32 s30, s{NT8}, 7
        s_mov_b32 s40, {(E_NR+E_DW)*65536}
        s_mul_i32 s41, s{MT64}, {2*112*1024}
        s_add_u32 s41, s41, s33
        s_add_u32 s41, s41, {WS_AF}
        """)
        w_dma_voff(k, 14, 15, 16, 1024, 29, 30)
        k.srd(16, PW2, 1792*1024)
        k("s_setprio 3")
        k.label(lj)
    lD, lE = k.new("phD"), k.new("phE")
    k(f"s_cmp_lt_u32 s2, 224\ns_cbranch_scc1 {lD}")
    b0 = k.bars
    end_phase(2, f3_out, 3, f4_in, 14, between=e_between, after_prio=3)
    k(f"s_branch {lE}")
    bskip = k.bars - b0
    k.bars = b0
    k.label(lD)
    DACC, DBUF, DT = 16, 48, 136
    RS, BB, CS = 8, 14, 15
    def d_between():
        k(f"""
        s_and_b32 s29, s{CW}, 1          ; mp
        s_lshr_b32 s30, s{CW}, 1         ; nq
        s_and_b32 s31, s30, 1
        s_lshl_b32 s31, s31, 6
        s_lshr_b32 s32, s30, 1
        s_lshl_b32 s32, s32, 13
        s_lshl_b32 s33, s29, 13
        s_add_u32 s33, s33, {D_A}
        v_add_u32 v{AA}, s33, v{L16}
        s_lshl_b32 s36, s{MT128}, 2
        s_lshl_b32 s37, s29, 1
        s_add_u32 s36, s36, s37
        s_lshl_b32 s37, s{NT14}, 2
        s_add_u32 s37, s37, s30          ; nt32 (0..55)
        s_lshl_b32 s38, s30, 10
        s_add_u32 s38, s38, {D_ST}
        v_add_u32 v{DT}, s38, v{L16}
        s_lshl_b32 s38, s29, 11
        s_add_u32 s38, s38, {D_ST + 4096}
        v_add_u32 v{DT+1}, s38, v{L16}
        s_mul_i32 s38, s36, {112*1024}
        s_lshl_b32 s39, s37, 11
        s_add_u32 s38, s38, s39
        s_add_u32 s38, s38, {WS_AF}
        s_add_u32 s39, s38, {112*1024}
        v_mov_b32 v{DT+2}, {f32(-2*LN2)}
        """)
        w_tr_addr(k, AW, DT+8, DT+9, 31, 512, D_W)
        k(f"""
        v_add_u32 v{AW}, s32, v{AW}
        v_mov_b32 v{CA}, v{AA}
        v_mov_b32 v{CWA}, v{AW}
        s_mov_b32 s33, 0
        s_mov_b32 s35, 0
        """)
        for i in range(32): k(f"v_mov_b32 v{DACC+i}, 0")
        if E("DPRIO", 1):
            lq = k.new("dp")
            k(f"s_cmp_ge_u32 s{CW}, 4\ns_cbranch_scc1 {lq}\ns_setprio 1")
            k.label(lq)
    end_phase(2, f3_out, 2, lambda: k(f"s_lshl_b32 s47, s{MT128}, 4"), 16, between=d_between)
    k.mark(8)
    def readsD(ks, st):
        b = DBUF + 12*ks + 24*st
        kk = 2*st + ks
        return [f"ds_read_b64_tr_b16 {vr(b+8+2*t,2)}, v{CWA} offset:{kk*2048 + t*1024}" for t in range(2)] + \
               [f"ds_read_b128 {vr(b,4)}, v{CA} offset:{kk*1024}", f"ds_read_b128 {vr(b+4,4)}, v{CA} offset:{4096+kk*1024}"]
    def workD(ks, st):
        b = DBUF + 12*ks + 24*st
        return [k.mfma_s(DACC, b+8, b), k.mfma_s(DACC+16, b+8, b+4)]
    def updD():
        ring_step(k, 33, 16384, D_DA*16384)
        ring_step(k, 35, 16384, D_DW*16384)
        k(f"v_add_u32 v{CA}, s33, v{AA}\nv_add_u32 v{CWA}, s35, v{AW}")
    OA, MB = 96, 100
    def tailD():
        k(f"""
        ds_read_b128 {vr(OA,4)}, v{DT}
        ds_read_b128 {vr(MB,4)}, v{DT+1}
        ds_read_b128 {vr(MB+4,4)}, v{DT+1} offset:1024
        """)
    def tailD2():
        k(f"""
        v_mov_b32 v{RS}, v{MB+3}
        v_mov_b32 v{RS+1}, v{MB+7}
        v_mov_b32 v{MB+3}, 0
        v_mov_b32 v{MB+7}, 0
        s_nop 0
        """)
        k.mfma(DACC, OA, MB)
        k.mfma(DACC+16, OA, MB+4)
    def mbarD():
        l = k.new("mb")
        k(f"s_cmp_lt_u32 s{CW}, 4\ns_cbranch_scc1 {l}")
        k.bar()
        k.label(l)
    compute_loop(k, 16, 2, readsD, workD, updD, 34, pair=True, tail=(tailD, tailD2), mbar=(mbarD if DTAIL else True), skip_last=bool(DTAIL))
    k.mark(9)
    k("s_nop 11")
    U, PP, U2 = DBUF, DBUF+16, DBUF+32
    for ms in range(2):
        a = DACC + 16*ms
        for i in range(16): k(f"v_mul_f32 v{a+i}, v{a+i}, v{RS+ms}")
        for i in range(16): k(f"v_exp_f32 v{U+i}, v{a+i}")
        if MISH2:
            for i in range(16): k(f"v_fma_f32 v{U2+i}, v{U+i}, -0.5, -1.0")
            for i in range(16): k(f"v_fma_f32 v{U+i}, v{U+i}, v{U2+i}, -1.0")
            for i in range(16): k(f"v_rcp_f32 v{U+i}, v{U+i}")
            for i in range(16): k(f"v_fmac_f32 v{a+i}, v{a+i}, v{U+i}")
        else:
            for i in range(16): k(f"v_add_f32 v{U+i}, 1.0, v{U+i}")
            for i in range(16): k(f"v_fma_f32 v{U+i}, v{U+i}, v{U+i}, 1.0")
            for i in range(16): k(f"v_rcp_f32 v{U+i}, v{U+i}")
            for i in range(16): k(f"v_fmaak_f32 v{U+i}, v{U+i}, v{DT+2}, {f32(LN2)}")
            for i in range(16): k(f"v_mul_f32 v{a+i}, v{a+i}, v{U+i}")
        for i in range(8): k(f"v_cvt_pk_bf16_f32 v{PP+8*ms+i}, v{a+2*i}, v{a+2*i+1}")
        so = "s38" if ms == 0 else "s39"
        k(f"buffer_store_dwordx4 {vr(PP+8*ms,4)}, v{L16}, s[12:15], {so} offen {HO}")
        k(f"buffer_store_dwordx4 {vr(PP+8*ms+4,4)}, v{L16}, s[12:15], {so} offen offset:1024 {HO}")
        if ms == 0 and DTAIL:
            l = k.new("mb")
            k(f"s_cmp_ge_u32 s{CW}, 4\ns_cbranch_scc1 {l}\ns_barrier\ns_setprio {E('DPRIO2', 0)}")
            k.label(l)
    k.mark(10)
    k("s_setprio 0")
    end_phase(3, lambda: k(f"s_lshl_b32 s46, s{MT128}, 4\ns_add_u32 s46, s46, s{NT14}"), 3, f4_in, 14, between=e_between, after_prio=3)
    cnt['Dextra'] = k.bars - b0 - bskip
    k.label(lE)
    k.mark(11)
    lhi = k.new("hiE")
    k(f"s_cmp_ge_u32 s{CW}, 4\ns_cbranch_scc1 {lhi}")
    b0 = k.bars
    def updE():
        ring_step(k, 33, 16384, E_DA*16384)
        ring_step(k, 35, 8192, E_DW*8192)
        k(f"v_add_u32 v{CA}, s33, v{AA}\nv_add_u32 v{CWA}, s35, v{AW}")
    P2 = 96
    def rdE(st, aoff):
        out = []
        for ks in range(4):
            b = BUF + 8*ks + 32*st
            out += [f"ds_read_b128 {vr(b,4)}, v{CA} offset:{aoff + ks*1024}"] + \
                   [f"ds_read_b64_tr_b16 {vr(b+4+2*t,2)}, v{CWA} offset:{ks*2048 + t*1024}" for t in range(2)]
        return out
    wkE = lambda st: [x for ks in range(4) for x in work64(ks, st)]
    def stageE(st, bar, aoff=0, extra=()):
        k("s_waitcnt lgkmcnt(0)")
        if bar: k("s_barrier")
        w = wkE(1-st)
        for x in interleave(w[:3], rdE(st, aoff)) + [w[3]] + list(extra): k(x)
    updW = lambda: (ring_step(k, 35, 8192, E_DW*8192), k(f"v_add_u32 v{CWA}, s35, v{AW}"))
    k.bar()
    for x in rdE(0, 0): k(x)
    updE()
    k("s_mov_b32 s34, 6")
    lg = k.new("gl")
    k.label(lg)
    stageE(1, True); updE()
    k("s_sub_u32 s34, s34, 1")
    stageE(0, True)
    k("s_cmp_eq_u32 s34, 0")
    lgx = k.new("gx")
    k(f"s_cbranch_scc1 {lgx}")
    updE()
    k(f"s_branch {lg}")
    k.label(lgx)
    k.bars += 12
    updW()
    stageE(1, ETAIL, 8192)
    updE()
    stageE(0, True)
    updW()
    stageE(1, ETAIL, 8192)
    k.bars += 3 if ETAIL else 1
    w = wkE(1)
    k("s_waitcnt lgkmcnt(6)")
    k(w[0])
    for kh in range(2):
        for g in range(4): k(f"ds_read_b128 {vr(P2+16*kh+4*g,4)}, v14 offset:{kh*16384 + g*1024}")
    k(w[1])
    k("s_waitcnt lgkmcnt(11)")
    k(w[2])
    k("s_waitcnt lgkmcnt(8)")
    k(w[3])
    k("s_waitcnt lgkmcnt(0)")
    for i in range(16): k(f"v_add_f32 v{P2+i}, v{P2+i}, v{P2+16+i}")
    if MISH2:
        for i in range(16): k(f"v_fma_f32 v{P2+i}, v{P2+i}, v152, v{136+i}")
    cnt['total'] = k.bars
    PQ = 128
    for p in range(2):
        for i in range(8*p, 8*p+8): k(f"v_fma_f32 v{ACC+i}, v{ACC+i}, v152, v{P2+i}" if MISH2 else f"v_add_f32 v{ACC+i}, v{ACC+i}, v{P2+i}")
        for i in range(4*p, 4*p+4): k(f"v_cvt_pk_bf16_f32 v{PQ+i}, v{ACC+2*i}, v{ACC+2*i+1}")
        k("s_nop 1")
        k(f"v_permlane32_swap_b32 v{PQ+4*p}, v{PQ+4*p+2}\nv_permlane32_swap_b32 v{PQ+4*p+1}, v{PQ+4*p+3}")
        k(f"buffer_store_dwordx4 {vr(PQ+4*p,4)}, v15, s[16:19], s38 offen offset:{32*p} {os.environ.get('OUTF', '')}")
    if E("DBGT", 0):
        k.srd(16, PDBG, 256)
        k("""
        s_waitcnt vmcnt(0)
        s_memrealtime s[44:45]
        v_mov_b32 v4, 0
        buffer_load_dword v5, v4, s[16:19], 0 offen sc1
        s_waitcnt vmcnt(0) lgkmcnt(0)
        v_sub_u32 v5, s44, v5
        s_mov_b64 exec, 1
        buffer_atomic_umax v5, v4, s[16:19], 0 offen offset:16
        """)
    stamp_out(k)
    k("s_endpgm")
    k.label(lhi)
    k.bars = b0
    ops = Ops(k)
    def iAE(s):
        b = E_A + (s % E_DA)*16384
        g0 = E_NR*4096 + (s - E_NR)*4096 if s >= E_NR else E_NR*4096
        g1 = g0 + 4096 if s >= E_NR else 0
        parts = [(0, g0), (4096, g0 + 112*1024), (8192, g1), (12288, g1 + 112*1024)]
        for (lo, go) in parts:
            k(f"s_add_u32 m0, s33, {b + lo}\ns_add_u32 s32, s41, {go}")
            k(f"buffer_load_dwordx4 v{L16}, s[12:15], s32 offen {HOL} lds")
        k("s_add_u32 s41, s41, 4096")
        ops.add(("A", s), len(parts))
    def iWE(mm):
        b = E_W + (mm % E_DW)*8192
        for e in range(2):
            k(f"s_add_u32 m0, s35, {b + e*1024}\ns_add_u32 s32, s40, {e*8192}")
            k("buffer_load_dwordx4 v14, s[16:19], s32 offen lds")
        k("s_add_u32 s40, s40, 65536")
        ops.add(("W", 12 + (mm-12)//2), 2)
    WD = E("E_WD", 1)
    ab = {WD + 2*i: (lambda i=i: iWE(12+i)) for i in range(4)}
    if E("EMARK", 0): ab.update({s: (lambda s=s: k.mark(s//2)) for s in range(0, 14, 2)})
    if ETAIL: ab[12] = lambda: k.bar()
    ring_loader_main(k, ops, E_S, E_DA, 99, E("E_LA", 3), iAE, None, 0, E_S, after_bar=ab)
    if ETAIL: k.bars += 1
    assert k.bars == cnt['total']
    stamp_out(k)
    k("s_endpgm")
    return cnt

def build(path):
    k = K()
    if STAMP:
        k("s_memrealtime s[60:61]\ns_memtime s[62:63]\ns_waitcnt lgkmcnt(0)\ns_mov_b32 s63, s60")
        for i in range(12): k(f"s_mov_b32 s{88+i}, 0")
    k(f"""
    s_cmp_ge_u32 s2, 256
    s_cbranch_scc1 Lexit
    {"s_and_b32 s3, s2, 31" if E("BADMAP", 0) else ""}
    {"s_lshl_b32 s3, s3, 3" if E("BADMAP", 0) else ""}
    {"s_lshr_b32 s2, s2, 5" if E("BADMAP", 0) else ""}
    {"s_or_b32 s2, s2, s3" if E("BADMAP", 0) else ""}
    s_load_dwordx16 s[64:79], s[0:1], 0
    s_load_dwordx4 s[80:83], s[0:1], 64
    v_lshrrev_b32 v1, 6, v0
    v_and_b32 v0, 63, v0
    s_and_b32 s20, s2, 7
    v_readfirstlane_b32 s3, v1
    s_lshr_b32 s21, s2, 3
    v_lshrrev_b32 v{HH}, 5, v0
    v_lshlrev_b32 v{L16}, 4, v0
    v_and_b32 v{MM}, 31, v0
    s_and_b32 s28, s20, 3
    s_lshr_b32 s29, s20, 2
    s_lshl_b32 s{MTA}, s28, 3
    s_and_b32 s30, s21, 7
    s_add_u32 s{MTA}, s{MTA}, s30
    s_lshl_b32 s{NTA}, s29, 2
    s_lshr_b32 s30, s21, 3
    s_add_u32 s{NTA}, s{NTA}, s30
    s_lshl_b32 s{HEAD}, s20, 2
    s_and_b32 s30, s21, 3
    s_add_u32 s{HEAD}, s{HEAD}, s30
    s_lshr_b32 s{QB}, s21, 2
    s_mov_b32 s{MT64}, s{HEAD}
    s_mov_b32 s{NT8}, s{QB}
    s_lshl_b32 s{MT128}, s28, 2
    s_add_u32 s{MT128}, s{MT128}, s30
    s_mul_i32 s{NT14}, s29, 7
    s_add_u32 s{NT14}, s{NT14}, s{QB}
    """)
    if E("CFIRST", 1):
        k("s_cmp_lt_u32 s3, 4\ns_cbranch_scc1 Lloader")
        k.bars = 0
        c2 = compute(k)
        k.label("Lloader")
        k.bars = 0
        c1 = loader(k)
    else:
        k("s_cmp_ge_u32 s3, 4\ns_cbranch_scc1 Lcompute")
        k.bars = 0
        c1 = loader(k)
        k.label("Lcompute")
        k.bars = 0
        c2 = compute(k)
    assert c1 == c2, (c1, c2)
    k.label("Lexit")
    k("s_endpgm")
    ref = open(f"cdna_kernels/{NAME}.s.ref").read().split("\n")
    head = [l for l in ref if l.startswith(";") and "@launch" not in l]
    out = "\n".join(head) + f"\n; @launch grid=(256,1,1) block=(768,1,1) lds={LDS_TOTAL}\n"
    out += f'.amdgcn_target "amdgcn-amd-amdhsa--gfx950"\n.text\n.globl {NAME}_kernel\n.p2align 8\n.type {NAME}_kernel,@function\n{NAME}_kernel:\n'
    out += "\n".join(k.L).replace("CODE_SPAN", f"Lexit - {NAME}_kernel - 4") + "\n"
    out += f""".section .rodata,"a"
.p2align 6
.amdhsa_kernel {NAME}_kernel
  .amdhsa_next_free_vgpr 168
  .amdhsa_next_free_sgpr 102
  .amdhsa_accum_offset 168
  .amdhsa_group_segment_fixed_size 0
  .amdhsa_kernarg_size 80
  .amdhsa_user_sgpr_count 2
  .amdhsa_user_sgpr_kernarg_segment_ptr 1
  .amdhsa_system_sgpr_workgroup_id_x 1
.end_amdhsa_kernel
"""
    open(path, "w").write(out)
    print("barriers", c1, "lines", len(k.L))
if __name__ == "__main__":
    build(sys.argv[1])
```

```python
import os, struct, sys
NAME = "sequential_preLN__softmax_full_mha__dense_activation_mish__prompt"
STAMP = int(os.environ.get("STAMP", "0"))
E = lambda n, d: int(os.environ.get(n, str(d)))

WS_QF = 0
WS_KV = 2 << 20
WS_OF = 6 << 20
WS_HF = 8 << 20
WS_ST = 10 << 20
WS_C1 = (10 << 20) + (512 << 10)
WS_FL = 11 << 20
WS_AF = 12 << 20
WS_SIZE = 20 << 20
WS_DBG = 24 << 20
LOG2E = 1.4426950408889634
LN2 = 0.6931471805599453
LDS_TOTAL = 163840
def f32(x): return "0x%08x" % struct.unpack("<I", struct.pack("<f", x))[0]
def vr(a, n=1): return f"v{a}" if n == 1 else f"v[{a}:{a+n-1}]"

PX, PWQKV, PWO, PW1, PB1, PW2, POUT, PDBG, PWS = 64, 66, 68, 72, 74, 76, 78, 80, 82
LANE, HH, L16, MM = 0, 1, 2, 3
HSAVE = 160
HO = "sc1"
HOL = os.environ.get("HOL", "sc1")

class K:
    def __init__(self):
        self.L = []
        self.bars = 0
        self.uid = 0
    def __call__(self, s):
        for line in s.strip("\n").split("\n"):
            line = line.strip()
            if line: self.L.append("    " + line)
    def label(self, l): self.L.append(f"{l}:")
    def new(self, p):
        self.uid += 1
        return f"L{p}_{self.uid}"
    def bar(self, n=1):
        self("s_barrier"); self.bars += n
    def mark(self, i):
        if STAMP:
            self(f"{'s_memtime' if E('CYC', 0) else 's_memrealtime'} s[86:87]\ns_waitcnt lgkmcnt(0)\ns_mov_b32 s{88+i}, s86")
    def srd(self, d, base, nbytes):
        self(f"s_mov_b32 s{d}, s{base}\ns_mov_b32 s{d+1}, s{base+1}\ns_mov_b32 s{d+2}, {nbytes}\ns_mov_b32 s{d+3}, 0x00020000")
    def mfma_s(self, d, a, b, c=None):
        cs = vr(d, 16) if c is None else (c if isinstance(c, str) else vr(c, 16))
        return f"v_mfma_f32_32x32x16_bf16 {vr(d,16)}, {vr(a,4)}, {vr(b,4)}, {cs}"
    def mfma(self, d, a, b, c=None): self(self.mfma_s(d, a, b, c))
    def idle_bars(self, n):
        if n == 0: return
        l = self.new("idle")
        self(f"s_mov_b32 s34, {n}")
        self.label(l)
        self(f"s_barrier\ns_sub_u32 s34, s34, 1\ns_cmp_lg_u32 s34, 0\ns_cbranch_scc1 {l}")
        self.bars += n

def xhalf_sum(k, x, tmp):
    k(f"v_mov_b32 v{tmp}, v{x}\ns_nop 1\nv_permlane32_swap_b32 v{x}, v{tmp}\ns_nop 1\nv_add_f32 v{x}, v{x}, v{tmp}")
def split_hilo(k, x, hi, lo, tmp):
    k(f"v_cvt_pk_bf16_f32 v{tmp}, v{x}, v{x}\nv_and_b32 v{hi}, 0xffff0000, v{tmp}\nv_sub_f32 v{lo}, v{x}, v{hi}")

def w_tr_addr(k, dst, tmp, tmp2, half_sgpr, hstride, base):
    k(f"""
    v_mul_u32_u24 v{dst}, {hstride}, v{HH}
    v_bfe_u32 v{tmp}, v0, 2, 2
    v_lshl_add_u32 v{dst}, v{tmp}, 7, v{dst}
    v_bfe_u32 v{tmp}, v0, 4, 1
    v_lshlrev_b32 v{tmp}, 5, v{tmp}
    v_and_b32 v{tmp2}, 3, v0
    v_lshl_add_u32 v{tmp}, v{tmp2}, 3, v{tmp}
    v_add_u32 v{tmp}, s{half_sgpr}, v{tmp}
    v_bfe_u32 v{tmp2}, v0, 3, 1
    v_lshlrev_b32 v{tmp2}, 6, v{tmp2}
    v_xor_b32 v{tmp}, v{tmp}, v{tmp2}
    v_add_u32 v{dst}, v{dst}, v{tmp}
    """)
    if base: k(f"v_add_u32 v{dst}, {base}, v{dst}")

def w_dma_voff(k, dst, tmp, tmp2, pitch, row_sgpr, col_sgpr):
    k(f"""
    v_lshrrev_b32 v{tmp}, 3, v0
    v_add_u32 v{tmp}, s{row_sgpr}, v{tmp}
    v_mul_u32_u24 v{dst}, {pitch}, v{tmp}
    v_and_b32 v{tmp}, 7, v0
    v_bfe_u32 v{tmp2}, v0, 4, 1
    v_lshlrev_b32 v{tmp2}, 2, v{tmp2}
    v_xor_b32 v{tmp}, v{tmp}, v{tmp2}
    v_lshl_add_u32 v{dst}, v{tmp}, 4, v{dst}
    v_add_u32 v{dst}, s{col_sgpr}, v{dst}
    """)

def x_dma_voff(k, dst0, dst1, tmp, tmp2, row0_sgpr, col_sgpr):
    k(f"""
    v_lshrrev_b32 v{tmp}, 3, v0
    v_add_u32 v{tmp}, s{row0_sgpr}, v{tmp}
    v_lshlrev_b32 v{dst0}, 10, v{tmp}
    v_add_u32 v{dst0}, s{col_sgpr}, v{dst0}
    v_add_u32 v{dst1}, 8192, v{dst0}
    v_and_b32 v{tmp}, 7, v0
    v_lshrrev_b32 v{tmp2}, 4, v0
    v_xor_b32 v{tmp}, v{tmp}, v{tmp2}
    v_lshl_add_u32 v{dst0}, v{tmp}, 4, v{dst0}
    v_xor_b32 v{tmp}, 4, v{tmp}
    v_lshl_add_u32 v{dst1}, v{tmp}, 4, v{dst1}
    """)

class Ops:
    def __init__(self, k): self.k = k; self.ops = []
    def add(self, tag, n): self.ops += [tag] * n
    def wait(self, tags):
        idx = [i for i, t in enumerate(self.ops) if t in tags]
        if not idx: return
        n = len(self.ops) - 1 - max(idx)
        assert n <= 63, n
        self.k(f"s_waitcnt vmcnt({n})")

def interleave(mf, rd):
    out = []
    n, m = len(mf), len(rd)
    j = 0
    for i, x in enumerate(mf):
        out.append(x)
        tgt = (m * (i + 1) + n - 1) // n
        while j < tgt:
            out.append(rd[j]); j += 1
    return out

def compute_loop(k, S, SPS, reads, work, addr_update, sctr, pair=False, pre_first=None, hook=None, front=0, tail=None, mbar=False, skip_last=False, nobar=False):
    assert S % 2 == 0 and S >= 4
    if E("AB_NOMFMA", 0):
        work0 = work
        work = lambda ks, st: ["s_nop 0"] * len(work0(ks, st))
    if E("AB_NOREAD", 0):
        reads0 = reads
        reads = lambda ks, st: reads0(ks, st)[:1]
    R = len(reads(0, 0))
    def emit(lst, out=0):
        for x in lst:
            if x.startswith("ds_"):
                if out >= 15:
                    k("s_waitcnt lgkmcnt(12)"); out = 12
                out += 1
            k(x)
    allreads = lambda b: [x for ks in range(SPS) for x in reads(ks, b)]
    allwork = lambda b: [x for ks in range(SPS) for x in work(ks, b)]
    def body(b):
        w = allwork(1-b)
        n = len(w) - 1 if not front else len(w) // front
        emit(interleave(w[:n], allreads(b)) + w[n:])
    if not nobar: k.bar()
    if pre_first: pre_first()
    emit(allreads(0))
    if not pair: addr_update()
    k(f"s_mov_b32 s{sctr}, {(S-2)//2 - (1 if skip_last else 0)}")
    l = k.new("cl")
    k.label(l)
    k("s_waitcnt lgkmcnt(0)")
    if not pair: k("s_barrier")
    body(1)
    addr_update()
    k(f"s_sub_u32 s{sctr}, s{sctr}, 1")
    k("s_waitcnt lgkmcnt(0)")
    if not nobar: k("s_barrier")
    body(0)
    if hook: hook()
    if not pair: addr_update()
    k(f"s_cmp_lg_u32 s{sctr}, 0\ns_cbranch_scc1 {l}")
    if not nobar: k.bars += (S-2)//2 * (1 if pair else 2)
    if skip_last:
        assert pair
        k.bars -= 1
        k("s_waitcnt lgkmcnt(0)")
        body(1)
        addr_update()
        k("s_waitcnt lgkmcnt(0)")
        body(0)
    if pair:
        if tail: tail[0]()
        k("s_waitcnt lgkmcnt(0)")
        if tail: tail[1]()
        body(1)
    else:
        for ks in range(SPS):
            k(f"s_waitcnt lgkmcnt({min(15, (SPS-ks-1)*R)})")
            for x in work(ks, 0): k(x)
        if tail: tail[0]()
        k.bar()
        emit(allreads(1))
    for ks in range(SPS):
        k(f"s_waitcnt lgkmcnt({min(15, (SPS-ks-1)*R)})")
        if mbar and ks == SPS-1:
            if callable(mbar): mbar()
            else: k.bar()
        for x in work(ks, 1): k(x)

W2X = E('W2X', 0)
def ring_loader_main(k, ops, S, DA, DW, LA, issueA, issueW, na, nw, extra_need=None, after_bar=None, ldsw=False, LA2=None, bmark=0, wdelay=0, merge_last=False):
    while na < min(LA, S, DA):
        issueA(na); na += 1
    for s in range(S - (1 if merge_last else 0)):
        need = {("A", s), ("W", s)} | set((extra_need or {}).get(s, []))
        if merge_last and s == S-2: need |= {("A", S-1), ("W", S-1)}
        ops.wait(need)
        if ldsw and s >= DW: k("s_waitcnt lgkmcnt(0)")
        if bmark == 1: k.mark(s+1)
        k.bar()
        if bmark == 2: k.mark(s+1)
        for rep in range(2 if LA2 else 1):
            if na < S and (na < DA or na - DA <= s - 1) and na <= s + (LA2 or LA) and (rep == 0 or s >= 1):
                issueA(na); na += 1
        for rep in range(2):
            if nw < S and (nw < DW or (nw - DW <= s - 1 - wdelay and rep == 0)) and (rep == 0 or W2X):
                issueW(nw); nw += 1
        if after_bar and s in after_bar: after_bar[s]()
    assert na == S and nw == S, (na, nw)

def ring_step(k, s, size, total):
    k(f"s_add_u32 s{s}, s{s}, {size}\ns_cmp_eq_u32 s{s}, {total}\ns_cselect_b32 s{s}, 0, s{s}")

def poll_addr(k, in_arr, in_line_sgpr, n_in):
    if n_in > 0:
        k(f"""
        s_lshl_b32 s44, s{in_line_sgpr}, 7
        s_add_u32 s44, s44, {WS_FL + in_arr*32768}
        v_lshlrev_b32 v6, 7, v0
        s_mov_b32 s48, {hex((1 << n_in) - 1)}
        s_mov_b32 s49, 0
        """)
    else:
        k(f"""
        s_mov_b32 s44, {WS_FL + in_arr*32768}
        v_add_u32 v6, s{in_line_sgpr}, v0
        s_lshl_b32 s45, s27, 1
        s_min_u32 s45, s45, 26
        v_bfe_u32 v7, v0, 3, 1
        v_add_u32 v7, s45, v7             ; idx
        v_lshrrev_b32 v8, 2, v7
        v_lshlrev_b32 v8, 5, v8
        v_and_b32 v7, 3, v7
        v_add_u32 v8, v8, v7
        v_and_b32 v7, 7, v0
        v_lshl_add_u32 v8, v7, 2, v8
        v_cmp_lt_u32 vcc, 31, v0
        s_mov_b32 s48, -1
        s_mov_b32 s49, 0xffff
        v_cndmask_b32 v6, v6, v8, vcc
        v_lshlrev_b32 v6, 7, v6
        """)

def poll_issue(k):
    k(f"""
    s_mov_b64 exec, s[48:49]
    buffer_load_dwordx2 v[8:9], v6, s[12:15], s44 offen {HO}
    s_mov_b64 exec, -1
    """)

def poll_loop(k):
    lp, done = k.new("poll"), k.new("polld")
    k("s_mov_b32 s45, 30000\ns_mov_b64 exec, s[48:49]")
    k.label(lp)
    k(f"""
    s_waitcnt vmcnt(0)
    v_cmp_ne_u64 vcc, s[84:85], v[8:9]
    s_cbranch_vccz {done}
    {"s_mov_b64 exec, vcc" if E("PMASK", 1) else ""}
    {"s_sleep %d" % E("PSLEEP", 0) if E("PSLEEP", 0) else ""}
    buffer_load_dwordx2 v[8:9], v6, s[12:15], s44 offen {HO}
    s_sub_u32 s45, s45, 1
    s_cmp_lg_u32 s45, 0
    s_cbranch_scc1 {lp}
    """)
    k.label(done)
    k("s_mov_b64 exec, -1")
```

```python
import sys, os
from fz import *

A_DP = 4
A_SUB = 12288
A_WB = 65536
A_RS = LDS_TOTAL - 256
assert A_WB + A_DP*2*A_SUB <= LDS_TOTAL
B_SLAB = 141312
B_SYNC = 157696
ONESB = 131072
C_W, C_A, C_X = 0, 65536, 149504
D_DW, D_DA = E("D_DW", 5), E("D_DA", 4)
D_W, D_A, D_ST = 0, D_DW*16384, (D_DW+D_DA)*16384
assert D_ST + 8192 <= LDS_TOTAL
E_DW, E_DA = 12, 4
E_S = 14
E_NR = 12
RW = 72
GB = E('GB', 14)
GW = E('GW', 63)
DTAIL = E('DTAIL', 0)
DLAG = E('DLAG', 0)
MISH2 = E('MISH2', 1)
ETAIL = E('ETAIL', 1)
E_PB = 4*8192
E_W, E_A = 0, E_DW*8192
assert E_DW*8192 + E_DA*16384 <= LDS_TOTAL
STG = 24
MT64, NT8, HEAD, QB, MT128, NT14 = 22, 23, 24, 25, 26, 27
MTA, NTA = 56, 57
NT_A = "nt" if E("NT_A", 0) else ""
NT_B = "nt" if E("NT_B", 0) else ""
NT_W1 = "nt" if E("NT_W1", 0) else ""
NT_WO = "nt" if E("NT_WO", 0) else ""
NT_OH = "nt" if E("NT_OH", 0) else ""

def stamp_out(k):
    if not STAMP: return
    if E("DBGW", 0):
        l = k.new("nodbg")
        k(f"""
        s_cmp_lg_u32 s2, {E("DBGWG", 0)}
        s_cbranch_scc1 {l}
        s_cmp_lg_u32 s3, 4
        s_cbranch_scc1 {l}
        s_waitcnt vmcnt(0) lgkmcnt(0)
        s_memrealtime s[60:61]
        s_memtime s[86:87]
        s_waitcnt lgkmcnt(0)
        s_sub_u32 s86, s86, s62
        s_sub_u32 s60, s60, s63
        s_mov_b64 exec, 1
        v_mov_b32 v0, 0
        v_mov_b32 v4, s60
        v_mov_b32 v5, s86
        global_store_dwordx2 v0, v[4:5], s[80:81] offset:8
        """)
        for j in range(3):
            for i in range(4): k(f"s_sub_u32 s{88+4*j+i}, s{88+4*j+i}, s63\nv_mov_b32 v{8+4*j+i}, s{88+4*j+i}")
            k(f"global_store_dwordx4 v0, v[{8+4*j}:{11+4*j}], s[80:81] offset:{16+16*j}")
        k.label(l)
        return
    k(f"""
    s_waitcnt vmcnt(0) lgkmcnt(0)
    s_memrealtime s[60:61]
    s_memtime s[86:87]
    s_lshl_b32 s44, s2, 4
    s_add_u32 s44, s44, s3
    s_lshl_b32 s44, s44, 6
    s_add_u32 s44, s44, {WS_DBG}
    s_waitcnt lgkmcnt(0)
    s_sub_u32 s86, s86, s62
    s_mov_b64 exec, 1
    v_mov_b32 v0, s44
    v_mov_b32 v4, s63
    v_mov_b32 v5, s60
    v_mov_b32 v6, s86
    v_mov_b32 v7, 0
    global_store_dwordx4 v0, v[4:7], s[82:83]
    """)
    for j in range(3):
        for i in range(4): k(f"v_mov_b32 v{8+4*j+i}, s{88+4*j+i}")
        k(f"global_store_dwordx4 v0, v[{8+4*j}:{11+4*j}], s[82:83] offset:{16+16*j}")

def loader(k):
    cnt = {}
    ops = Ops(k)
    if E("CODEPF", 1):
        lnp = k.new("ncp")
        k(f"""
        s_getpc_b64 s[40:41]
        LPC0:
        s_sub_u32 s40, s40, LPC0 - {NAME}_kernel
        s_subb_u32 s41, s41, 0
        v_lshlrev_b32 v5, 7, v0
        s_lshl_b32 s42, s3, 13
        v_add_u32 v5, s42, v5
        v_min_u32 v5, CODE_SPAN, v5
        global_load_dword v6, v5, s[40:41]
        """)
    k(f"""
    s_add_u32 s28, s{MTA}, s{NTA}
    s_and_b32 s28, s28, 7
    s_mul_i32 s28, s28, {64*3072}
    s_lshl_b32 s29, s3, 3            ; 8*w rows
    s_lshl_b32 s30, s{NTA}, 7
    s_lshl_b32 s33, s3, 10           ; w*1024
    s_lshl_b32 s35, s3, 11           ; w*2048
    s_mul_i32 s31, s3, 3072
    s_add_u32 s31, s31, {A_WB}
    """)
    w_dma_voff(k, 4, 9, 10, 3072, 29, 30)
    k("s_waitcnt lgkmcnt(0)")
    k.srd(16, PWQKV, 512*1536*2)
    k.srd(12, PWS, WS_SIZE)
    if E("TLBW", 0):
        ltl = k.new("tl")
        k(f"""
        v_lshlrev_b32 v9, 21, v0
        s_cmp_lg_u32 s3, 0
        s_cbranch_scc1 {ltl}
        s_mov_b64 exec, 0x3ff
        buffer_load_dword v10, v4, s[16:19], s28 offen
        buffer_load_dword v11, v9, s[12:15], 0 offen
        s_mov_b64 exec, -1
        """)
        k.label(ltl)
    PBAR = E("PBAR", 0)
    def issueW_A(p):
        b = (p % A_DP) * 2*A_SUB
        k(f"s_add_u32 m0, s31, {b}\ns_add_u32 s32, s28, {32*3072}")
        for pn in range(3): k(f"buffer_load_dwordx4 v4, s[16:19], s28 offen offset:{pn*1024} {NT_A} lds")
        k(f"s_add_u32 m0, s31, {b + A_SUB}")
        ring_step(k, 28, 64*3072, 512*3072)
        n2 = 2 if p == 3 else 3
        for pn in range(n2): k(f"buffer_load_dwordx4 v4, s[16:19], s32 offen offset:{pn*1024} {NT_A} lds")
        if p == 3: k("s_mov_b32 s36, s32")
        ops.add(("W", p), 3 + n2)
    def late_piece():
        k(f"s_add_u32 m0, s31, {3*2*A_SUB + A_SUB}\ns_nop 0")
        k(f"buffer_load_dwordx4 v4, s[16:19], s36 offen offset:2048 {NT_A} lds")
        ops.add(("W", 3), 1)
    def issueW_A2(p):
        if p == 4: late_piece()
        issueW_A(p)
    for p in range(E("A_PRE", 3)):
        if p == PBAR: k.bar()
        issueW_A(p)
    k.mark(0)
    ring_loader_main(k, ops, 8, 99, A_DP, 99, None, issueW_A2, 8, E("A_PRE", 3), bmark=E("AMARK", 0))
    if E("AMARK", 0): k.mark = lambda i: None
    k.mark(1)
    k.bar()
    if E('FBAR', 1): k.bar()
    k(f"""
    s_lshl_b32 s28, s{HEAD}, 17
    s_add_u32 s28, s28, s33
    s_add_u32 s28, s28, {WS_KV}
    s_lshl_b32 s29, s3, 2
    s_add_u32 s29, s29, {B_SYNC}
    v_mov_b32 v22, s29
    v_mov_b32 v23, 0
    ds_write_b32 v22, v23
    """)
    k.srd(16, PWO, 512*1024)
    k.srd(36, PW1, 512*3584)
    k.srd(48, PW2, 1792*1024)
    k.srd(52, PX, 2048*1024)
    k(f"""
    s_lshl_b32 s29, s3, 4            ; 16w
    s_lshl_b32 s30, s{NT8}, 7
    s_lshl_b32 s31, s{MT64}, 6
    s_add_u32 s31, s31, s29
    s_lshl_b32 s32, s{NT14}, 8
    """)
    w_dma_voff(k, 4, 5, 6, 1024, 29, 30)
    x_dma_voff(k, 7, 8, 5, 6, 31, 30)
    w_dma_voff(k, 9, 5, 6, 3584, 29, 32)
    k(f"""
    v_lshlrev_b32 v5, 7, v0
    v_lshrrev_b32 v11, 4, v0
    v_mul_u32_u24 v11, 3584, v11
    v_and_b32 v12, 15, v0
    v_min_u32 v12, 13, v12
    v_lshl_add_u32 v11, v12, 7, v11
    s_lshl_b32 s41, s21, 2
    s_add_u32 s41, s41, s3
    s_lshl_b32 s42, s41, 13          ; j*8KB
    s_mul_i32 s40, s41, {4*3584}
    s_lshr_b32 s45, s20, 2
    s_mul_i32 s45, s45, 1792
    s_add_u32 s40, s40, s45
    s_add_u32 s47, s42, {768*1024}
    s_lshl_b32 s44, s20, 6
    s_add_u32 s44, s44, s29
    s_min_u32 s45, s21, 27
    s_lshl_b32 s45, s45, 7
    """)
    w_dma_voff(k, 18, 19, 20, 3584, 44, 45)
    k(f"s_mov_b32 s45, 0")
    w_tr_addr(k, 19, 20, 21, 45, 512, B_SLAB)
    k(f"""
    v_add_u32 v19, s35, v19
    v_xor_b32 v21, 64, v19
    v_mov_b32 v24, 0x3f803f80
    v_mov_b32 v25, 0x3f803f80
    v_mov_b32 v26, 0x3f803f80
    v_mov_b32 v27, 0x3f803f80
    s_lshl_b32 s44, s20, 2
    s_add_u32 s44, s44, s3
    s_mul_i32 s44, s44, {1792*4}
    s_lshl_b32 s45, s21, 8
    s_add_u32 s44, s44, s45
    s_add_u32 s44, s44, {WS_C1}
    v_lshlrev_b32 v20, 2, v{MM}
    s_and_b32 s29, s3, 1             ; nh
    s_lshr_b32 s31, s3, 1            ; kh
    s_lshl_b32 s29, s29, 6
    s_lshl_b32 s32, s{NT8}, 7
    s_add_u32 s29, s29, s32
    s_lshl_b32 s31, s31, 15
    s_add_u32 s46, s29, s31
    v_lshrrev_b32 v10, 2, v0
    v_lshlrev_b32 v10, 10, v10
    v_and_b32 v12, 3, v0
    v_lshl_add_u32 v10, v12, 4, v10  ; 16 rows x 64B
    v_add_u32 v17, 16384, v10
    v_lshlrev_b32 v13, 8, v{HH}
    v_bfe_u32 v6, v0, 2, 2
    v_lshl_add_u32 v13, v6, 6, v13
    v_bfe_u32 v6, v0, 4, 1
    v_lshl_add_u32 v13, v6, 5, v13
    v_lshl_add_u32 v13, v12, 3, v13
    s_add_u32 s29, s35, {B_SLAB}
    v_add_u32 v13, s29, v13
    v_add_u32 v12, s29, v{L16}
    v_mov_b32 v23, 1
    s_mov_b32 m0, s33
    s_mov_b32 s30, 29
    s_waitcnt lgkmcnt(0)
    s_setprio 3
    """)
    k.bar()
    cnt['A'] = k.bars
    k.mark(2)
    BWIN = E("B_WIN", 5)
    for i in range(3):
        k(f"buffer_load_dwordx4 v{L16}, s[12:15], s28 offen {HOL} lds\ns_add_u32 m0, m0, 4096\ns_add_u32 s28, s28, 4096")
    k(f"s_waitcnt vmcnt(2)\nds_write_b32 v22, v23\ns_mov_b32 s31, {3 - BWIN}")
    l = k.new("rd")
    k.label(l)
    k(f"""
    buffer_load_dwordx4 v{L16}, s[12:15], s28 offen {HOL} lds
    s_add_u32 m0, m0, 4096
    s_add_u32 s28, s28, 4096
    s_add_u32 s31, s31, 1
    s_max_i32 s32, s31, 1
    v_mov_b32 v23, s32
    s_waitcnt vmcnt({BWIN})
    ds_write_b32 v22, v23
    s_sub_u32 s30, s30, 1
    s_cmp_lg_u32 s30, 0
    s_cbranch_scc1 {l}
    v_mov_b32 v23, 32
    s_waitcnt vmcnt(0)
    ds_write_b32 v22, v23
    """)
    lns = k.new("nosl")
    k(f"""
    buffer_load_dword v14, v5, s[16:19], s42 offen
    buffer_load_dword v15, v11, s[36:39], s40 offen
    buffer_load_dword v16, v5, s[48:51], s47 offen
    s_add_u32 m0, s35, {C_X}
    s_mov_b32 s45, {8*3584}
    buffer_load_dwordx4 v7, s[52:55], 0 offen lds
    s_add_u32 m0, s35, {C_X + 1024}
    s_nop 0
    buffer_load_dwordx4 v8, s[52:55], 0 offen lds
    s_cmp_ge_u32 s2, 224
    s_cbranch_scc1 {lns}
    s_add_u32 m0, s35, {B_SLAB}
    s_nop 0
    buffer_load_dwordx4 v18, s[36:39], 0 offen lds
    s_add_u32 m0, s35, {B_SLAB + 1024}
    s_nop 0
    buffer_load_dwordx4 v18, s[36:39], s45 offen lds
    s_waitcnt vmcnt(0)
    ds_read_b64_tr_b16 v[28:29], v19
    ds_read_b64_tr_b16 v[30:31], v19 offset:1024
    ds_read_b64_tr_b16 v[32:33], v21
    ds_read_b64_tr_b16 v[34:35], v21 offset:1024
    s_waitcnt lgkmcnt(0)
    """)
    k.mfma(36, 24, 28, "0")
    k.mfma(52, 24, 32, "0")
    k(f"""
    s_nop 15
    s_mov_b32 exec_hi, 0
    buffer_store_dword v36, v20, s[12:15], s44 offen {HO}
    buffer_store_dword v52, v20, s[12:15], s44 offen offset:128 {HO}
    s_mov_b64 exec, -1
    """)
    k.label(lns)
    NF = 2*E_NR
    for j in range(NF):
        k(f"buffer_load_dwordx4 {vr(RW+4*j,4)}, v{10 if j % 2 == 0 else 17}, s[48:51], s46 offen")
        if j % 2 == 1: k("s_add_u32 s46, s46, 65536")
    k("s_waitcnt vmcnt(0)")
    def bounce():
        for j in range(0, NF, 2):
            k(f"""
            ds_write_b128 v12, {vr(RW+4*j,4)}
            ds_write_b128 v12, {vr(RW+4*j+4,4)} offset:1024
            ds_read_b64_tr_b16 {vr(RW+4*j,2)}, v13
            ds_read_b64_tr_b16 {vr(RW+4*j+2,2)}, v13 offset:512
            ds_read_b64_tr_b16 {vr(RW+4*j+4,2)}, v13 offset:1024
            ds_read_b64_tr_b16 {vr(RW+4*j+6,2)}, v13 offset:1536
            s_waitcnt lgkmcnt(6)
            """)
        k("s_waitcnt lgkmcnt(0)")
    if E("BOUNCE", 2) == 1:
        k("s_setprio 0"); bounce()
    ops.ops = []
    k.mark(3)
    k.bar()
    if E('FBAR', 1): k.bar()
    k.mark(4)
    k("s_setprio 0")
    def issueW64(wsrd, b):
        for e in range(2):
            k(f"s_add_u32 m0, s35, {b + e*1024}\ns_add_u32 s32, s40, {e*8192}")
            k(f"buffer_load_dwordx4 v4, s[{wsrd}:{wsrd+3}], s32 offen {NT_WO if wsrd == 16 else str()} lds")
        k("s_add_u32 s40, s40, 65536")
    def issueA64(b, KS):
        k(f"s_add_u32 m0, s33, {b}\ns_add_u32 s32, s41, {KS*1024}")
        k(f"buffer_load_dwordx4 v{L16}, s[12:15], s41 offen {HOL} {NT_OH if KS == 32 else str()} lds")
        k(f"s_add_u32 m0, s33, {b + 4096}\ns_add_u32 s41, s41, 4096")
        k(f"buffer_load_dwordx4 v{L16}, s[12:15], s32 offen {HOL} {NT_OH if KS == 32 else str()} lds")
    def setup64(KS, ACT):
        k(f"""
        s_mov_b32 s40, 0
        s_mul_i32 s41, s{MT64}, {2*KS*1024}
        s_add_u32 s41, s41, s33
        s_add_u32 s41, s41, {ACT}
        """)
    setup64(32, WS_OF)
    if E("PRESLEEP", 0): k(f"s_sleep {E('PRESLEEP', 0)}")
    for s in range(8):
        issueW64(16, C_W + s*8192); ops.add(("W", s), 2)
        if E("C_PREWIN", 0) and s < 7: k(f"s_waitcnt vmcnt({E('C_PREWIN', 0)})")
    if GB & 2:
        k(f"s_waitcnt vmcnt({GW})")
        k.bar()
    if E("BOUNCE", 2) == 0: bounce()
    k.bar()
    k("s_setprio 3")
    cnt['B'] = k.bars
    k.mark(5)
    def iAC(s):
        issueA64(C_A + s*8192, 32); ops.add(("A", s), 2)
    SL, LC, LT = 24, 56, 40
    def issue_cols():
        k.srd(16, PB1, 3584)
        k(f"""
        s_min_u32 s44, s{NT14}, 13
        s_lshl_b32 s44, s44, 2
        s_add_u32 s44, s44, s3           ; nt32
        s_lshl_b32 s45, s44, 7
        s_add_u32 s45, s45, {WS_C1}
        s_lshl_b32 s44, s44, 6
        v_lshrrev_b32 v12, 3, v0
        v_mul_u32_u24 v12, {1792*4}, v12
        v_and_b32 v13, 7, v0
        v_lshl_add_u32 v12, v13, 4, v12
        v_lshlrev_b32 v14, 1, v{MM}
        buffer_load_ushort v10, v14, s[16:19], s44 offen
        """)
        for i in range(4):
            k(f"buffer_load_dwordx4 {vr(LC+4*i,4)}, v12, s[12:15], s45 offen {HO}\ns_add_u32 s45, s45, {8*1792*4}")
        ops.add(("CO", 0), 5)
    ring_loader_main(k, ops, 8, 8, 8, E("C_LA", 6), iAC, None, 0, 8, after_bar={3: issue_cols})
    k.bar()
    if E("LLOW", 1): k("s_setprio 0")
    ops.ops = []
    lE = k.new("ldE")
    k(f"""
    s_lshl_b32 s46, s21, 2
    s_add_u32 s46, s46, s3
    s_add_u32 s46, s46, {E("PFB", 96)}
    s_lshl_b32 s46, s46, 13
    """)
    lE0 = k.new("ldE0")
    k(f"s_cmp_ge_u32 s2, 224\ns_cbranch_scc1 {lE0}")
    b0 = k.bars
    k(f"""
    s_mov_b32 s40, 0
    s_lshl_b32 s41, s{MT128}, 2
    s_add_u32 s41, s41, s3
    s_lshl_b32 s43, s41, 12
    s_add_u32 s43, s43, {WS_ST}
    s_lshl_b32 s41, s41, 15
    s_add_u32 s41, s41, {WS_HF}
    s_lshl_b32 s42, s3, 12           ; w*4096
    """)
    def issueW_D(s):
        b = D_W + (s % D_DW) * 16384
        for i in range(4):
            pn, e = i >> 1, i & 1
            k(f"s_add_u32 m0, s35, {b + pn*8192 + e*1024}\ns_add_u32 s32, s40, {e*8*3584 + pn*128}")
            k(f"buffer_load_dwordx4 v9, s[36:39], s32 offen {NT_W1} lds")
        k(f"s_add_u32 s40, s40, {64*3584}")
        ops.add(("W", s), 4)
    def issueA_D(s):
        k(f"s_add_u32 m0, s42, {D_A + (s % D_DA) * 16384}\ns_nop 0")
        for i in range(4):
            k(f"buffer_load_dwordx4 v{L16}, s[12:15], s41 offen offset:{i*1024} {HOL} {NT_OH} lds")
        k("s_add_u32 s41, s41, 4096")
        ops.add(("A", s), 4)
    def issue_stats():
        k("v_lshlrev_b32 v12, 3, v0")
        for i in range(8):
            k(f"buffer_load_dwordx2 {vr(SL+2*i,2)}, v12, s[12:15], s43 offen offset:{i*512} {HO}")
        ops.add(("ST", 0), 8)
    def prep_stats():
        ops.wait({("ST", 0)})
        b, MB, RS = SL, LT+12, LT+4
        for i in range(1, 8):
            k(f"v_add_f32 v{b}, v{b}, v{b+2*i}\nv_add_f32 v{b+1}, v{b+1}, v{b+2*i+1}")
        xhalf_sum(k, b, LT)
        xhalf_sum(k, b+1, LT)
        k(f"""
        v_mul_f32 v{b}, {f32(-1.0/512)}, v{b}
        v_mul_f32 v{b+1}, {f32(1.0/512)}, v{b+1}
        v_fma_f32 v{b+1}, -v{b}, v{b}, v{b+1}
        v_max_f32 v{b+1}, 0, v{b+1}
        v_add_f32 v{b+1}, {f32(1e-5)}, v{b+1}
        v_rsq_f32 v{RS}, v{b+1}
        s_nop 0
        v_mul_f32 v{b+1}, v{b+1}, v{RS}
        v_mul_f32 v{MB+3}, {f32(LOG2E)}, v{RS}
        """)
        split_hilo(k, b, LT, LT+1, LT+2)
        k(f"v_cvt_pk_bf16_f32 v{MB}, v{LT}, v{LT+1}")
        split_hilo(k, b+1, LT+3, LT+1, LT+2)
        k(f"v_cvt_pk_bf16_f32 v{MB+1}, v{LT}, v{LT+3}\nv_cvt_pk_bf16_f32 v{MB+2}, v{LT+1}, 0")
        k(f"ds_write_b128 v11, {vr(MB,4)} offset:4096\ns_waitcnt lgkmcnt(0)")
    def retouch():
        if E("W2MODE", 1) == 1:
            k("buffer_load_dword v16, v5, s[48:51], s47 offen"); ops.add(("PF", 0), 1)
    def prep_cols():
        OA = LT+8
        for j in range(4):
            k(f"v_add_f32 v{LC+j}, v{LC+j}, v{LC+4+j}\nv_add_f32 v{LC+8+j}, v{LC+8+j}, v{LC+12+j}")
        for j in range(4): k(f"v_add_f32 v{LC+j}, v{LC+j}, v{LC+8+j}")
        k(f"""
        v_add_u32 v11, s33, v{L16}
        v_add_u32 v11, {D_ST}, v11
        ds_write_b128 v11, {vr(LC,4)}
        v_lshlrev_b32 v12, 9, v{HH}
        v_lshl_add_u32 v12, v{MM}, 2, v12
        v_add_u32 v12, s33, v12
        v_add_u32 v12, {D_ST}, v12
        v_cmp_gt_u32 vcc, 32, v0
        s_waitcnt lgkmcnt(0)
        ds_read2_b32 {vr(LC,2)}, v12 offset0:0 offset1:32
        ds_read2_b32 {vr(LC+2,2)}, v12 offset0:64 offset1:96
        v_cndmask_b32 v{LC+4}, 0, v10, vcc
        s_waitcnt lgkmcnt(0)
        v_add_f32 v{LC}, v{LC}, v{LC+1}
        v_add_f32 v{LC+2}, v{LC+2}, v{LC+3}
        v_add_f32 v{LC}, v{LC}, v{LC+2}
        """)
        split_hilo(k, LC, LT, LT+1, LT+2)
        k(f"""
        v_cvt_pk_bf16_f32 v{OA}, v{LT}, v{LT}
        v_cvt_pk_bf16_f32 v{OA+1}, v{LT+1}, 0
        v_lshl_or_b32 v{OA+1}, v{LC+4}, 16, v{OA+1}
        v_mov_b32 v{OA+2}, v{LC+4}
        v_mov_b32 v{OA+3}, 0
        ds_write_b128 v11, {vr(OA,4)}
        """)
    DP1 = E("D_PRE1", 2)
    for s in range(DP1):
        issueW_D(s)
        if E("D_PREWIN", 4): k(f"s_waitcnt vmcnt({E('D_PREWIN', 4)})")
    k.bar()
    if E('FBAR', 1): k.bar()
    if DP1 < D_DW and E("PRESLEEP", 0): k(f"s_sleep {E('PRESLEEP', 0)}")
    for s in range(DP1, D_DW):
        issueW_D(s)
        if E("D_PREWIN", 4) and s < D_DW-1: k(f"s_waitcnt vmcnt({E('D_PREWIN', 4)})")
    if GB & 4:
        k(f"s_waitcnt vmcnt({GW})")
        k.bar()
    prep_cols()
    k("s_setprio 3")
    k.bar()
    k.mark(6)
    if E("DMARK", 0): k.mark(0)
    ring_loader_main(k, ops, 8, D_DA, D_DW, E("D_LA", 3), issueA_D, issueW_D, 0, D_DW,
                     after_bar=({3: issue_stats, 5: prep_stats, 6: retouch} if DTAIL else {4: issue_stats, 6: prep_stats, 5: retouch}), bmark=E("DMARK", 0), merge_last=bool(DTAIL))
    k.bar()
    if E("LLOW", 1): k("s_setprio 0")
    if E("DMARK", 0):
        k.mark(9); k.mark = lambda i: None
    cnt['Dextra'] = k.bars - b0
    ops.ops = []
    k(f"s_branch {lE}")
    k.label(lE0)
    k.label(lE)
    k.mark(7)
    k(f"s_mov_b32 s40, {E_NR*65536}")
    EP1 = E("E_PRE1", 6)
    for s in range(EP1):
        issueW64(48, E_W + s*8192)
    def bounce2():
        k(f"""
        v_and_b32 v12, 3, v0
        v_lshlrev_b32 v13, 8, v{HH}
        v_bfe_u32 v6, v0, 2, 2
        v_lshl_add_u32 v13, v6, 6, v13
        v_bfe_u32 v6, v0, 4, 1
        v_lshl_add_u32 v13, v6, 5, v13
        v_lshl_add_u32 v13, v12, 3, v13
        s_add_u32 s29, s35, {E_A}
        v_add_u32 v13, s29, v13
        v_add_u32 v12, s29, v{L16}
        """)
        bounce()
    lb1, lb2 = k.new("b1"), k.new("b2")
    if E("BOUNCE", 2) == 2:
        fb = "\ns_barrier" if E("FBAR", 1) else ""
        k(f"s_cmp_lt_u32 s2, 224\ns_cbranch_scc1 {lb1}\ns_barrier{fb}")
        k.label(lb1)
        bounce2()
        k(f"s_cmp_ge_u32 s2, 224\ns_cbranch_scc1 {lb2}\ns_barrier{fb}")
        k.label(lb2)
        k.bars += 2 if E("FBAR", 1) else 1
    else:
        k.bar()
        if E('FBAR', 1): k.bar()
    for s in range(EP1, E_DW):
        issueW64(48, E_W + s*8192)
        if E("E_PREWIN", 4): k(f"s_waitcnt vmcnt({E('E_PREWIN', 4)})")
    lrt = k.new("rt")
    k(f"s_cmp_lt_u32 s2, 224\ns_cbranch_scc1 {lrt}\nbuffer_load_dword v16, v5, s[48:51], s47 offen")
    k.label(lrt)
    assert ((GB >> 2) & 1) == ((GB >> 3) & 1)
    if GB & 8:
        k(f"s_waitcnt vmcnt({GW})")
        k.bar()
    RA, RB = 24, (56, 8)
    k(f"""
    s_waitcnt vmcnt(0)
    s_lshr_b32 s29, s3, 1
    s_lshl_b32 s30, s29, 11
    s_add_u32 s30, s30, {E_A}
    v_add_u32 v6, s30, v{L16}
    s_lshl_b32 s29, s29, 14
    s_and_b32 s30, s3, 1
    s_lshl_b32 s30, s30, 13
    s_add_u32 s29, s29, s30
    s_add_u32 s29, s29, {E_PB}
    v_add_u32 v7, s29, v{L16}
    s_setprio 0
    """)
    k.bar()
    k.mark(8)
    def r_reads(s):
        b = RB[s & 1]
        return [f"ds_read_b128 {vr(b+8*kk+4*ms,4)}, v6 offset:{(s % E_DA)*16384 + 8192 + ms*4096 + kk*1024}" for kk in range(2) for ms in range(2)]
    def r_work(s):
        b = RB[s & 1]
        return [k.mfma_s(RA+16*ms, RW+4*(2*s+kk), b+8*kk+4*ms, "0" if (s == 0 and kk == 0) else None) for kk in range(2) for ms in range(2)]
    for s in range(E_NR):
        if s > 0: k("s_waitcnt lgkmcnt(0)")
        k.bar()
        if s == 0:
            for x in r_reads(0): k(x)
        else:
            w = r_work(s-1)
            for x in interleave(w[:2], r_reads(s)) + w[2:]: k(x)
    k("s_waitcnt lgkmcnt(0)")
    for x in r_work(E_NR-1): k(x)
    k.bar()
    k("s_nop 10")
    wr = [f"ds_write_b128 v7, {vr(RA+16*ms+4*g,4)} offset:{ms*4096 + g*1024}" for ms in range(2) for g in range(4)]
    for grp in ((wr[:3], wr[3:6], wr[6:] + ["s_waitcnt lgkmcnt(0)"]) if ETAIL else (wr + ["s_waitcnt lgkmcnt(0)"],)):
        for x in grp: k(x)
        k.bar()
    cnt['total'] = k.bars
    k.mark(9)
    stamp_out(k)
    k("s_endpgm")
    return cnt

def compute(k):
    cnt = {}
    CW = 28
    k(f"s_sub_u32 s{CW}, s3, 4")
    X, T = 64, 128
    ACC = 16
    k(f"""
    s_lshl_b32 s29, s{MTA}, 6
    s_lshl_b32 s30, s{CW}, 3
    s_add_u32 s29, s29, s30          ; row0
    v_lshrrev_b32 v6, 3, v0
    v_add_u32 v7, s29, v6
    v_lshlrev_b32 v7, 10, v7
    v_and_b32 v8, 7, v0
    v_lshl_add_u32 v7, v8, 4, v7
    s_add_u32 s33, s{MTA}, s{NTA}
    s_lshl_b32 s33, s33, 7
    s_and_b32 s33, s33, 1023
    s_waitcnt lgkmcnt(0)
    """)
    k.srd(16, PX, 2048*1024)
    for i in range(8):
        k(f"buffer_load_dwordx4 {vr(X+4*i,4)}, v7, s[16:19], s33 offen {NT_A}")
        if i < 7: k("s_add_u32 s33, s33, 128\ns_and_b32 s33, s33, 1023")
        if i == 0 and E("XMARK", 0): k.mark(2)
    k.bar()
    if E("XMARK", 0): k.mark(3)
    k.srd(12, PWS, WS_SIZE)
    k(f"""
    s_lshr_b32 s29, s{CW}, 2
    s_lshl_b32 s29, s29, 15
    s_and_b32 s30, s{CW}, 3
    s_lshl_b32 s30, s30, 7
    s_add_u32 s29, s29, s30
    v_xor_b32 v9, v6, v8
    v_lshlrev_b32 v9, 4, v9
    v_lshl_add_u32 v9, v8, 9, v9
    v_add_u32 v9, s29, v9
    s_lshl_b32 s30, s{CW}, 5
    s_add_u32 s30, s30, {A_RS}
    v_lshlrev_b32 v10, 2, v6
    v_add_u32 v10, s30, v10
    v_mov_b32 v{T}, 0x3f803f80
    v_mov_b32 v{T+1}, 0x00003f80
    v_mov_b32 v{T+2}, 0x3f800000
    s_and_b32 s29, s{CW}, 1          ; ms
    s_bfe_u32 s30, s{CW}, 0x10001    ; nh
    s_lshl_b32 s31, s30, 6
    """)
    CX, AW, CWA, VA = 4, 11, 12, 15
    w_tr_addr(k, AW, 13, 14, 31, 3072, A_WB)
    k(f"""
    s_lshl_b32 s32, s29, 15
    v_xor_b32 v13, v{MM}, v{HH}
    v_lshlrev_b32 v13, 4, v13
    v_lshlrev_b32 v14, 9, v{HH}
    v_add_u32 v14, s32, v14
    """)
    for ks in range(4):
        k(f"v_xor_b32 v{CX+ks}, {ks*32}, v13\nv_add_u32 v{CX+ks}, v{CX+ks}, v14")
    k(f"""
    v_mov_b32 v{CWA}, v{AW}
    s_mov_b32 s35, 0
    s_lshl_b32 s36, s29, 7
    s_add_u32 s36, s36, {A_RS}
    v_lshlrev_b32 v13, 2, v{MM}
    v_add_u32 v13, s36, v13
    v_lshlrev_b32 v14, 4, v{HH}
    v_add_u32 v14, s36, v14
    s_lshl_b32 s32, s{NTA}, 2
    s_lshl_b32 s33, s30, 1
    s_add_u32 s32, s32, s33            ; head0
    s_lshl_b32 s33, s{MTA}, 1
    s_add_u32 s33, s33, s29
    s_lshl_b32 s39, s32, 16
    s_lshl_b32 s36, s33, 10
    s_add_u32 s39, s39, s36
    s_add_u32 s39, s39, {WS_QF}
    s_add_u32 s36, s39, 65536
    s_lshl_b32 s37, s32, 17
    s_lshl_b32 s38, s33, 11
    s_add_u32 s37, s37, s38
    s_add_u32 s37, s37, {WS_KV}
    s_add_u32 s38, s37, 131072
    v_and_b32 v{VA}, 15, v0
    v_lshlrev_b32 v{VA}, 4, v{VA}
    v_lshl_add_u32 v{VA}, v{HH}, 8, v{VA}
    v_bfe_u32 v{T+6}, v0, 4, 1
    v_lshl_add_u32 v{VA}, v{T+6}, 17, v{VA}
    """)
    for i in range(48): k(f"v_mov_b32 v{ACC+i}, 0")
    SA, SB, QA, QB_, TM = T+4, T+5, T+6, T+7, T+8
    for r_ in (SA, SB, QA, QB_): k(f"v_mov_b32 v{r_}, 0")
    for i in range(8):
        k(f"s_waitcnt vmcnt({7-i})")
        for j in range(4):
            k(f"v_dot2_f32_bf16 v{SA+(j&1)}, v{X+4*i+j}, v{T}, v{SA+(j&1)}")
            k(f"v_dot2_f32_bf16 v{QA+(j&1)}, v{X+4*i+j}, v{X+4*i+j}, v{QA+(j&1)}")
    k.mark(0)
    k(f"s_nop 1\nv_add_f32 v{SA}, v{SA}, v{SB}\nv_add_f32 v{QA}, v{QA}, v{QB_}")
    for ctl in ("quad_perm:[1,0,3,2]", "quad_perm:[2,3,0,1]", "row_half_mirror"):
        k(f"s_nop 0\nv_add_f32_dpp v{SA}, v{SA}, v{SA} {ctl} row_mask:0xf bank_mask:0xf")
        k(f"v_add_f32_dpp v{QA}, v{QA}, v{QA} {ctl} row_mask:0xf bank_mask:0xf")
    NM = SA
    k(f"v_mul_f32 v{NM}, {f32(-1.0/512)}, v{SA}\nv_mul_f32 v{QA}, {f32(1.0/512)}, v{QA}")
    fin = [f"v_fma_f32 v{QA}, -v{NM}, v{NM}, v{QA}", f"v_max_f32 v{QA}, 0, v{QA}", f"v_add_f32 v{QA}, {f32(1e-5)}, v{QA}", f"v_rsq_f32 v{QA}, v{QA}"]
    for i in range(9):
        t = TM + 8*(i & 1)
        if i < 8:
            for j in range(4):
                k(f"v_dot2_f32_bf16 v{t+2*j}, v{X+4*i+j}, v{T+1}, v{NM}")
                k(f"v_dot2_f32_bf16 v{t+2*j+1}, v{X+4*i+j}, v{T+2}, v{NM}")
        else:
            for x_ in fin: k(x_)
        if i > 0:
            tp = TM + 8*((i-1) & 1)
            for j in range(4):
                k(f"v_cvt_pk_bf16_f32 v{X+4*(i-1)+j}, v{tp+2*j}, v{tp+2*j+1}")
            k(f"ds_write_b128 v9, {vr(X+4*(i-1),4)} offset:{(i-1)*4096}")
    k(f"ds_write_b32 v10, v{QA}")
    lhiA, lendA = k.new("hiA"), k.new("endA")
    k(f"s_waitcnt lgkmcnt(0)")
    k.mark(1)
    k(f"s_cmp_ge_u32 s{CW}, 4\ns_cbranch_scc1 {lhiA}")
    b0 = k.bars
    RSTD, RF, BUF = T+3, T+8, X
    def addr_update():
        ring_step(k, 35, 2*A_SUB, A_DP*2*A_SUB)
        for i in range(4): k(f"v_add_u32 v{CX+i}, 4096, v{CX+i}")
        k(f"v_add_u32 v{CWA}, s35, v{AW}")
    def mk(pns):
        def reads(ks, st):
            b = BUF + 16*ks + 32*st
            r = [f"ds_read_b128 {vr(b,4)}, v{CX+2*st+ks} offset:{(2*st+ks)*1024}"]
            for pn in pns:
                for t in range(2):
                    r.append(f"ds_read_b64_tr_b16 {vr(b+4+4*pn+2*t,2)}, v{CWA} offset:{st*A_SUB + ks*6144 + pn*1024 + t*512}")
            return r
        def work(ks, st):
            b = BUF + 16*ks + 32*st
            w = {1: k.mfma_s(ACC+16, b+8, b), 2: k.mfma_s(ACC+32, b, b+12), 0: k.mfma_s(ACC, b+4, b)}
            return [w[pn] for pn in pns]
        return reads, work
    def epi(items):
        P = X
        for (a, sc, st) in items:
            for j in range(2):
                for i in range(8*j, 8*j+8):
                    mm_ = f"v{RSTD}" if sc is None else f"v{RF+i}"
                    k(f"v_mul_f32 v{a+i}, v{a+i}, {mm_}")
                for i in range(4*j, 4*j+4):
                    k(f"v_cvt_pk_bf16_f32 v{P+i}, v{a+2*i}, v{a+2*i+1}")
                k(f"buffer_store_dwordx4 {vr(P+4*j,4)}, {st[j][0]}, s[12:15], {st[j][1]} offen {st[j][2]} {HO}")
            P += 8
    def pre_first():
        k(f"ds_read_b32 v{RSTD}, v13")
        for g in range(4): k(f"ds_read_b128 {vr(RF+4*g,4)}, v14 offset:{g*32}")
    rd, wk = mk((1, 2))
    compute_loop(k, 16, 2, rd, wk, addr_update, 34, pair=True, pre_first=pre_first)
    if not E("XMARK", 0): k.mark(2)
    k("s_nop 10")
    epi(((ACC+16, None, [(f"v{L16}", "s37", ""), (f"v{L16}", "s38", "")]),
         (ACC+32, "rf", [(f"v{VA}", "s37", "offset:1024"), (f"v{VA}", "s37", "offset:1536")])))
    nA = k.bars - b0
    k(f"s_branch {lendA}")
    k.label(lhiA)
    k.bars = b0
    lnn, ltp, lnt = k.new("nn"), k.new("tp"), k.new("nt")
    k.srd(16, PDBG, 256)
    k(f"""
    v_mov_b32 v10, 0
    s_cmp_lg_u32 s{CW}, 7
    s_cbranch_scc1 {lnn}
    s_cmp_lg_u32 s2, 0
    s_cbranch_scc1 {lnn}
    s_memrealtime s[84:85]
    s_waitcnt lgkmcnt(0)
    s_or_b32 s84, s84, 1
    v_mov_b32 v8, s84
    v_mov_b32 v9, s85
    s_mov_b64 exec, 1
    buffer_store_dwordx2 v[8:9], v10, s[16:19], 0 offen {HO}
    s_mov_b64 exec, -1
    """)
    k.label(lnn)
    def tagload():
        l = k.new("tg")
        k(f"s_cmp_lg_u32 s{CW}, 7\ns_cbranch_scc1 {l}\nbuffer_load_dwordx2 v[8:9], v10, s[16:19], 0 offen {HO}")
        k.label(l)
    rd, wk = mk((0,))
    QL = E("QLAG", 4)
    if QL:
        compute_loop(k, 16 - 2*QL, 2, rd, wk, addr_update, 34, pair=True, pre_first=lambda: k(f"ds_read_b32 v{RSTD}, v13"))
        addr_update()
        k(f"v_mul_f32 v{RSTD}, {f32(0.25*LOG2E)}, v{RSTD}")
        k.idle_bars(QL)
        tagload()
        compute_loop(k, 2*QL, 2, rd, wk, addr_update, 34, pair=True, nobar=True)
    else:
        compute_loop(k, 16, 2, rd, wk, addr_update, 34, pair=True, pre_first=lambda: k(f"ds_read_b32 v{RSTD}, v13"),
                     tail=(tagload, lambda: k(f"v_mul_f32 v{RSTD}, {f32(0.25*LOG2E)}, v{RSTD}")))
    assert k.bars - b0 == nA
    k("s_nop 11")
    epi(((ACC, None, [(f"v{L16}", "s39", ""), (f"v{L16}", "s36", "")]),))
    k(f"""
    s_cmp_lg_u32 s{CW}, 7
    s_cbranch_scc1 {lendA}
    s_mov_b32 s45, 30000
    s_waitcnt vmcnt(2)
    """)
    k.label(ltp)
    k(f"""
    v_readfirstlane_b32 s84, v8
    v_readfirstlane_b32 s85, v9
    s_nop 3
    s_cmp_lg_u32 s84, 0
    s_cbranch_scc1 {lendA}
    buffer_load_dwordx2 v[8:9], v10, s[16:19], 0 offen {HO}
    s_waitcnt vmcnt(0)
    s_sub_u32 s45, s45, 1
    s_cmp_lg_u32 s45, 0
    s_cbranch_scc1 {ltp}
    """)
    k.label(lendA)
    def end_phase(out_arr, out_line, in_arr, in_line, n_in, between=None, after_prio=0):
        HM = E("HMARK", -1) == out_arr
        l0, ls, lp = k.new("na"), k.new("ns"), k.new("np")
        k(f"s_cmp_lg_u32 s{CW}, 7\ns_cbranch_scc1 {l0}")
        out_line(); in_line()
        poll_addr(k, in_arr, 47, n_in)
        k(f"""
        s_lshl_b32 s46, s46, 7
        s_add_u32 s46, s46, {WS_FL + out_arr*32768}
        v_mov_b32 v4, s84
        v_mov_b32 v5, s85
        v_mov_b32 v7, 0
        {"s_setprio 3" if E("SPRIO", 0) else ""}
        """)
        k.label(l0)
        k("s_waitcnt vmcnt(0)")
        if HM: k.mark(0)
        k(f"s_cmp_lg_u32 s{CW}, 7")
        k.bar()
        if HM:
            k.mark(1); k(f"s_cmp_lg_u32 s{CW}, 7")
        k(f"""
        s_cbranch_scc1 {ls}
        s_mov_b64 exec, 1
        buffer_store_dwordx2 v[4:5], v7, s[12:15], s46 offen {HO}
        """)
        if E("EARLYPOLL", 0): poll_issue(k)
        else: k("s_mov_b64 exec, -1")
        k.label(ls)
        if E("FBAR", 1): k.bar()
        if between: between()
        if (GB >> out_arr) & 1: k.bar()
        k(f"s_cmp_lg_u32 s{CW}, 7\ns_cbranch_scc1 {lp}")
        if HM: k.mark(2)
        if E("SPRIO", 0): k("s_setprio 3")
        if not E("EARLYPOLL", 0): poll_issue(k)
        poll_loop(k)
        if E("SPRIO", 0): k(f"s_setprio {after_prio}")
        if HM: k.mark(3)
        k.label(lp)
        k.bar()
    AK, AV, Q, KF, VF, P, C, O, S0, M, T = 10, 11, 12, 16, 24, 40, 48, 64, 80, 112, 113
    AV0, AVS, VSY, VFM, VF4 = 118, 119, 120, 121, 124
    NIT = 16
    SW = E("SW", 12)
    def zero_state():
        for i in range(16): k(f"v_mov_b32 v{O+i}, 0")
        for i in range(4): k(f"v_mov_b32 v{P+4+i}, 0\nv_mov_b32 v{VF+12+i}, 0")
    def b_setup():
        lp = k.new("pr")
        k(f"""
        s_lshl_b32 s29, s{QB}, 3
        s_add_u32 s29, s29, s{CW}
        s_lshl_b32 s30, s{HEAD}, 16
        s_lshl_b32 s31, s29, 10
        s_add_u32 s30, s30, s31
        s_add_u32 s30, s30, {WS_QF}
        s_lshl_b32 s43, s{HEAD}, 17
        s_add_u32 s43, s43, {WS_KV}
        v_and_b32 v{T+1}, 11, v0
        v_cmp_eq_u32 vcc, 0, v{T+1}
        v_mov_b32 v{T+2}, 0x3f803f80
        s_lshl_b32 s31, s{CW}, 10
        s_add_u32 s31, s31, {ONESB}
        v_cndmask_b32 v{S0}, 0, v{T+2}, vcc
        v_add_u32 v{T+1}, s31, v{L16}
        v_mov_b32 v{S0+1}, v{S0}
        v_mov_b32 v{S0+2}, v{S0}
        v_mov_b32 v{S0+3}, v{S0}
        ds_write_b128 v{T+1}, {vr(S0,4)}
        ds_write_b128 v{T+1}, {vr(S0,4)} offset:2048
        v_and_b32 v{AV0}, 15, v0
        v_lshlrev_b32 v{AV0}, 4, v{AV0}
        v_lshl_add_u32 v{AV0}, v{HH}, 8, v{AV0}
        v_and_b32 v{T+1}, 16, v0
        v_cmp_eq_u32 vcc, 0, v{T+1}
        v_mov_b32 v{T+1}, {ONESB}
        v_mov_b32 v{T+2}, 1024
        v_mov_b32 v{T+3}, 8192
        v_cndmask_b32 v{T+1}, v{T+1}, v{T+2}, vcc
        v_cndmask_b32 v{AVS}, 0, v{T+3}, vcc
        v_add_u32 v{AV0}, v{AV0}, v{T+1}
        v_mov_b32 v{VSY}, {B_SYNC}
        s_mov_b32 s40, 0x400000
        s_mov_b32 s36, 0
        s_lshl_b32 s29, s29, 15
        s_lshl_b32 s31, s{HEAD}, 10
        s_add_u32 s29, s29, s31
        s_add_u32 s29, s29, {WS_OF}
        s_setprio 1
        s_cmp_lt_u32 s{CW}, 4
        s_cbranch_scc1 {lp}
        s_setprio 2
        """)
        k.label(lp)
        zero_state()
        k("s_waitcnt lgkmcnt(0)")
    if not E("XMARK", 0): k.mark(3)
    if E("HMARK", -1) == 0:
        k.mark(5)
    end_phase(0, lambda: k(f"s_lshl_b32 s46, s{NTA}, 5\ns_add_u32 s46, s46, s{MTA}"),
              0, lambda: k(f"s_lshr_b32 s47, s{HEAD}, 2\ns_lshl_b32 s47, s47, 5"), 32, between=b_setup, after_prio=2)
    cnt['A'] = k.bars
    k.mark(4)
    if E("HMARK", -1) == 0: k.mark = lambda i: None
    k(f"buffer_load_dwordx4 {vr(Q,4)}, v{L16}, s[12:15], s30 offen {HO}")
    def spin(need):
        l = k.new("sp")
        k.label(l)
        k(f"""
        ds_read_b128 {vr(VF4,4)}, v{VSY}
        s_sub_u32 s40, s40, 1
        s_cbranch_scc1 Lexit
        s_waitcnt lgkmcnt(0)
        v_min3_u32 v{VFM}, v{VF4}, v{VF4+1}, v{VF4+2}
        v_min_u32 v{VFM}, v{VFM}, v{VF4+3}
        v_cmp_gt_u32 vcc, {need}, v{VFM}
        s_cbranch_vccnz {l}
        """)
    if E("K0G", 1):
        k(f"buffer_load_dwordx4 {vr(KF,4)}, v{L16}, s[12:15], s43 offen {HO}\ns_waitcnt vmcnt(0)")
    else:
        k("s_waitcnt vmcnt(0)")
        spin(1)
        k(f"ds_read_b128 {vr(KF,4)}, v{L16}\ns_waitcnt lgkmcnt(0)")
    k.mfma(S0, KF, Q, "0")
    k("s_nop 15")
    def max16(src, dst, first):
        if first:
            k(f"v_max3_f32 v{dst}, v{src}, v{src+1}, v{src+2}\nv_max_f32 v{dst}, v{dst}, v{src+3}")
            rng = range(4, 16, 2)
        else: rng = range(0, 16, 2)
        for i in rng: k(f"v_max3_f32 v{dst}, v{dst}, v{src+i}, v{src+i+1}")
    max16(S0, M, True)
    lhave, lnob, lloop, lswp, ldone, lmax, lfin = [k.new(x) for x in ("have","nobar","aloop","swp","adone","maxl","afin")]
    k.label(lhave)
    k(f"""
    v_mov_b32 v{T+1}, v{M}
    v_mov_b32 v{AK}, v{L16}
    v_mov_b32 v{AV}, v{AV0}
    v_permlane32_swap_b32 v{M}, v{T+1}
    s_mov_b32 s37, 0
    s_mov_b32 s42, 3
    v_max_f32 v{M}, v{M}, v{T+1}
    """)
    for i in range(16): k(f"v_sub_f32 v{C+i}, 0, v{M}")
    k("s_nop 1")
    k.mfma(S0, KF, Q, C)
    spin(1)
    k(f"""
    ds_read_b128 {vr(KF+4,4)}, v{AK} offset:2048
    ds_read_b128 {vr(VF,4)}, v{AV}
    ds_read_b128 {vr(VF+4,4)}, v{AV} offset:512
    """)
    lcp = k.new("cp")
    if E("CYC", 0): k.mark(0)
    k.label(lcp)
    spin("s42")
    k(f"""
    v_readfirstlane_b32 s38, v{VFM}
    s_mov_b32 s41, 0
    s_add_u32 s43, s37, 1
    s_max_u32 s43, s43, {SW}
    s_sub_u32 s39, s38, 1
    s_lshr_b32 s39, s39, 1
    s_min_u32 s39, s39, s43
    s_lshl_b32 s42, s39, 1
    s_add_u32 s42, s42, 3
    s_min_u32 s42, s42, 32
    s_cmp_ge_u32 s38, 32
    s_cselect_b32 s39, s43, s39
    s_cselect_b32 s41, 1, 0
    """)
    k.label(lloop)
    for t in range(4):
        sb = S0 + 16*(t & 1); sn = S0 + 16*((t+1) & 1)
        kn = KF + 4*((t+1) & 1); kf = KF + 4*(t & 1)
        vc = VF + 8*(t & 1); vn = VF + 8*((t+1) & 1)
        ex = lambda i: k(f"v_exp_f32 v{sb+i}, v{sb+i}")
        cv = lambda i: k(f"v_cvt_pk_bf16_f32 v{P+i}, v{sb+2*i}, v{sb+2*i+1}")
        k("s_waitcnt lgkmcnt(0)")
        k.mfma(sn, kn, Q, C)
        ex(0); ex(1); ex(2); ex(3)
        k.mfma(O, vn+4, P+4)
        k(f"ds_read_b128 {vr(kf,4)}, v{AK} offset:{(t+2)*2048}")
        k(f"ds_read_b128 {vr(vn,4)}, v{AV} offset:{(t+1)*2048}")
        k(f"ds_read_b128 {vr(vn+4,4)}, v{AV} offset:{(t+1)*2048+512}")
        ex(4); ex(5); ex(6); ex(7)
        for i in range(4): cv(i)
        ex(8); ex(9)
        k.mfma(O, vc, P)
        if t == 3: k("s_add_u32 s37, s37, 1\ns_cmp_lt_u32 s37, s39")
        for i in range(10, 16): ex(i)
        if t == 3:
            k(f"v_add_u32 v{AK}, 8192, v{AK}\nv_add_u32 v{AV}, v{AVS}, v{AV}")
        for i in range(4, 8): cv(i)
    k(f"""
    s_cbranch_scc1 {lloop}
    s_cmp_eq_u32 s37, {NIT}
    s_cbranch_scc1 {ldone}
    s_cmp_eq_u32 s41, 0
    s_cbranch_scc1 {lcp}
    """)
    k.label(lswp)
    if E("CYC", 0): k.mark(2)
    k(f"""
    s_mov_b32 s39, {NIT}
    s_cmp_lt_u32 s{CW}, 4
    s_cbranch_scc1 {lloop}
    s_setprio 0
    s_branch {lloop}
    """)
    k.label(ldone)
    k.mfma(O, VF+12, P+4)
    if E("CYC", 0): k.mark(3)
    k(f"""
    s_waitcnt lgkmcnt(0)
    s_mov_b32 s38, {f32(2.0**60)}
    s_nop 13
    v_cmp_nlt_f32 vcc, v{O+8}, s38
    v_rcp_f32 v{T+3}, v{O+8}
    s_cmp_lg_u32 s36, 0
    s_cbranch_scc1 {lfin}
    s_cbranch_vccz {lfin}
    s_mov_b32 s36, 1
    s_mov_b32 s37, 0
    v_mov_b32 v{AK}, v{L16}
    v_mov_b32 v{M}, 0xff800000
    """)
    zero_state()
    k.label(lmax)
    k(f"ds_read_b128 {vr(KF,4)}, v{AK}\ns_waitcnt lgkmcnt(0)")
    k.mfma(S0, KF, Q, "0")
    k("s_nop 15")
    max16(S0, M, False)
    k(f"""
    v_add_u32 v{AK}, 2048, v{AK}
    s_add_u32 s37, s37, 1
    s_cmp_lt_u32 s37, 64
    s_cbranch_scc1 {lmax}
    ds_read_b128 {vr(KF,4)}, v{L16}
    s_waitcnt lgkmcnt(0)
    s_branch {lhave}
    """)
    k.label(lfin)
    for i in range(8): k(f"v_mul_f32 v{O+i}, v{O+i}, v{T+3}")
    for i in range(4): k(f"v_cvt_pk_bf16_f32 v{P+i}, v{O+2*i}, v{O+2*i+1}")
    k(f"buffer_store_dwordx4 {vr(P,4)}, v{L16}, s[12:15], s29 offen {HO}")
    k("s_setprio 0")
    k.mark(5)
    AA, AW, CA, CWA = 10, 11, 12, 13
    ACC, BUF, T = 16, 32, 96
    def c_setup():
        k(f"""
        s_and_b32 s29, s{CW}, 1          ; ms
        s_bfe_u32 s30, s{CW}, 0x10001    ; nh
        s_lshl_b32 s31, s30, 6
        s_lshl_b32 s32, s29, 12
        v_add_u32 v{AA}, s32, v{L16}
        s_lshl_b32 s36, s{MT64}, 1
        s_add_u32 s36, s36, s29          ; mt32
        s_lshl_b32 s37, s{NT8}, 2
        s_lshl_b32 s38, s30, 1
        s_add_u32 s37, s37, s38          ; 2*nt32
        """)
        w_tr_addr(k, AW, 14, 15, 31, 512, 0)
    def c_between():
        c_setup()
        k(f"""
        v_add_u32 v{CA}, {C_A}, v{AA}
        v_mov_b32 v{CWA}, v{AW}
        v_lshlrev_b32 v14, 7, v{MM}
        v_add_u32 v14, s32, v14
        v_lshl_add_u32 v14, v{HH}, 3, v14
        v_add_u32 v14, {C_X}, v14
        v_bfe_u32 v15, v0, 1, 3
        v_lshlrev_b32 v15, 4, v15
        v_xor_b32 v15, s31, v15
        """)
        for g in range(4):
            k(f"v_xor_b32 v{T+16+g}, {g*16}, v15\nv_add_u32 v{T+16+g}, v{T+16+g}, v14")
    end_phase(1, lambda: k(f"s_lshl_b32 s46, s{QB}, 5\ns_add_u32 s46, s46, s{HEAD}"),
              1, lambda: k(f"s_lshr_b32 s47, s{MT64}, 2\ns_lshl_b32 s47, s47, 5"), -2, between=c_between)
    cnt['B'] = k.bars
    k.mark(6)
    def reads64(ks, st):
        b = BUF + 8*ks + 32*st
        return [f"ds_read_b128 {vr(b,4)}, v{CA} offset:{ks*1024}"] + \
               [f"ds_read_b64_tr_b16 {vr(b+4+2*t,2)}, v{CWA} offset:{ks*2048 + t*1024}" for t in range(2)]
    def work64(ks, st):
        b = BUF + 8*ks + 32*st
        return [k.mfma_s(ACC, b+4, b)]
    lhi, lend, lend2 = k.new("hiC"), k.new("endC"), k.new("endC2")
    k(f"s_cmp_ge_u32 s{CW}, 4\ns_cbranch_scc1 {lhi}")
    b0 = k.bars
    def c_first():
        for g in range(4): k(f"ds_read_b64 {vr(T+4+2*g,2)}, v{T+16+g}")
        k("s_waitcnt lgkmcnt(0)")
        for i in range(8):
            k(f"v_lshlrev_b32 v{ACC+2*i}, 16, v{T+4+i}\nv_and_b32 v{ACC+2*i+1}, 0xffff0000, v{T+4+i}")
    compute_loop(k, 8, 4, reads64, work64, lambda: k(f"v_add_u32 v{CA}, 8192, v{CA}\nv_add_u32 v{CWA}, 8192, v{CWA}"), 34, pre_first=c_first, mbar=True)
    k(f"""
    v_mov_b32 v{T+12}, 0x3f803f80
    v_mov_b32 v{T+14}, 0
    v_mov_b32 v{T+15}, 0
    s_lshl_b32 s38, s36, 15
    s_lshl_b32 s39, s37, 10
    s_add_u32 s38, s38, s39
    s_add_u32 s38, s38, {WS_HF}
    s_lshl_b32 s39, s36, 12
    s_lshl_b32 s40, s37, 7
    s_add_u32 s39, s39, s40
    s_add_u32 s39, s39, {WS_ST}
    v_lshlrev_b32 v{T+13}, 3, v{MM}
    s_nop 2
    """)
    for i in range(8): k(f"v_cvt_pk_bf16_f32 v{HSAVE+i}, v{ACC+2*i}, v{ACC+2*i+1}")
    k(f"buffer_store_dwordx4 {vr(HSAVE,4)}, v{L16}, s[12:15], s38 offen {HO}")
    k(f"buffer_store_dwordx4 {vr(HSAVE+4,4)}, v{L16}, s[12:15], s38 offen offset:1024 {HO}")
    for i in range(8):
        k(f"v_dot2_f32_bf16 v{T+14}, v{HSAVE+i}, v{T+12}, v{T+14}")
        k(f"v_dot2_f32_bf16 v{T+15}, v{HSAVE+i}, v{HSAVE+i}, v{T+15}")
    k("s_nop 2")
    xhalf_sum(k, T+14, T+16)
    xhalf_sum(k, T+15, T+16)
    k(f"s_mov_b32 exec_hi, 0\nbuffer_store_dwordx2 {vr(T+14,2)}, v{T+13}, s[12:15], s39 offen {HO}\ns_mov_b64 exec, -1")
    nC = k.bars - b0
    k(f"s_branch {lend}")
    k.label(lhi)
    k.bars = b0
    k.idle_bars(nC)
    k.label(lend)
    k.mark(7)
    f3_out = lambda: k(f"s_lshl_b32 s46, s{MT64}, 3\ns_add_u32 s46, s46, s{NT8}")
    f4_in = lambda: k(f"s_lshr_b32 s47, s{MT64}, 1\ns_lshl_b32 s47, s47, 4")
    def e_between():
        lh, lj = k.new("ebh"), k.new("ebj")
        k(f"s_cmp_ge_u32 s{CW}, 4\ns_cbranch_scc1 {lh}")
        c_setup()
        k(f"""
        v_add_u32 v{AA}, {E_A}, v{AA}
        s_mov_b32 s33, 0
        v_mov_b32 v{CA}, v{AA}
        v_mov_b32 v{CWA}, v{AW}
        s_mov_b32 s35, 0
        s_lshl_b32 s38, s{CW}, 12
        s_add_u32 s38, s38, {E_PB}
        v_add_u32 v14, s38, v{L16}
        s_lshl_b32 s38, s36, 15
        s_lshl_b32 s39, s37, 5
        s_add_u32 s38, s38, s39
        v_lshlrev_b32 v15, 10, v{MM}
        v_lshl_add_u32 v15, v{HH}, 4, v15
        """)
        k.srd(16, POUT, 2048*1024)
        hb = 136 if MISH2 else 16
        for i in range(8):
            k(f"v_lshlrev_b32 v{hb+2*i}, 16, v{HSAVE+i}\nv_and_b32 v{hb+2*i+1}, 0xffff0000, v{HSAVE+i}")
        if MISH2:
            for i in range(16): k(f"v_mov_b32 v{16+i}, 0")
            k(f"v_mov_b32 v152, {f32(LN2)}")
        k(f"s_branch {lj}")
        k.label(lh)
        k(f"""
        s_sub_u32 s29, s{CW}, 4
        s_lshl_b32 s33, s29, 10
        s_lshl_b32 s35, s29, 11
        s_lshl_b32 s29, s29, 4
        s_lshl_b32 s30, s{NT8}, 7
        s_mov_b32 s40, {(E_NR+E_DW)*65536}
        s_mul_i32 s41, s{MT64}, {2*112*1024}
        s_add_u32 s41, s41, s33
        s_add_u32 s41, s41, {WS_AF}
        """)
        w_dma_voff(k, 14, 15, 16, 1024, 29, 30)
        k.srd(16, PW2, 1792*1024)
        k("s_setprio 3")
        k.label(lj)
    lD, lE = k.new("phD"), k.new("phE")
    k(f"s_cmp_lt_u32 s2, 224\ns_cbranch_scc1 {lD}")
    b0 = k.bars
    end_phase(2, f3_out, 3, f4_in, 14, between=e_between, after_prio=3)
    k(f"s_branch {lE}")
    bskip = k.bars - b0
    k.bars = b0
    k.label(lD)
    DACC, DBUF, DT = 16, 48, 136
    RS, BB, CS = 8, 14, 15
    def d_between():
        k(f"""
        s_and_b32 s29, s{CW}, 1          ; mp
        s_lshr_b32 s30, s{CW}, 1         ; nq
        s_and_b32 s31, s30, 1
        s_lshl_b32 s31, s31, 6
        s_lshr_b32 s32, s30, 1
        s_lshl_b32 s32, s32, 13
        s_lshl_b32 s33, s29, 13
        s_add_u32 s33, s33, {D_A}
        v_add_u32 v{AA}, s33, v{L16}
        s_lshl_b32 s36, s{MT128}, 2
        s_lshl_b32 s37, s29, 1
        s_add_u32 s36, s36, s37
        s_lshl_b32 s37, s{NT14}, 2
        s_add_u32 s37, s37, s30          ; nt32 (0..55)
        s_lshl_b32 s38, s30, 10
        s_add_u32 s38, s38, {D_ST}
        v_add_u32 v{DT}, s38, v{L16}
        s_lshl_b32 s38, s29, 11
        s_add_u32 s38, s38, {D_ST + 4096}
        v_add_u32 v{DT+1}, s38, v{L16}
        s_mul_i32 s38, s36, {112*1024}
        s_lshl_b32 s39, s37, 11
        s_add_u32 s38, s38, s39
        s_add_u32 s38, s38, {WS_AF}
        s_add_u32 s39, s38, {112*1024}
        v_mov_b32 v{DT+2}, {f32(-2*LN2)}
        """)
        w_tr_addr(k, AW, DT+8, DT+9, 31, 512, D_W)
        k(f"""
        v_add_u32 v{AW}, s32, v{AW}
        v_mov_b32 v{CA}, v{AA}
        v_mov_b32 v{CWA}, v{AW}
        s_mov_b32 s33, 0
        s_mov_b32 s35, 0
        """)
        for i in range(32): k(f"v_mov_b32 v{DACC+i}, 0")
        if E("DPRIO", 1):
            lq = k.new("dp")
            k(f"s_cmp_ge_u32 s{CW}, 4\ns_cbranch_scc1 {lq}\ns_setprio 1")
            k.label(lq)
    end_phase(2, f3_out, 2, lambda: k(f"s_lshl_b32 s47, s{MT128}, 4"), 16, between=d_between)
    k.mark(8)
    def readsD(ks, st):
        b = DBUF + 12*ks + 24*st
        kk = 2*st + ks
        return [f"ds_read_b64_tr_b16 {vr(b+8+2*t,2)}, v{CWA} offset:{kk*2048 + t*1024}" for t in range(2)] + \
               [f"ds_read_b128 {vr(b,4)}, v{CA} offset:{kk*1024}", f"ds_read_b128 {vr(b+4,4)}, v{CA} offset:{4096+kk*1024}"]
    def workD(ks, st):
        b = DBUF + 12*ks + 24*st
        return [k.mfma_s(DACC, b+8, b), k.mfma_s(DACC+16, b+8, b+4)]
    def updD():
        ring_step(k, 33, 16384, D_DA*16384)
        ring_step(k, 35, 16384, D_DW*16384)
        k(f"v_add_u32 v{CA}, s33, v{AA}\nv_add_u32 v{CWA}, s35, v{AW}")
    OA, MB = 96, 100
    def tailD():
        k(f"""
        ds_read_b128 {vr(OA,4)}, v{DT}
        ds_read_b128 {vr(MB,4)}, v{DT+1}
        ds_read_b128 {vr(MB+4,4)}, v{DT+1} offset:1024
        """)
    def tailD2():
        k(f"""
        v_mov_b32 v{RS}, v{MB+3}
        v_mov_b32 v{RS+1}, v{MB+7}
        v_mov_b32 v{MB+3}, 0
        v_mov_b32 v{MB+7}, 0
        s_nop 0
        """)
        k.mfma(DACC, OA, MB)
        k.mfma(DACC+16, OA, MB+4)
    if DLAG:
        ly, lj = k.new("dy"), k.new("dj")
        k(f"s_cmp_ge_u32 s{CW}, 4\ns_cbranch_scc1 {ly}")
        b1 = k.bars
        compute_loop(k, 16, 2, readsD, workD, updD, 34, pair=True, tail=(tailD, tailD2))
        nb = k.bars - b1
        k(f"s_setprio 0\ns_branch {lj}")
        k.label(ly)
        k.bars = b1
        compute_loop(k, 16 - 2*DLAG, 2, readsD, workD, updD, 34, pair=True)
        updD()
        k.idle_bars(DLAG)
        assert k.bars - b1 == nb
        k(f"s_setprio {E('DYP', 0)}")
        compute_loop(k, 2*DLAG, 2, readsD, workD, updD, 34, pair=True, nobar=True, tail=(tailD, tailD2), hook=lambda: k("s_setprio 2"))
        k("s_setprio 0")
        k.label(lj)
        k.bars += 1
    else:
        compute_loop(k, 16, 2, readsD, workD, updD, 34, pair=True, tail=(tailD, tailD2), mbar=True)
    k.mark(9)
    k("s_nop 11")
    U, PP, U2 = DBUF, DBUF+16, DBUF+32
    for ms in range(2):
        a = DACC + 16*ms
        for i in range(16): k(f"v_mul_f32 v{a+i}, v{a+i}, v{RS+ms}")
        for i in range(16): k(f"v_exp_f32 v{U+i}, v{a+i}")
        if DLAG and ms == 0:
            l = k.new("mb")
            k(f"s_cmp_lt_u32 s{CW}, 4\ns_cbranch_scc1 {l}\ns_barrier")
            k.label(l)
        if MISH2:
            for i in range(16): k(f"v_fma_f32 v{U2+i}, v{U+i}, -0.5, -1.0")
            for i in range(16): k(f"v_fma_f32 v{U+i}, v{U+i}, v{U2+i}, -1.0")
            for i in range(16): k(f"v_rcp_f32 v{U+i}, v{U+i}")
            for i in range(16): k(f"v_fmac_f32 v{a+i}, v{a+i}, v{U+i}")
        else:
            for i in range(16): k(f"v_add_f32 v{U+i}, 1.0, v{U+i}")
            for i in range(16): k(f"v_fma_f32 v{U+i}, v{U+i}, v{U+i}, 1.0")
            for i in range(16): k(f"v_rcp_f32 v{U+i}, v{U+i}")
            for i in range(16): k(f"v_fmaak_f32 v{U+i}, v{U+i}, v{DT+2}, {f32(LN2)}")
            for i in range(16): k(f"v_mul_f32 v{a+i}, v{a+i}, v{U+i}")
        for i in range(8): k(f"v_cvt_pk_bf16_f32 v{PP+8*ms+i}, v{a+2*i}, v{a+2*i+1}")
        so = "s38" if ms == 0 else "s39"
        k(f"buffer_store_dwordx4 {vr(PP+8*ms,4)}, v{L16}, s[12:15], {so} offen {HO}")
        k(f"buffer_store_dwordx4 {vr(PP+8*ms+4,4)}, v{L16}, s[12:15], {so} offen offset:1024 {HO}")
        if DLAG and ms == E("DXB", 1):
            l = k.new("mb")
            k(f"s_cmp_ge_u32 s{CW}, 4\ns_cbranch_scc1 {l}\ns_barrier")
            k.label(l)
    k.mark(10)
    k("s_setprio 0")
    end_phase(3, lambda: k(f"s_lshl_b32 s46, s{MT128}, 4\ns_add_u32 s46, s46, s{NT14}"), 3, f4_in, 14, between=e_between, after_prio=3)
    cnt['Dextra'] = k.bars - b0 - bskip
    k.label(lE)
    k.mark(11)
    lhi = k.new("hiE")
    k(f"s_cmp_ge_u32 s{CW}, 4\ns_cbranch_scc1 {lhi}")
    b0 = k.bars
    def updE():
        ring_step(k, 33, 16384, E_DA*16384)
        ring_step(k, 35, 8192, E_DW*8192)
        k(f"v_add_u32 v{CA}, s33, v{AA}\nv_add_u32 v{CWA}, s35, v{AW}")
    P2 = 96
    def rdE(st, aoff):
        out = []
        for ks in range(4):
            b = BUF + 8*ks + 32*st
            out += [f"ds_read_b128 {vr(b,4)}, v{CA} offset:{aoff + ks*1024}"] + \
                   [f"ds_read_b64_tr_b16 {vr(b+4+2*t,2)}, v{CWA} offset:{ks*2048 + t*1024}" for t in range(2)]
        return out
    wkE = lambda st: [x for ks in range(4) for x in work64(ks, st)]
    def stageE(st, bar, aoff=0, extra=()):
        k("s_waitcnt lgkmcnt(0)")
        if bar: k("s_barrier")
        w = wkE(1-st)
        for x in interleave(w[:3], rdE(st, aoff)) + [w[3]] + list(extra): k(x)
    updW = lambda: (ring_step(k, 35, 8192, E_DW*8192), k(f"v_add_u32 v{CWA}, s35, v{AW}"))
    k.bar()
    for x in rdE(0, 0): k(x)
    updE()
    k("s_mov_b32 s34, 6")
    lg = k.new("gl")
    k.label(lg)
    stageE(1, True); updE()
    k("s_sub_u32 s34, s34, 1")
    stageE(0, True)
    k("s_cmp_eq_u32 s34, 0")
    lgx = k.new("gx")
    k(f"s_cbranch_scc1 {lgx}")
    updE()
    k(f"s_branch {lg}")
    k.label(lgx)
    k.bars += 12
    updW()
    stageE(1, ETAIL, 8192)
    updE()
    stageE(0, True)
    updW()
    stageE(1, ETAIL, 8192)
    k.bars += 3 if ETAIL else 1
    w = wkE(1)
    k("s_waitcnt lgkmcnt(6)")
    k(w[0])
    for kh in range(2):
        for g in range(4): k(f"ds_read_b128 {vr(P2+16*kh+4*g,4)}, v14 offset:{kh*16384 + g*1024}")
    k(w[1])
    k("s_waitcnt lgkmcnt(11)")
    k(w[2])
    k("s_waitcnt lgkmcnt(8)")
    k(w[3])
    k("s_waitcnt lgkmcnt(0)")
    for i in range(16): k(f"v_add_f32 v{P2+i}, v{P2+i}, v{P2+16+i}")
    if MISH2:
        for i in range(16): k(f"v_fma_f32 v{P2+i}, v{P2+i}, v152, v{136+i}")
    cnt['total'] = k.bars
    PQ = 128
    for p in range(2):
        for i in range(8*p, 8*p+8): k(f"v_fma_f32 v{ACC+i}, v{ACC+i}, v152, v{P2+i}" if MISH2 else f"v_add_f32 v{ACC+i}, v{ACC+i}, v{P2+i}")
        for i in range(4*p, 4*p+4): k(f"v_cvt_pk_bf16_f32 v{PQ+i}, v{ACC+2*i}, v{ACC+2*i+1}")
        k("s_nop 1")
        k(f"v_permlane32_swap_b32 v{PQ+4*p}, v{PQ+4*p+2}\nv_permlane32_swap_b32 v{PQ+4*p+1}, v{PQ+4*p+3}")
        k(f"buffer_store_dwordx4 {vr(PQ+4*p,4)}, v15, s[16:19], s38 offen offset:{32*p} {os.environ.get('OUTF', '')}")
    if E("DBGT", 0):
        k.srd(16, PDBG, 256)
        k("""
        s_waitcnt vmcnt(0)
        s_memrealtime s[44:45]
        v_mov_b32 v4, 0
        buffer_load_dword v5, v4, s[16:19], 0 offen sc1
        s_waitcnt vmcnt(0) lgkmcnt(0)
        v_sub_u32 v5, s44, v5
        s_mov_b64 exec, 1
        buffer_atomic_umax v5, v4, s[16:19], 0 offen offset:16
        """)
    stamp_out(k)
    k("s_endpgm")
    k.label(lhi)
    k.bars = b0
    ops = Ops(k)
    def iAE(s):
        b = E_A + (s % E_DA)*16384
        g0 = E_NR*4096 + (s - E_NR)*4096 if s >= E_NR else E_NR*4096
        g1 = g0 + 4096 if s >= E_NR else 0
        parts = [(0, g0), (4096, g0 + 112*1024), (8192, g1), (12288, g1 + 112*1024)]
        for (lo, go) in parts:
            k(f"s_add_u32 m0, s33, {b + lo}\ns_add_u32 s32, s41, {go}")
            k(f"buffer_load_dwordx4 v{L16}, s[12:15], s32 offen {HOL} lds")
        k("s_add_u32 s41, s41, 4096")
        ops.add(("A", s), len(parts))
    def iWE(mm):
        b = E_W + (mm % E_DW)*8192
        for e in range(2):
            k(f"s_add_u32 m0, s35, {b + e*1024}\ns_add_u32 s32, s40, {e*8192}")
            k("buffer_load_dwordx4 v14, s[16:19], s32 offen lds")
        k("s_add_u32 s40, s40, 65536")
        ops.add(("W", 12 + (mm-12)//2), 2)
    WD = E("E_WD", 1)
    ab = {WD + 2*i: (lambda i=i: iWE(12+i)) for i in range(4)}
    if E("EMARK", 0): ab.update({s: (lambda s=s: k.mark(s//2)) for s in range(0, 14, 2)})
    if ETAIL: ab[12] = lambda: k.bar()
    ring_loader_main(k, ops, E_S, E_DA, 99, E("E_LA", 3), iAE, None, 0, E_S, after_bar=ab)
    if ETAIL: k.bars += 1
    assert k.bars == cnt['total']
    stamp_out(k)
    k("s_endpgm")
    return cnt

def build(path):
    k = K()
    if STAMP:
        k("s_memrealtime s[60:61]\ns_memtime s[62:63]\ns_waitcnt lgkmcnt(0)\ns_mov_b32 s63, s60")
        for i in range(12): k(f"s_mov_b32 s{88+i}, 0")
    k(f"""
    s_cmp_ge_u32 s2, 256
    s_cbranch_scc1 Lexit
    {"s_and_b32 s3, s2, 31" if E("BADMAP", 0) else ""}
    {"s_lshl_b32 s3, s3, 3" if E("BADMAP", 0) else ""}
    {"s_lshr_b32 s2, s2, 5" if E("BADMAP", 0) else ""}
    {"s_or_b32 s2, s2, s3" if E("BADMAP", 0) else ""}
    s_load_dwordx16 s[64:79], s[0:1], 0
    s_load_dwordx4 s[80:83], s[0:1], 64
    v_lshrrev_b32 v1, 6, v0
    v_and_b32 v0, 63, v0
    s_and_b32 s20, s2, 7
    v_readfirstlane_b32 s3, v1
    s_lshr_b32 s21, s2, 3
    v_lshrrev_b32 v{HH}, 5, v0
    v_lshlrev_b32 v{L16}, 4, v0
    v_and_b32 v{MM}, 31, v0
    s_and_b32 s28, s20, 3
    s_lshr_b32 s29, s20, 2
    s_lshl_b32 s{MTA}, s28, 3
    s_and_b32 s30, s21, 7
    s_add_u32 s{MTA}, s{MTA}, s30
    s_lshl_b32 s{NTA}, s29, 2
    s_lshr_b32 s30, s21, 3
    s_add_u32 s{NTA}, s{NTA}, s30
    s_lshl_b32 s{HEAD}, s20, 2
    s_and_b32 s30, s21, 3
    s_add_u32 s{HEAD}, s{HEAD}, s30
    s_lshr_b32 s{QB}, s21, 2
    s_mov_b32 s{MT64}, s{HEAD}
    s_mov_b32 s{NT8}, s{QB}
    s_lshl_b32 s{MT128}, s28, 2
    s_add_u32 s{MT128}, s{MT128}, s30
    s_mul_i32 s{NT14}, s29, 7
    s_add_u32 s{NT14}, s{NT14}, s{QB}
    """)
    if E("CFIRST", 1):
        k("s_cmp_lt_u32 s3, 4\ns_cbranch_scc1 Lloader")
        k.bars = 0
        c2 = compute(k)
        k.label("Lloader")
        k.bars = 0
        c1 = loader(k)
    else:
        k("s_cmp_ge_u32 s3, 4\ns_cbranch_scc1 Lcompute")
        k.bars = 0
        c1 = loader(k)
        k.label("Lcompute")
        k.bars = 0
        c2 = compute(k)
    assert c1 == c2, (c1, c2)
    k.label("Lexit")
    k("s_endpgm")
    ref = open(f"cdna_kernels/{NAME}.s.ref").read().split("\n")
    head = [l for l in ref if l.startswith(";") and "@launch" not in l]
    out = "\n".join(head) + f"\n; @launch grid=(256,1,1) block=(768,1,1) lds={LDS_TOTAL}\n"
    out += f'.amdgcn_target "amdgcn-amd-amdhsa--gfx950"\n.text\n.globl {NAME}_kernel\n.p2align 8\n.type {NAME}_kernel,@function\n{NAME}_kernel:\n'
    out += "\n".join(k.L).replace("CODE_SPAN", f"Lexit - {NAME}_kernel - 4") + "\n"
    out += f""".section .rodata,"a"
.p2align 6
.amdhsa_kernel {NAME}_kernel
  .amdhsa_next_free_vgpr 168
  .amdhsa_next_free_sgpr 102
  .amdhsa_accum_offset 168
  .amdhsa_group_segment_fixed_size 0
  .amdhsa_kernarg_size 80
  .amdhsa_user_sgpr_count 2
  .amdhsa_user_sgpr_kernarg_segment_ptr 1
  .amdhsa_system_sgpr_workgroup_id_x 1
.end_amdhsa_kernel
"""
    open(path, "w").write(out)
    print("barriers", c1, "lines", len(k.L))
if __name__ == "__main__":
    build(sys.argv[1])
```

```python
import sys, os
from fz import *

A_DP = 4
A_SUB = 12288
A_WB = 65536
A_RS = LDS_TOTAL - 256
assert A_WB + A_DP*2*A_SUB <= LDS_TOTAL
B_SLAB = 141312
B_SYNC = 157696
ONESB = 131072
C_W, C_A, C_X = 0, 65536, 149504
D_DW, D_DA = E("D_DW", 5), E("D_DA", 4)
D_W, D_A, D_ST = 0, D_DW*16384, (D_DW+D_DA)*16384
assert D_ST + 8192 <= LDS_TOTAL
E_DW, E_DA = 12, 4
E_S = 14
E_NR = 12
RW = 72
GB = E('GB', 14)
GW = E('GW', 63)
DTAIL = E('DTAIL', 0)
DLAG = E('DLAG', 0)
MISH2 = E('MISH2', 1)
ETAIL = E('ETAIL', 1)
E_PB = 4*8192
E_W, E_A = 0, E_DW*8192
assert E_DW*8192 + E_DA*16384 <= LDS_TOTAL
STG = 24
MT64, NT8, HEAD, QB, MT128, NT14 = 22, 23, 24, 25, 26, 27
MTA, NTA = 56, 57
NT_A = "nt" if E("NT_A", 0) else ""
NT_B = "nt" if E("NT_B", 0) else ""
NT_W1 = "nt" if E("NT_W1", 0) else ""
NT_WO = "nt" if E("NT_WO", 0) else ""
NT_OH = "nt" if E("NT_OH", 0) else ""

def stamp_out(k):
    if not STAMP: return
    if E("DBGW", 0):
        l = k.new("nodbg")
        k(f"""
        s_cmp_lg_u32 s2, {E("DBGWG", 0)}
        s_cbranch_scc1 {l}
        s_cmp_lg_u32 s3, 4
        s_cbranch_scc1 {l}
        s_waitcnt vmcnt(0) lgkmcnt(0)
        s_memrealtime s[60:61]
        s_memtime s[86:87]
        s_waitcnt lgkmcnt(0)
        s_sub_u32 s86, s86, s62
        s_sub_u32 s60, s60, s63
        s_mov_b64 exec, 1
        v_mov_b32 v0, 0
        v_mov_b32 v4, s60
        v_mov_b32 v5, s86
        global_store_dwordx2 v0, v[4:5], s[80:81] offset:8
        """)
        for j in range(3):
            for i in range(4): k(f"s_sub_u32 s{88+4*j+i}, s{88+4*j+i}, s63\nv_mov_b32 v{8+4*j+i}, s{88+4*j+i}")
            k(f"global_store_dwordx4 v0, v[{8+4*j}:{11+4*j}], s[80:81] offset:{16+16*j}")
        k.label(l)
        return
    k(f"""
    s_waitcnt vmcnt(0) lgkmcnt(0)
    s_memrealtime s[60:61]
    s_memtime s[86:87]
    s_lshl_b32 s44, s2, 4
    s_add_u32 s44, s44, s3
    s_lshl_b32 s44, s44, 6
    s_add_u32 s44, s44, {WS_DBG}
    s_waitcnt lgkmcnt(0)
    s_sub_u32 s86, s86, s62
    s_mov_b64 exec, 1
    v_mov_b32 v0, s44
    v_mov_b32 v4, s63
    v_mov_b32 v5, s60
    v_mov_b32 v6, s86
    v_mov_b32 v7, 0
    global_store_dwordx4 v0, v[4:7], s[82:83]
    """)
    for j in range(3):
        for i in range(4): k(f"v_mov_b32 v{8+4*j+i}, s{88+4*j+i}")
        k(f"global_store_dwordx4 v0, v[{8+4*j}:{11+4*j}], s[82:83] offset:{16+16*j}")

def loader(k):
    cnt = {}
    ops = Ops(k)
    if E("CODEPF", 2) == 1:
        lnp = k.new("ncp")
        k(f"""
        s_getpc_b64 s[40:41]
        LPC0:
        s_sub_u32 s40, s40, LPC0 - {NAME}_kernel
        s_subb_u32 s41, s41, 0
        v_lshlrev_b32 v5, 7, v0
        s_lshl_b32 s42, s3, 13
        v_add_u32 v5, s42, v5
        v_min_u32 v5, CODE_SPAN, v5
        global_load_dword v6, v5, s[40:41]
        """)
    k(f"""
    s_add_u32 s28, s{MTA}, s{NTA}
    s_and_b32 s28, s28, 7
    s_mul_i32 s28, s28, {64*3072}
    s_lshl_b32 s29, s3, 3            ; 8*w rows
    s_lshl_b32 s30, s{NTA}, 7
    s_lshl_b32 s33, s3, 10           ; w*1024
    s_lshl_b32 s35, s3, 11           ; w*2048
    s_mul_i32 s31, s3, 3072
    s_add_u32 s31, s31, {A_WB}
    """)
    w_dma_voff(k, 4, 9, 10, 3072, 29, 30)
    k("s_waitcnt lgkmcnt(0)")
    k.srd(16, PWQKV, 512*1536*2)
    k.srd(12, PWS, WS_SIZE)
    if E("TLBW", 0):
        ltl = k.new("tl")
        k(f"""
        v_lshlrev_b32 v9, 21, v0
        s_cmp_lg_u32 s3, 0
        s_cbranch_scc1 {ltl}
        s_mov_b64 exec, 0x3ff
        buffer_load_dword v10, v4, s[16:19], s28 offen
        buffer_load_dword v11, v9, s[12:15], 0 offen
        s_mov_b64 exec, -1
        """)
        k.label(ltl)
    PBAR = E("PBAR", 0)
    def issueW_A(p):
        b = (p % A_DP) * 2*A_SUB
        k(f"s_add_u32 m0, s31, {b}\ns_add_u32 s32, s28, {32*3072}")
        for pn in range(3): k(f"buffer_load_dwordx4 v4, s[16:19], s28 offen offset:{pn*1024} {NT_A} lds")
        k(f"s_add_u32 m0, s31, {b + A_SUB}")
        ring_step(k, 28, 64*3072, 512*3072)
        n2 = 2 if p == 3 else 3
        for pn in range(n2): k(f"buffer_load_dwordx4 v4, s[16:19], s32 offen offset:{pn*1024} {NT_A} lds")
        if p == 3: k("s_mov_b32 s36, s32")
        ops.add(("W", p), 3 + n2)
    def late_piece():
        k(f"s_add_u32 m0, s31, {3*2*A_SUB + A_SUB}\ns_nop 0")
        k(f"buffer_load_dwordx4 v4, s[16:19], s36 offen offset:2048 {NT_A} lds")
        ops.add(("W", 3), 1)
    def issueW_A2(p):
        if p == 4: late_piece()
        issueW_A(p)
    for p in range(E("A_PRE", 3)):
        if p == PBAR: k.bar()
        issueW_A(p)
    k.mark(0)
    ring_loader_main(k, ops, 8, 99, A_DP, 99, None, issueW_A2, 8, E("A_PRE", 3), bmark=E("AMARK", 0))
    if E("AMARK", 0): k.mark = lambda i: None
    k.mark(1)
    k.bar()
    if E('FBAR', 1): k.bar()
    k(f"""
    s_lshl_b32 s28, s{HEAD}, 17
    s_add_u32 s28, s28, s33
    s_add_u32 s28, s28, {WS_KV}
    s_lshl_b32 s29, s3, 2
    s_add_u32 s29, s29, {B_SYNC}
    v_mov_b32 v22, s29
    v_mov_b32 v23, 0
    ds_write_b32 v22, v23
    """)
    k.srd(16, PWO, 512*1024)
    k.srd(36, PW1, 512*3584)
    k.srd(48, PW2, 1792*1024)
    k.srd(52, PX, 2048*1024)
    k(f"""
    s_lshl_b32 s29, s3, 4            ; 16w
    s_lshl_b32 s30, s{NT8}, 7
    s_lshl_b32 s31, s{MT64}, 6
    s_add_u32 s31, s31, s29
    s_lshl_b32 s32, s{NT14}, 8
    """)
    w_dma_voff(k, 4, 5, 6, 1024, 29, 30)
    x_dma_voff(k, 7, 8, 5, 6, 31, 30)
    w_dma_voff(k, 9, 5, 6, 3584, 29, 32)
    k(f"""
    v_lshlrev_b32 v5, 7, v0
    v_lshrrev_b32 v11, 4, v0
    v_mul_u32_u24 v11, 3584, v11
    v_and_b32 v12, 15, v0
    v_min_u32 v12, 13, v12
    v_lshl_add_u32 v11, v12, 7, v11
    s_lshl_b32 s41, s21, 2
    s_add_u32 s41, s41, s3
    s_lshl_b32 s42, s41, 13          ; j*8KB
    s_mul_i32 s40, s41, {4*3584}
    s_lshr_b32 s45, s20, 2
    s_mul_i32 s45, s45, 1792
    s_add_u32 s40, s40, s45
    s_add_u32 s47, s42, {768*1024}
    s_lshl_b32 s44, s20, 6
    s_add_u32 s44, s44, s29
    s_min_u32 s45, s21, 27
    s_lshl_b32 s45, s45, 7
    """)
    w_dma_voff(k, 18, 19, 20, 3584, 44, 45)
    k(f"s_mov_b32 s45, 0")
    w_tr_addr(k, 19, 20, 21, 45, 512, B_SLAB)
    k(f"""
    v_add_u32 v19, s35, v19
    v_xor_b32 v21, 64, v19
    v_mov_b32 v24, 0x3f803f80
    v_mov_b32 v25, 0x3f803f80
    v_mov_b32 v26, 0x3f803f80
    v_mov_b32 v27, 0x3f803f80
    s_lshl_b32 s44, s20, 2
    s_add_u32 s44, s44, s3
    s_mul_i32 s44, s44, {1792*4}
    s_lshl_b32 s45, s21, 8
    s_add_u32 s44, s44, s45
    s_add_u32 s44, s44, {WS_C1}
    v_lshlrev_b32 v20, 2, v{MM}
    s_and_b32 s29, s3, 1             ; nh
    s_lshr_b32 s31, s3, 1            ; kh
    s_lshl_b32 s29, s29, 6
    s_lshl_b32 s32, s{NT8}, 7
    s_add_u32 s29, s29, s32
    s_lshl_b32 s31, s31, 15
    s_add_u32 s46, s29, s31
    v_lshrrev_b32 v10, 2, v0
    v_lshlrev_b32 v10, 10, v10
    v_and_b32 v12, 3, v0
    v_lshl_add_u32 v10, v12, 4, v10  ; 16 rows x 64B
    v_add_u32 v17, 16384, v10
    v_lshlrev_b32 v13, 8, v{HH}
    v_bfe_u32 v6, v0, 2, 2
    v_lshl_add_u32 v13, v6, 6, v13
    v_bfe_u32 v6, v0, 4, 1
    v_lshl_add_u32 v13, v6, 5, v13
    v_lshl_add_u32 v13, v12, 3, v13
    s_add_u32 s29, s35, {B_SLAB}
    v_add_u32 v13, s29, v13
    v_add_u32 v12, s29, v{L16}
    v_mov_b32 v23, 1
    s_mov_b32 m0, s33
    s_mov_b32 s30, 29
    s_waitcnt lgkmcnt(0)
    s_setprio 3
    """)
    k.bar()
    cnt['A'] = k.bars
    k.mark(2)
    BWIN = E("B_WIN", 5)
    for i in range(3):
        k(f"buffer_load_dwordx4 v{L16}, s[12:15], s28 offen {HOL} lds\ns_add_u32 m0, m0, 4096\ns_add_u32 s28, s28, 4096")
    k(f"s_waitcnt vmcnt(2)\nds_write_b32 v22, v23\ns_mov_b32 s31, {3 - BWIN}")
    l = k.new("rd")
    k.label(l)
    k(f"""
    buffer_load_dwordx4 v{L16}, s[12:15], s28 offen {HOL} lds
    s_add_u32 m0, m0, 4096
    s_add_u32 s28, s28, 4096
    s_add_u32 s31, s31, 1
    s_max_i32 s32, s31, 1
    v_mov_b32 v23, s32
    s_waitcnt vmcnt({BWIN})
    ds_write_b32 v22, v23
    s_sub_u32 s30, s30, 1
    s_cmp_lg_u32 s30, 0
    s_cbranch_scc1 {l}
    v_mov_b32 v23, 32
    s_waitcnt vmcnt(0)
    ds_write_b32 v22, v23
    """)
    lns = k.new("nosl")
    k(f"""
    buffer_load_dword v14, v5, s[16:19], s42 offen
    buffer_load_dword v15, v11, s[36:39], s40 offen
    buffer_load_dword v16, v5, s[48:51], s47 offen
    s_add_u32 m0, s35, {C_X}
    s_mov_b32 s45, {8*3584}
    buffer_load_dwordx4 v7, s[52:55], 0 offen lds
    s_add_u32 m0, s35, {C_X + 1024}
    s_nop 0
    buffer_load_dwordx4 v8, s[52:55], 0 offen lds
    s_cmp_ge_u32 s2, 224
    s_cbranch_scc1 {lns}
    s_add_u32 m0, s35, {B_SLAB}
    s_nop 0
    buffer_load_dwordx4 v18, s[36:39], 0 offen lds
    s_add_u32 m0, s35, {B_SLAB + 1024}
    s_nop 0
    buffer_load_dwordx4 v18, s[36:39], s45 offen lds
    s_waitcnt vmcnt(0)
    ds_read_b64_tr_b16 v[28:29], v19
    ds_read_b64_tr_b16 v[30:31], v19 offset:1024
    ds_read_b64_tr_b16 v[32:33], v21
    ds_read_b64_tr_b16 v[34:35], v21 offset:1024
    s_waitcnt lgkmcnt(0)
    """)
    k.mfma(36, 24, 28, "0")
    k.mfma(52, 24, 32, "0")
    k(f"""
    s_nop 15
    s_mov_b32 exec_hi, 0
    buffer_store_dword v36, v20, s[12:15], s44 offen {HO}
    buffer_store_dword v52, v20, s[12:15], s44 offen offset:128 {HO}
    s_mov_b64 exec, -1
    """)
    k.label(lns)
    NF = 2*E_NR
    for j in range(NF):
        k(f"buffer_load_dwordx4 {vr(RW+4*j,4)}, v{10 if j % 2 == 0 else 17}, s[48:51], s46 offen")
        if j % 2 == 1: k("s_add_u32 s46, s46, 65536")
    k("s_waitcnt vmcnt(0)")
    def bounce():
        for j in range(0, NF, 2):
            k(f"""
            ds_write_b128 v12, {vr(RW+4*j,4)}
            ds_write_b128 v12, {vr(RW+4*j+4,4)} offset:1024
            ds_read_b64_tr_b16 {vr(RW+4*j,2)}, v13
            ds_read_b64_tr_b16 {vr(RW+4*j+2,2)}, v13 offset:512
            ds_read_b64_tr_b16 {vr(RW+4*j+4,2)}, v13 offset:1024
            ds_read_b64_tr_b16 {vr(RW+4*j+6,2)}, v13 offset:1536
            s_waitcnt lgkmcnt(6)
            """)
        k("s_waitcnt lgkmcnt(0)")
    if E("BOUNCE", 2) == 1:
        k("s_setprio 0"); bounce()
    ops.ops = []
    k.mark(3)
    k.bar()
    if E('FBAR', 1): k.bar()
    k.mark(4)
    k("s_setprio 0")
    def issueW64(wsrd, b):
        for e in range(2):
            k(f"s_add_u32 m0, s35, {b + e*1024}\ns_add_u32 s32, s40, {e*8192}")
            k(f"buffer_load_dwordx4 v4, s[{wsrd}:{wsrd+3}], s32 offen {NT_WO if wsrd == 16 else str()} lds")
        k("s_add_u32 s40, s40, 65536")
    def issueA64(b, KS):
        k(f"s_add_u32 m0, s33, {b}\ns_add_u32 s32, s41, {KS*1024}")
        k(f"buffer_load_dwordx4 v{L16}, s[12:15], s41 offen {HOL} {NT_OH if KS == 32 else str()} lds")
        k(f"s_add_u32 m0, s33, {b + 4096}\ns_add_u32 s41, s41, 4096")
        k(f"buffer_load_dwordx4 v{L16}, s[12:15], s32 offen {HOL} {NT_OH if KS == 32 else str()} lds")
    def setup64(KS, ACT):
        k(f"""
        s_mov_b32 s40, 0
        s_mul_i32 s41, s{MT64}, {2*KS*1024}
        s_add_u32 s41, s41, s33
        s_add_u32 s41, s41, {ACT}
        """)
    setup64(32, WS_OF)
    if E("PRESLEEP", 0): k(f"s_sleep {E('PRESLEEP', 0)}")
    for s in range(8):
        issueW64(16, C_W + s*8192); ops.add(("W", s), 2)
        if E("C_PREWIN", 0) and s < 7: k(f"s_waitcnt vmcnt({E('C_PREWIN', 0)})")
    if GB & 2:
        k(f"s_waitcnt vmcnt({GW})")
        k.bar()
    if E("BOUNCE", 2) == 0: bounce()
    k.bar()
    k("s_setprio 3")
    cnt['B'] = k.bars
    k.mark(5)
    def iAC(s):
        issueA64(C_A + s*8192, 32); ops.add(("A", s), 2)
    SL, LC, LT = 24, 56, 40
    def issue_cols():
        k.srd(16, PB1, 3584)
        k(f"""
        s_min_u32 s44, s{NT14}, 13
        s_lshl_b32 s44, s44, 2
        s_add_u32 s44, s44, s3           ; nt32
        s_lshl_b32 s45, s44, 7
        s_add_u32 s45, s45, {WS_C1}
        s_lshl_b32 s44, s44, 6
        v_lshrrev_b32 v12, 3, v0
        v_mul_u32_u24 v12, {1792*4}, v12
        v_and_b32 v13, 7, v0
        v_lshl_add_u32 v12, v13, 4, v12
        v_lshlrev_b32 v14, 1, v{MM}
        buffer_load_ushort v10, v14, s[16:19], s44 offen
        """)
        for i in range(4):
            k(f"buffer_load_dwordx4 {vr(LC+4*i,4)}, v12, s[12:15], s45 offen {HO}\ns_add_u32 s45, s45, {8*1792*4}")
        ops.add(("CO", 0), 5)
    ring_loader_main(k, ops, 8, 8, 8, E("C_LA", 6), iAC, None, 0, 8, after_bar={3: issue_cols})
    k.bar()
    if E("LLOW", 1): k("s_setprio 0")
    ops.ops = []
    lE = k.new("ldE")
    k(f"""
    s_lshl_b32 s46, s21, 2
    s_add_u32 s46, s46, s3
    s_add_u32 s46, s46, {E("PFB", 96)}
    s_lshl_b32 s46, s46, 13
    """)
    lE0 = k.new("ldE0")
    k(f"s_cmp_ge_u32 s2, 224\ns_cbranch_scc1 {lE0}")
    b0 = k.bars
    k(f"""
    s_mov_b32 s40, 0
    s_lshl_b32 s41, s{MT128}, 2
    s_add_u32 s41, s41, s3
    s_lshl_b32 s43, s41, 12
    s_add_u32 s43, s43, {WS_ST}
    s_lshl_b32 s41, s41, 15
    s_add_u32 s41, s41, {WS_HF}
    s_lshl_b32 s42, s3, 12           ; w*4096
    """)
    def issueW_D(s):
        b = D_W + (s % D_DW) * 16384
        for i in range(4):
            pn, e = i >> 1, i & 1
            k(f"s_add_u32 m0, s35, {b + pn*8192 + e*1024}\ns_add_u32 s32, s40, {e*8*3584 + pn*128}")
            k(f"buffer_load_dwordx4 v9, s[36:39], s32 offen {NT_W1} lds")
        k(f"s_add_u32 s40, s40, {64*3584}")
        ops.add(("W", s), 4)
    def issueA_D(s):
        k(f"s_add_u32 m0, s42, {D_A + (s % D_DA) * 16384}\ns_nop 0")
        for i in range(4):
            k(f"buffer_load_dwordx4 v{L16}, s[12:15], s41 offen offset:{i*1024} {HOL} {NT_OH} lds")
        k("s_add_u32 s41, s41, 4096")
        ops.add(("A", s), 4)
    def issue_stats():
        k("v_lshlrev_b32 v12, 3, v0")
        for i in range(8):
            k(f"buffer_load_dwordx2 {vr(SL+2*i,2)}, v12, s[12:15], s43 offen offset:{i*512} {HO}")
        ops.add(("ST", 0), 8)
    def prep_stats():
        ops.wait({("ST", 0)})
        b, MB, RS = SL, LT+12, LT+4
        for i in range(1, 8):
            k(f"v_add_f32 v{b}, v{b}, v{b+2*i}\nv_add_f32 v{b+1}, v{b+1}, v{b+2*i+1}")
        xhalf_sum(k, b, LT)
        xhalf_sum(k, b+1, LT)
        k(f"""
        v_mul_f32 v{b}, {f32(-1.0/512)}, v{b}
        v_mul_f32 v{b+1}, {f32(1.0/512)}, v{b+1}
        v_fma_f32 v{b+1}, -v{b}, v{b}, v{b+1}
        v_max_f32 v{b+1}, 0, v{b+1}
        v_add_f32 v{b+1}, {f32(1e-5)}, v{b+1}
        v_rsq_f32 v{RS}, v{b+1}
        s_nop 0
        v_mul_f32 v{b+1}, v{b+1}, v{RS}
        v_mul_f32 v{MB+3}, {f32(LOG2E)}, v{RS}
        """)
        split_hilo(k, b, LT, LT+1, LT+2)
        k(f"v_cvt_pk_bf16_f32 v{MB}, v{LT}, v{LT+1}")
        split_hilo(k, b+1, LT+3, LT+1, LT+2)
        k(f"v_cvt_pk_bf16_f32 v{MB+1}, v{LT}, v{LT+3}\nv_cvt_pk_bf16_f32 v{MB+2}, v{LT+1}, 0")
        k(f"ds_write_b128 v11, {vr(MB,4)} offset:4096\ns_waitcnt lgkmcnt(0)")
    def retouch():
        if E("W2MODE", 1) == 1:
            k("buffer_load_dword v16, v5, s[48:51], s47 offen"); ops.add(("PF", 0), 1)
    def prep_cols():
        OA = LT+8
        for j in range(4):
            k(f"v_add_f32 v{LC+j}, v{LC+j}, v{LC+4+j}\nv_add_f32 v{LC+8+j}, v{LC+8+j}, v{LC+12+j}")
        for j in range(4): k(f"v_add_f32 v{LC+j}, v{LC+j}, v{LC+8+j}")
        k(f"""
        v_add_u32 v11, s33, v{L16}
        v_add_u32 v11, {D_ST}, v11
        ds_write_b128 v11, {vr(LC,4)}
        v_lshlrev_b32 v12, 9, v{HH}
        v_lshl_add_u32 v12, v{MM}, 2, v12
        v_add_u32 v12, s33, v12
        v_add_u32 v12, {D_ST}, v12
        v_cmp_gt_u32 vcc, 32, v0
        s_waitcnt lgkmcnt(0)
        ds_read2_b32 {vr(LC,2)}, v12 offset0:0 offset1:32
        ds_read2_b32 {vr(LC+2,2)}, v12 offset0:64 offset1:96
        v_cndmask_b32 v{LC+4}, 0, v10, vcc
        s_waitcnt lgkmcnt(0)
        v_add_f32 v{LC}, v{LC}, v{LC+1}
        v_add_f32 v{LC+2}, v{LC+2}, v{LC+3}
        v_add_f32 v{LC}, v{LC}, v{LC+2}
        """)
        split_hilo(k, LC, LT, LT+1, LT+2)
        k(f"""
        v_cvt_pk_bf16_f32 v{OA}, v{LT}, v{LT}
        v_cvt_pk_bf16_f32 v{OA+1}, v{LT+1}, 0
        v_lshl_or_b32 v{OA+1}, v{LC+4}, 16, v{OA+1}
        v_mov_b32 v{OA+2}, v{LC+4}
        v_mov_b32 v{OA+3}, 0
        ds_write_b128 v11, {vr(OA,4)}
        """)
    DP1 = E("D_PRE1", 2)
    for s in range(DP1):
        issueW_D(s)
        if E("D_PREWIN", 4): k(f"s_waitcnt vmcnt({E('D_PREWIN', 4)})")
    k.bar()
    if E('FBAR', 1): k.bar()
    if DP1 < D_DW and E("PRESLEEP", 0): k(f"s_sleep {E('PRESLEEP', 0)}")
    for s in range(DP1, D_DW):
        issueW_D(s)
        if E("D_PREWIN", 4) and s < D_DW-1: k(f"s_waitcnt vmcnt({E('D_PREWIN', 4)})")
    if GB & 4:
        k(f"s_waitcnt vmcnt({GW})")
        k.bar()
    prep_cols()
    k("s_setprio 3")
    k.bar()
    k.mark(6)
    if E("DMARK", 0): k.mark(0)
    ring_loader_main(k, ops, 8, D_DA, D_DW, E("D_LA", 3), issueA_D, issueW_D, 0, D_DW,
                     after_bar=({3: issue_stats, 5: prep_stats, 6: retouch} if DTAIL else {4: issue_stats, 6: prep_stats, 5: retouch}), bmark=E("DMARK", 0), merge_last=bool(DTAIL))
    k.bar()
    if E("LLOW", 1): k("s_setprio 0")
    if E("DMARK", 0):
        k.mark(9); k.mark = lambda i: None
    cnt['Dextra'] = k.bars - b0
    ops.ops = []
    k(f"s_branch {lE}")
    k.label(lE0)
    k.label(lE)
    k.mark(7)
    k(f"s_mov_b32 s40, {E_NR*65536}")
    EP1 = E("E_PRE1", 6)
    for s in range(EP1):
        issueW64(48, E_W + s*8192)
    def bounce2():
        k(f"""
        v_and_b32 v12, 3, v0
        v_lshlrev_b32 v13, 8, v{HH}
        v_bfe_u32 v6, v0, 2, 2
        v_lshl_add_u32 v13, v6, 6, v13
        v_bfe_u32 v6, v0, 4, 1
        v_lshl_add_u32 v13, v6, 5, v13
        v_lshl_add_u32 v13, v12, 3, v13
        s_add_u32 s29, s35, {E_A}
        v_add_u32 v13, s29, v13
        v_add_u32 v12, s29, v{L16}
        """)
        bounce()
    lb1, lb2 = k.new("b1"), k.new("b2")
    if E("BOUNCE", 2) == 2:
        fb = "\ns_barrier" if E("FBAR", 1) else ""
        k(f"s_cmp_lt_u32 s2, 224\ns_cbranch_scc1 {lb1}\ns_barrier{fb}")
        k.label(lb1)
        bounce2()
        k(f"s_cmp_ge_u32 s2, 224\ns_cbranch_scc1 {lb2}\ns_barrier{fb}")
        k.label(lb2)
        k.bars += 2 if E("FBAR", 1) else 1
    else:
        k.bar()
        if E('FBAR', 1): k.bar()
    for s in range(EP1, E_DW):
        issueW64(48, E_W + s*8192)
        if E("E_PREWIN", 4): k(f"s_waitcnt vmcnt({E('E_PREWIN', 4)})")
    lrt = k.new("rt")
    k(f"s_cmp_lt_u32 s2, 224\ns_cbranch_scc1 {lrt}\nbuffer_load_dword v16, v5, s[48:51], s47 offen")
    k.label(lrt)
    assert ((GB >> 2) & 1) == ((GB >> 3) & 1)
    if GB & 8:
        k(f"s_waitcnt vmcnt({GW})")
        k.bar()
    RA, RB = 24, (56, 8)
    k(f"""
    s_waitcnt vmcnt(0)
    s_lshr_b32 s29, s3, 1
    s_lshl_b32 s30, s29, 11
    s_add_u32 s30, s30, {E_A}
    v_add_u32 v6, s30, v{L16}
    s_lshl_b32 s29, s29, 14
    s_and_b32 s30, s3, 1
    s_lshl_b32 s30, s30, 13
    s_add_u32 s29, s29, s30
    s_add_u32 s29, s29, {E_PB}
    v_add_u32 v7, s29, v{L16}
    s_setprio 0
    """)
    k.bar()
    k.mark(8)
    def r_reads(s):
        b = RB[s & 1]
        return [f"ds_read_b128 {vr(b+8*kk+4*ms,4)}, v6 offset:{(s % E_DA)*16384 + 8192 + ms*4096 + kk*1024}" for kk in range(2) for ms in range(2)]
    def r_work(s):
        b = RB[s & 1]
        return [k.mfma_s(RA+16*ms, RW+4*(2*s+kk), b+8*kk+4*ms, "0" if (s == 0 and kk == 0) else None) for kk in range(2) for ms in range(2)]
    for s in range(E_NR):
        if s > 0: k("s_waitcnt lgkmcnt(0)")
        k.bar()
        if s == 0:
            for x in r_reads(0): k(x)
        else:
            w = r_work(s-1)
            for x in interleave(w[:2], r_reads(s)) + w[2:]: k(x)
    k("s_waitcnt lgkmcnt(0)")
    for x in r_work(E_NR-1): k(x)
    k.bar()
    k("s_nop 10")
    wr = [f"ds_write_b128 v7, {vr(RA+16*ms+4*g,4)} offset:{ms*4096 + g*1024}" for ms in range(2) for g in range(4)]
    for grp in ((wr[:3], wr[3:6], wr[6:] + ["s_waitcnt lgkmcnt(0)"]) if ETAIL else (wr + ["s_waitcnt lgkmcnt(0)"],)):
        for x in grp: k(x)
        k.bar()
    cnt['total'] = k.bars
    k.mark(9)
    stamp_out(k)
    k("s_endpgm")
    return cnt

def compute(k):
    cnt = {}
    CW = 28
    k(f"s_sub_u32 s{CW}, s3, 4")
    X, T = 64, 128
    ACC = 16
    k(f"""
    s_lshl_b32 s29, s{MTA}, 6
    s_lshl_b32 s30, s{CW}, 3
    s_add_u32 s29, s29, s30          ; row0
    v_lshrrev_b32 v6, 3, v0
    v_add_u32 v7, s29, v6
    v_lshlrev_b32 v7, 10, v7
    v_and_b32 v8, 7, v0
    v_lshl_add_u32 v7, v8, 4, v7
    s_add_u32 s33, s{MTA}, s{NTA}
    s_lshl_b32 s33, s33, 7
    s_and_b32 s33, s33, 1023
    s_waitcnt lgkmcnt(0)
    """)
    k.srd(16, PX, 2048*1024)
    for i in range(8):
        k(f"buffer_load_dwordx4 {vr(X+4*i,4)}, v7, s[16:19], s33 offen {NT_A}")
        if i < 7: k("s_add_u32 s33, s33, 128\ns_and_b32 s33, s33, 1023")
        if i == 0 and E("XMARK", 0): k.mark(2)
    k.bar()
    if E("XMARK", 0): k.mark(3)
    k.srd(12, PWS, WS_SIZE)
    k(f"""
    s_lshr_b32 s29, s{CW}, 2
    s_lshl_b32 s29, s29, 15
    s_and_b32 s30, s{CW}, 3
    s_lshl_b32 s30, s30, 7
    s_add_u32 s29, s29, s30
    v_xor_b32 v9, v6, v8
    v_lshlrev_b32 v9, 4, v9
    v_lshl_add_u32 v9, v8, 9, v9
    v_add_u32 v9, s29, v9
    s_lshl_b32 s30, s{CW}, 5
    s_add_u32 s30, s30, {A_RS}
    v_lshlrev_b32 v10, 2, v6
    v_add_u32 v10, s30, v10
    v_mov_b32 v{T}, 0x3f803f80
    v_mov_b32 v{T+1}, 0x00003f80
    v_mov_b32 v{T+2}, 0x3f800000
    s_and_b32 s29, s{CW}, 1          ; ms
    s_bfe_u32 s30, s{CW}, 0x10001    ; nh
    s_lshl_b32 s31, s30, 6
    """)
    CX, AW, CWA, VA = 4, 11, 12, 15
    w_tr_addr(k, AW, 13, 14, 31, 3072, A_WB)
    k(f"""
    s_lshl_b32 s32, s29, 15
    v_xor_b32 v13, v{MM}, v{HH}
    v_lshlrev_b32 v13, 4, v13
    v_lshlrev_b32 v14, 9, v{HH}
    v_add_u32 v14, s32, v14
    """)
    for ks in range(4):
        k(f"v_xor_b32 v{CX+ks}, {ks*32}, v13\nv_add_u32 v{CX+ks}, v{CX+ks}, v14")
    k(f"""
    v_mov_b32 v{CWA}, v{AW}
    s_mov_b32 s35, 0
    s_lshl_b32 s36, s29, 7
    s_add_u32 s36, s36, {A_RS}
    v_lshlrev_b32 v13, 2, v{MM}
    v_add_u32 v13, s36, v13
    v_lshlrev_b32 v14, 4, v{HH}
    v_add_u32 v14, s36, v14
    s_lshl_b32 s32, s{NTA}, 2
    s_lshl_b32 s33, s30, 1
    s_add_u32 s32, s32, s33            ; head0
    s_lshl_b32 s33, s{MTA}, 1
    s_add_u32 s33, s33, s29
    s_lshl_b32 s39, s32, 16
    s_lshl_b32 s36, s33, 10
    s_add_u32 s39, s39, s36
    s_add_u32 s39, s39, {WS_QF}
    s_add_u32 s36, s39, 65536
    s_lshl_b32 s37, s32, 17
    s_lshl_b32 s38, s33, 11
    s_add_u32 s37, s37, s38
    s_add_u32 s37, s37, {WS_KV}
    s_add_u32 s38, s37, 131072
    v_and_b32 v{VA}, 15, v0
    v_lshlrev_b32 v{VA}, 4, v{VA}
    v_lshl_add_u32 v{VA}, v{HH}, 8, v{VA}
    v_bfe_u32 v{T+6}, v0, 4, 1
    v_lshl_add_u32 v{VA}, v{T+6}, 17, v{VA}
    """)
    for i in range(48): k(f"v_mov_b32 v{ACC+i}, 0")
    SA, SB, QA, QB_, TM = T+4, T+5, T+6, T+7, T+8
    for r_ in (SA, SB, QA, QB_): k(f"v_mov_b32 v{r_}, 0")
    for i in range(8):
        k(f"s_waitcnt vmcnt({7-i})")
        for j in range(4):
            k(f"v_dot2_f32_bf16 v{SA+(j&1)}, v{X+4*i+j}, v{T}, v{SA+(j&1)}")
            k(f"v_dot2_f32_bf16 v{QA+(j&1)}, v{X+4*i+j}, v{X+4*i+j}, v{QA+(j&1)}")
    k.mark(0)
    k(f"s_nop 1\nv_add_f32 v{SA}, v{SA}, v{SB}\nv_add_f32 v{QA}, v{QA}, v{QB_}")
    for ctl in ("quad_perm:[1,0,3,2]", "quad_perm:[2,3,0,1]", "row_half_mirror"):
        k(f"s_nop 0\nv_add_f32_dpp v{SA}, v{SA}, v{SA} {ctl} row_mask:0xf bank_mask:0xf")
        k(f"v_add_f32_dpp v{QA}, v{QA}, v{QA} {ctl} row_mask:0xf bank_mask:0xf")
    NM = SA
    k(f"v_mul_f32 v{NM}, {f32(-1.0/512)}, v{SA}\nv_mul_f32 v{QA}, {f32(1.0/512)}, v{QA}")
    fin = [f"v_fma_f32 v{QA}, -v{NM}, v{NM}, v{QA}", f"v_max_f32 v{QA}, 0, v{QA}", f"v_add_f32 v{QA}, {f32(1e-5)}, v{QA}", f"v_rsq_f32 v{QA}, v{QA}"]
    for i in range(9):
        t = TM + 8*(i & 1)
        if i < 8:
            for j in range(4):
                k(f"v_dot2_f32_bf16 v{t+2*j}, v{X+4*i+j}, v{T+1}, v{NM}")
                k(f"v_dot2_f32_bf16 v{t+2*j+1}, v{X+4*i+j}, v{T+2}, v{NM}")
        else:
            for x_ in fin: k(x_)
        if i > 0:
            tp = TM + 8*((i-1) & 1)
            for j in range(4):
                k(f"v_cvt_pk_bf16_f32 v{X+4*(i-1)+j}, v{tp+2*j}, v{tp+2*j+1}")
            k(f"ds_write_b128 v9, {vr(X+4*(i-1),4)} offset:{(i-1)*4096}")
    k(f"ds_write_b32 v10, v{QA}")
    lhiA, lendA = k.new("hiA"), k.new("endA")
    k(f"s_waitcnt lgkmcnt(0)")
    k.mark(1)
    k(f"s_cmp_ge_u32 s{CW}, 4\ns_cbranch_scc1 {lhiA}")
    b0 = k.bars
    RSTD, RF, BUF = T+3, T+8, X
    def addr_update():
        ring_step(k, 35, 2*A_SUB, A_DP*2*A_SUB)
        for i in range(4): k(f"v_add_u32 v{CX+i}, 4096, v{CX+i}")
        k(f"v_add_u32 v{CWA}, s35, v{AW}")
    def mk(pns):
        def reads(ks, st):
            b = BUF + 16*ks + 32*st
            r = [f"ds_read_b128 {vr(b,4)}, v{CX+2*st+ks} offset:{(2*st+ks)*1024}"]
            for pn in pns:
                for t in range(2):
                    r.append(f"ds_read_b64_tr_b16 {vr(b+4+4*pn+2*t,2)}, v{CWA} offset:{st*A_SUB + ks*6144 + pn*1024 + t*512}")
            return r
        def work(ks, st):
            b = BUF + 16*ks + 32*st
            w = {1: k.mfma_s(ACC+16, b+8, b), 2: k.mfma_s(ACC+32, b, b+12), 0: k.mfma_s(ACC, b+4, b)}
            return [w[pn] for pn in pns]
        return reads, work
    def epi(items):
        P = X
        for (a, sc, st) in items:
            for j in range(2):
                for i in range(8*j, 8*j+8):
                    mm_ = f"v{RSTD}" if sc is None else f"v{RF+i}"
                    k(f"v_mul_f32 v{a+i}, v{a+i}, {mm_}")
                for i in range(4*j, 4*j+4):
                    k(f"v_cvt_pk_bf16_f32 v{P+i}, v{a+2*i}, v{a+2*i+1}")
                k(f"buffer_store_dwordx4 {vr(P+4*j,4)}, {st[j][0]}, s[12:15], {st[j][1]} offen {st[j][2]} {HO}")
            P += 8
    def pre_first():
        k(f"ds_read_b32 v{RSTD}, v13")
        for g in range(4): k(f"ds_read_b128 {vr(RF+4*g,4)}, v14 offset:{g*32}")
    rd, wk = mk((1, 2))
    compute_loop(k, 16, 2, rd, wk, addr_update, 34, pair=True, pre_first=pre_first)
    if not E("XMARK", 0): k.mark(2)
    k("s_nop 10")
    epi(((ACC+16, None, [(f"v{L16}", "s37", ""), (f"v{L16}", "s38", "")]),
         (ACC+32, "rf", [(f"v{VA}", "s37", "offset:1024"), (f"v{VA}", "s37", "offset:1536")])))
    nA = k.bars - b0
    k(f"s_branch {lendA}")
    k.label(lhiA)
    k.bars = b0
    lnn, ltp, lnt = k.new("nn"), k.new("tp"), k.new("nt")
    k.srd(16, PDBG, 256)
    k(f"""
    v_mov_b32 v10, 0
    s_cmp_lg_u32 s{CW}, 7
    s_cbranch_scc1 {lnn}
    s_cmp_lg_u32 s2, 0
    s_cbranch_scc1 {lnn}
    s_memrealtime s[84:85]
    s_waitcnt lgkmcnt(0)
    s_or_b32 s84, s84, 1
    v_mov_b32 v8, s84
    v_mov_b32 v9, s85
    s_mov_b64 exec, 1
    buffer_store_dwordx2 v[8:9], v10, s[16:19], 0 offen {HO}
    s_mov_b64 exec, -1
    """)
    k.label(lnn)
    def tagload():
        l = k.new("tg")
        k(f"s_cmp_lg_u32 s{CW}, 7\ns_cbranch_scc1 {l}\nbuffer_load_dwordx2 v[8:9], v10, s[16:19], 0 offen {HO}")
        k.label(l)
    rd, wk = mk((0,))
    QL = E("QLAG", 4)
    if QL:
        compute_loop(k, 16 - 2*QL, 2, rd, wk, addr_update, 34, pair=True, pre_first=lambda: k(f"ds_read_b32 v{RSTD}, v13"))
        addr_update()
        k(f"v_mul_f32 v{RSTD}, {f32(0.25*LOG2E)}, v{RSTD}")
        k.idle_bars(QL)
        tagload()
        compute_loop(k, 2*QL, 2, rd, wk, addr_update, 34, pair=True, nobar=True, hook=((lambda: k("s_setprio 1")) if E("QPRIO", 0) else None))
    else:
        compute_loop(k, 16, 2, rd, wk, addr_update, 34, pair=True, pre_first=lambda: k(f"ds_read_b32 v{RSTD}, v13"),
                     tail=(tagload, lambda: k(f"v_mul_f32 v{RSTD}, {f32(0.25*LOG2E)}, v{RSTD}")))
    assert k.bars - b0 == nA
    k("s_nop 11")
    epi(((ACC, None, [(f"v{L16}", "s39", ""), (f"v{L16}", "s36", "")]),))
    k(f"""
    s_cmp_lg_u32 s{CW}, 7
    s_cbranch_scc1 {lendA}
    s_mov_b32 s45, 30000
    s_waitcnt vmcnt(2)
    """)
    k.label(ltp)
    k(f"""
    v_readfirstlane_b32 s84, v8
    v_readfirstlane_b32 s85, v9
    s_nop 3
    s_cmp_lg_u32 s84, 0
    s_cbranch_scc1 {lendA}
    buffer_load_dwordx2 v[8:9], v10, s[16:19], 0 offen {HO}
    s_waitcnt vmcnt(0)
    s_sub_u32 s45, s45, 1
    s_cmp_lg_u32 s45, 0
    s_cbranch_scc1 {ltp}
    """)
    k.label(lendA)
    def end_phase(out_arr, out_line, in_arr, in_line, n_in, between=None, after_prio=0):
        HM = E("HMARK", -1) == out_arr
        l0, ls, lp = k.new("na"), k.new("ns"), k.new("np")
        k(f"s_cmp_lg_u32 s{CW}, 7\ns_cbranch_scc1 {l0}")
        out_line(); in_line()
        poll_addr(k, in_arr, 47, n_in)
        k(f"""
        s_lshl_b32 s46, s46, 7
        s_add_u32 s46, s46, {WS_FL + out_arr*32768}
        v_mov_b32 v4, s84
        v_mov_b32 v5, s85
        v_mov_b32 v7, 0
        {"s_setprio 3" if E("SPRIO", 0) else ""}
        """)
        k.label(l0)
        k("s_waitcnt vmcnt(0)")
        if HM: k.mark(0)
        k(f"s_cmp_lg_u32 s{CW}, 7")
        k.bar()
        if HM:
            k.mark(1); k(f"s_cmp_lg_u32 s{CW}, 7")
        k(f"""
        s_cbranch_scc1 {ls}
        s_mov_b64 exec, 1
        buffer_store_dwordx2 v[4:5], v7, s[12:15], s46 offen {HO}
        """)
        if E("EARLYPOLL", 0): poll_issue(k)
        else: k("s_mov_b64 exec, -1")
        k.label(ls)
        if E("FBAR", 1): k.bar()
        if between: between()
        if (GB >> out_arr) & 1: k.bar()
        k(f"s_cmp_lg_u32 s{CW}, 7\ns_cbranch_scc1 {lp}")
        if HM: k.mark(2)
        if E("SPRIO", 0): k("s_setprio 3")
        if not E("EARLYPOLL", 0): poll_issue(k)
        poll_loop(k)
        if E("SPRIO", 0): k(f"s_setprio {after_prio}")
        if HM: k.mark(3)
        k.label(lp)
        k.bar()
    AK, AV, Q, KF, VF, P, C, O, S0, M, T = 10, 11, 12, 16, 24, 40, 48, 64, 80, 112, 113
    AV0, AVS, VSY, VFM, VF4 = 118, 119, 120, 121, 124
    NIT = 16
    SW = E("SW", 12)
    def zero_state():
        for i in range(16): k(f"v_mov_b32 v{O+i}, 0")
        for i in range(4): k(f"v_mov_b32 v{P+4+i}, 0\nv_mov_b32 v{VF+12+i}, 0")
    def b_setup():
        lp = k.new("pr")
        k(f"""
        s_lshl_b32 s29, s{QB}, 3
        s_add_u32 s29, s29, s{CW}
        s_lshl_b32 s30, s{HEAD}, 16
        s_lshl_b32 s31, s29, 10
        s_add_u32 s30, s30, s31
        s_add_u32 s30, s30, {WS_QF}
        s_lshl_b32 s43, s{HEAD}, 17
        s_add_u32 s43, s43, {WS_KV}
        v_and_b32 v{T+1}, 11, v0
        v_cmp_eq_u32 vcc, 0, v{T+1}
        v_mov_b32 v{T+2}, 0x3f803f80
        s_lshl_b32 s31, s{CW}, 10
        s_add_u32 s31, s31, {ONESB}
        v_cndmask_b32 v{S0}, 0, v{T+2}, vcc
        v_add_u32 v{T+1}, s31, v{L16}
        v_mov_b32 v{S0+1}, v{S0}
        v_mov_b32 v{S0+2}, v{S0}
        v_mov_b32 v{S0+3}, v{S0}
        ds_write_b128 v{T+1}, {vr(S0,4)}
        ds_write_b128 v{T+1}, {vr(S0,4)} offset:2048
        v_and_b32 v{AV0}, 15, v0
        v_lshlrev_b32 v{AV0}, 4, v{AV0}
        v_lshl_add_u32 v{AV0}, v{HH}, 8, v{AV0}
        v_and_b32 v{T+1}, 16, v0
        v_cmp_eq_u32 vcc, 0, v{T+1}
        v_mov_b32 v{T+1}, {ONESB}
        v_mov_b32 v{T+2}, 1024
        v_mov_b32 v{T+3}, 8192
        v_cndmask_b32 v{T+1}, v{T+1}, v{T+2}, vcc
        v_cndmask_b32 v{AVS}, 0, v{T+3}, vcc
        v_add_u32 v{AV0}, v{AV0}, v{T+1}
        v_mov_b32 v{VSY}, {B_SYNC}
        s_mov_b32 s40, 0x400000
        s_mov_b32 s36, 0
        s_lshl_b32 s29, s29, 15
        s_lshl_b32 s31, s{HEAD}, 10
        s_add_u32 s29, s29, s31
        s_add_u32 s29, s29, {WS_OF}
        s_setprio 1
        s_cmp_lt_u32 s{CW}, 4
        s_cbranch_scc1 {lp}
        s_setprio 2
        """)
        k.label(lp)
        zero_state()
        k("s_waitcnt lgkmcnt(0)")
    if not E("XMARK", 0): k.mark(3)
    if E("HMARK", -1) == 0:
        k.mark(5)
    end_phase(0, lambda: k(f"s_lshl_b32 s46, s{NTA}, 5\ns_add_u32 s46, s46, s{MTA}"),
              0, lambda: k(f"s_lshr_b32 s47, s{HEAD}, 2\ns_lshl_b32 s47, s47, 5"), 32, between=b_setup, after_prio=2)
    cnt['A'] = k.bars
    k.mark(4)
    if E("HMARK", -1) == 0: k.mark = lambda i: None
    k(f"buffer_load_dwordx4 {vr(Q,4)}, v{L16}, s[12:15], s30 offen {HO}")
    def spin(need):
        l = k.new("sp")
        k.label(l)
        k(f"""
        ds_read_b128 {vr(VF4,4)}, v{VSY}
        s_sub_u32 s40, s40, 1
        s_cbranch_scc1 Lexit
        s_waitcnt lgkmcnt(0)
        v_min3_u32 v{VFM}, v{VF4}, v{VF4+1}, v{VF4+2}
        v_min_u32 v{VFM}, v{VFM}, v{VF4+3}
        v_cmp_gt_u32 vcc, {need}, v{VFM}
        s_cbranch_vccnz {l}
        """)
    if E("K0G", 1):
        k(f"buffer_load_dwordx4 {vr(KF,4)}, v{L16}, s[12:15], s43 offen {HO}\ns_waitcnt vmcnt(0)")
    else:
        k("s_waitcnt vmcnt(0)")
        spin(1)
        k(f"ds_read_b128 {vr(KF,4)}, v{L16}\ns_waitcnt lgkmcnt(0)")
    k.mfma(S0, KF, Q, "0")
    k("s_nop 15")
    def max16(src, dst, first):
        if first:
            k(f"v_max3_f32 v{dst}, v{src}, v{src+1}, v{src+2}\nv_max_f32 v{dst}, v{dst}, v{src+3}")
            rng = range(4, 16, 2)
        else: rng = range(0, 16, 2)
        for i in rng: k(f"v_max3_f32 v{dst}, v{dst}, v{src+i}, v{src+i+1}")
    max16(S0, M, True)
    lhave, lnob, lloop, lswp, ldone, lmax, lfin = [k.new(x) for x in ("have","nobar","aloop","swp","adone","maxl","afin")]
    k.label(lhave)
    k(f"""
    v_mov_b32 v{T+1}, v{M}
    v_mov_b32 v{AK}, v{L16}
    v_mov_b32 v{AV}, v{AV0}
    v_permlane32_swap_b32 v{M}, v{T+1}
    s_mov_b32 s37, 0
    s_mov_b32 s42, 3
    v_max_f32 v{M}, v{M}, v{T+1}
    """)
    for i in range(16): k(f"v_sub_f32 v{C+i}, 0, v{M}")
    k("s_nop 1")
    k.mfma(S0, KF, Q, C)
    spin(1)
    k(f"""
    ds_read_b128 {vr(KF+4,4)}, v{AK} offset:2048
    ds_read_b128 {vr(VF,4)}, v{AV}
    ds_read_b128 {vr(VF+4,4)}, v{AV} offset:512
    """)
    lcp = k.new("cp")
    if E("CYC", 0): k.mark(0)
    k.label(lcp)
    spin("s42")
    k(f"""
    v_readfirstlane_b32 s38, v{VFM}
    s_mov_b32 s41, 0
    s_add_u32 s43, s37, 1
    s_max_u32 s43, s43, {SW}
    s_sub_u32 s39, s38, 1
    s_lshr_b32 s39, s39, 1
    s_min_u32 s39, s39, s43
    s_lshl_b32 s42, s39, 1
    s_add_u32 s42, s42, 3
    s_min_u32 s42, s42, 32
    s_cmp_ge_u32 s38, 32
    s_cselect_b32 s39, s43, s39
    s_cselect_b32 s41, 1, 0
    """)
    k.label(lloop)
    for t in range(4):
        sb = S0 + 16*(t & 1); sn = S0 + 16*((t+1) & 1)
        kn = KF + 4*((t+1) & 1); kf = KF + 4*(t & 1)
        vc = VF + 8*(t & 1); vn = VF + 8*((t+1) & 1)
        ex = lambda i: k(f"v_exp_f32 v{sb+i}, v{sb+i}")
        cv = lambda i: k(f"v_cvt_pk_bf16_f32 v{P+i}, v{sb+2*i}, v{sb+2*i+1}")
        k("s_waitcnt lgkmcnt(0)")
        k.mfma(sn, kn, Q, C)
        ex(0); ex(1); ex(2); ex(3)
        k.mfma(O, vn+4, P+4)
        k(f"ds_read_b128 {vr(kf,4)}, v{AK} offset:{(t+2)*2048}")
        k(f"ds_read_b128 {vr(vn,4)}, v{AV} offset:{(t+1)*2048}")
        k(f"ds_read_b128 {vr(vn+4,4)}, v{AV} offset:{(t+1)*2048+512}")
        ex(4); ex(5); ex(6); ex(7)
        for i in range(4): cv(i)
        ex(8); ex(9)
        k.mfma(O, vc, P)
        if t == 3: k("s_add_u32 s37, s37, 1\ns_cmp_lt_u32 s37, s39")
        for i in range(10, 16): ex(i)
        if t == 3:
            k(f"v_add_u32 v{AK}, 8192, v{AK}\nv_add_u32 v{AV}, v{AVS}, v{AV}")
        for i in range(4, 8): cv(i)
    k(f"""
    s_cbranch_scc1 {lloop}
    s_cmp_eq_u32 s37, {NIT}
    s_cbranch_scc1 {ldone}
    s_cmp_eq_u32 s41, 0
    s_cbranch_scc1 {lcp}
    """)
    k.label(lswp)
    if E("CYC", 0): k.mark(2)
    k(f"""
    s_mov_b32 s39, {NIT}
    s_cmp_lt_u32 s{CW}, 4
    s_cbranch_scc1 {lloop}
    s_setprio 0
    s_branch {lloop}
    """)
    k.label(ldone)
    k.mfma(O, VF+12, P+4)
    if E("CYC", 0): k.mark(3)
    k(f"""
    s_waitcnt lgkmcnt(0)
    s_mov_b32 s38, {f32(2.0**32)}
    s_nop 13
    v_cmp_nlt_f32 vcc, v{O+8}, s38
    v_rcp_f32 v{T+3}, v{O+8}
    s_cmp_lg_u32 s36, 0
    s_cbranch_scc1 {lfin}
    s_cbranch_vccz {lfin}
    s_mov_b32 s36, 1
    s_mov_b32 s37, 0
    v_mov_b32 v{AK}, v{L16}
    v_mov_b32 v{M}, 0xff800000
    """)
    zero_state()
    k.label(lmax)
    k(f"ds_read_b128 {vr(KF,4)}, v{AK}\ns_waitcnt lgkmcnt(0)")
    k.mfma(S0, KF, Q, "0")
    k("s_nop 15")
    max16(S0, M, False)
    k(f"""
    v_add_u32 v{AK}, 2048, v{AK}
    s_add_u32 s37, s37, 1
    s_cmp_lt_u32 s37, 64
    s_cbranch_scc1 {lmax}
    ds_read_b128 {vr(KF,4)}, v{L16}
    s_waitcnt lgkmcnt(0)
    s_branch {lhave}
    """)
    k.label(lfin)
    for i in range(8): k(f"v_mul_f32 v{O+i}, v{O+i}, v{T+3}")
    for i in range(4): k(f"v_cvt_pk_bf16_f32 v{P+i}, v{O+2*i}, v{O+2*i+1}")
    k(f"buffer_store_dwordx4 {vr(P,4)}, v{L16}, s[12:15], s29 offen {HO}")
    k("s_setprio 0")
    k.mark(5)
    AA, AW, CA, CWA = 10, 11, 12, 13
    ACC, BUF, T = 16, 32, 96
    def c_setup():
        k(f"""
        s_and_b32 s29, s{CW}, 1          ; ms
        s_bfe_u32 s30, s{CW}, 0x10001    ; nh
        s_lshl_b32 s31, s30, 6
        s_lshl_b32 s32, s29, 12
        v_add_u32 v{AA}, s32, v{L16}
        s_lshl_b32 s36, s{MT64}, 1
        s_add_u32 s36, s36, s29          ; mt32
        s_lshl_b32 s37, s{NT8}, 2
        s_lshl_b32 s38, s30, 1
        s_add_u32 s37, s37, s38          ; 2*nt32
        """)
        w_tr_addr(k, AW, 14, 15, 31, 512, 0)
    def c_between():
        c_setup()
        k(f"""
        v_add_u32 v{CA}, {C_A}, v{AA}
        v_mov_b32 v{CWA}, v{AW}
        v_lshlrev_b32 v14, 7, v{MM}
        v_add_u32 v14, s32, v14
        v_lshl_add_u32 v14, v{HH}, 3, v14
        v_add_u32 v14, {C_X}, v14
        v_bfe_u32 v15, v0, 1, 3
        v_lshlrev_b32 v15, 4, v15
        v_xor_b32 v15, s31, v15
        """)
        for g in range(4):
            k(f"v_xor_b32 v{T+16+g}, {g*16}, v15\nv_add_u32 v{T+16+g}, v{T+16+g}, v14")
    end_phase(1, lambda: k(f"s_lshl_b32 s46, s{QB}, 5\ns_add_u32 s46, s46, s{HEAD}"),
              1, lambda: k(f"s_lshr_b32 s47, s{MT64}, 2\ns_lshl_b32 s47, s47, 5"), -2, between=c_between)
    cnt['B'] = k.bars
    k.mark(6)
    def reads64(ks, st):
        b = BUF + 8*ks + 32*st
        return [f"ds_read_b128 {vr(b,4)}, v{CA} offset:{ks*1024}"] + \
               [f"ds_read_b64_tr_b16 {vr(b+4+2*t,2)}, v{CWA} offset:{ks*2048 + t*1024}" for t in range(2)]
    def work64(ks, st):
        b = BUF + 8*ks + 32*st
        return [k.mfma_s(ACC, b+4, b)]
    lhi, lend, lend2 = k.new("hiC"), k.new("endC"), k.new("endC2")
    k(f"s_cmp_ge_u32 s{CW}, 4\ns_cbranch_scc1 {lhi}")
    b0 = k.bars
    def c_first():
        for g in range(4): k(f"ds_read_b64 {vr(T+4+2*g,2)}, v{T+16+g}")
        k("s_waitcnt lgkmcnt(0)")
        for i in range(8):
            k(f"v_lshlrev_b32 v{ACC+2*i}, 16, v{T+4+i}\nv_and_b32 v{ACC+2*i+1}, 0xffff0000, v{T+4+i}")
    compute_loop(k, 8, 4, reads64, work64, lambda: k(f"v_add_u32 v{CA}, 8192, v{CA}\nv_add_u32 v{CWA}, 8192, v{CWA}"), 34, pre_first=c_first, mbar=True)
    k(f"""
    v_mov_b32 v{T+12}, 0x3f803f80
    v_mov_b32 v{T+14}, 0
    v_mov_b32 v{T+15}, 0
    s_lshl_b32 s38, s36, 15
    s_lshl_b32 s39, s37, 10
    s_add_u32 s38, s38, s39
    s_add_u32 s38, s38, {WS_HF}
    s_lshl_b32 s39, s36, 12
    s_lshl_b32 s40, s37, 7
    s_add_u32 s39, s39, s40
    s_add_u32 s39, s39, {WS_ST}
    v_lshlrev_b32 v{T+13}, 3, v{MM}
    s_nop 2
    """)
    for i in range(8): k(f"v_cvt_pk_bf16_f32 v{HSAVE+i}, v{ACC+2*i}, v{ACC+2*i+1}")
    k(f"buffer_store_dwordx4 {vr(HSAVE,4)}, v{L16}, s[12:15], s38 offen {HO}")
    k(f"buffer_store_dwordx4 {vr(HSAVE+4,4)}, v{L16}, s[12:15], s38 offen offset:1024 {HO}")
    for i in range(8):
        k(f"v_dot2_f32_bf16 v{T+14}, v{HSAVE+i}, v{T+12}, v{T+14}")
        k(f"v_dot2_f32_bf16 v{T+15}, v{HSAVE+i}, v{HSAVE+i}, v{T+15}")
    k("s_nop 2")
    xhalf_sum(k, T+14, T+16)
    xhalf_sum(k, T+15, T+16)
    k(f"s_mov_b32 exec_hi, 0\nbuffer_store_dwordx2 {vr(T+14,2)}, v{T+13}, s[12:15], s39 offen {HO}\ns_mov_b64 exec, -1")
    nC = k.bars - b0
    k(f"s_branch {lend}")
    k.label(lhi)
    k.bars = b0
    k.idle_bars(nC)
    k.label(lend)
    k.mark(7)
    f3_out = lambda: k(f"s_lshl_b32 s46, s{MT64}, 3\ns_add_u32 s46, s46, s{NT8}")
    f4_in = lambda: k(f"s_lshr_b32 s47, s{MT64}, 1\ns_lshl_b32 s47, s47, 4")
    def e_between():
        lh, lj = k.new("ebh"), k.new("ebj")
        k(f"s_cmp_ge_u32 s{CW}, 4\ns_cbranch_scc1 {lh}")
        c_setup()
        k(f"""
        v_add_u32 v{AA}, {E_A}, v{AA}
        s_mov_b32 s33, 0
        v_mov_b32 v{CA}, v{AA}
        v_mov_b32 v{CWA}, v{AW}
        s_mov_b32 s35, 0
        s_lshl_b32 s38, s{CW}, 12
        s_add_u32 s38, s38, {E_PB}
        v_add_u32 v14, s38, v{L16}
        s_lshl_b32 s38, s36, 15
        s_lshl_b32 s39, s37, 5
        s_add_u32 s38, s38, s39
        v_lshlrev_b32 v15, 10, v{MM}
        v_lshl_add_u32 v15, v{HH}, 4, v15
        """)
        k.srd(16, POUT, 2048*1024)
        hb = 136 if MISH2 else 16
        for i in range(8):
            k(f"v_lshlrev_b32 v{hb+2*i}, 16, v{HSAVE+i}\nv_and_b32 v{hb+2*i+1}, 0xffff0000, v{HSAVE+i}")
        if MISH2:
            for i in range(16): k(f"v_mov_b32 v{16+i}, 0")
            k(f"v_mov_b32 v152, {f32(LN2)}")
        k(f"s_branch {lj}")
        k.label(lh)
        k(f"""
        s_sub_u32 s29, s{CW}, 4
        s_lshl_b32 s33, s29, 10
        s_lshl_b32 s35, s29, 11
        s_lshl_b32 s29, s29, 4
        s_lshl_b32 s30, s{NT8}, 7
        s_mov_b32 s40, {(E_NR+E_DW)*65536}
        s_mul_i32 s41, s{MT64}, {2*112*1024}
        s_add_u32 s41, s41, s33
        s_add_u32 s41, s41, {WS_AF}
        """)
        w_dma_voff(k, 14, 15, 16, 1024, 29, 30)
        k.srd(16, PW2, 1792*1024)
        k("s_setprio 3")
        k.label(lj)
    lD, lE = k.new("phD"), k.new("phE")
    k(f"s_cmp_lt_u32 s2, 224\ns_cbranch_scc1 {lD}")
    b0 = k.bars
    end_phase(2, f3_out, 3, f4_in, 14, between=e_between, after_prio=3)
    k(f"s_branch {lE}")
    bskip = k.bars - b0
    k.bars = b0
    k.label(lD)
    DACC, DBUF, DT = 16, 48, 136
    RS, BB, CS = 8, 14, 15
    def d_between():
        k(f"""
        s_and_b32 s29, s{CW}, 1          ; mp
        s_lshr_b32 s30, s{CW}, 1         ; nq
        s_and_b32 s31, s30, 1
        s_lshl_b32 s31, s31, 6
        s_lshr_b32 s32, s30, 1
        s_lshl_b32 s32, s32, 13
        s_lshl_b32 s33, s29, 13
        s_add_u32 s33, s33, {D_A}
        v_add_u32 v{AA}, s33, v{L16}
        s_lshl_b32 s36, s{MT128}, 2
        s_lshl_b32 s37, s29, 1
        s_add_u32 s36, s36, s37
        s_lshl_b32 s37, s{NT14}, 2
        s_add_u32 s37, s37, s30          ; nt32 (0..55)
        s_lshl_b32 s38, s30, 10
        s_add_u32 s38, s38, {D_ST}
        v_add_u32 v{DT}, s38, v{L16}
        s_lshl_b32 s38, s29, 11
        s_add_u32 s38, s38, {D_ST + 4096}
        v_add_u32 v{DT+1}, s38, v{L16}
        s_mul_i32 s38, s36, {112*1024}
        s_lshl_b32 s39, s37, 11
        s_add_u32 s38, s38, s39
        s_add_u32 s38, s38, {WS_AF}
        s_add_u32 s39, s38, {112*1024}
        v_mov_b32 v{DT+2}, {f32(-2*LN2)}
        """)
        w_tr_addr(k, AW, DT+8, DT+9, 31, 512, D_W)
        k(f"""
        v_add_u32 v{AW}, s32, v{AW}
        v_mov_b32 v{CA}, v{AA}
        v_mov_b32 v{CWA}, v{AW}
        s_mov_b32 s33, 0
        s_mov_b32 s35, 0
        """)
        for i in range(32): k(f"v_mov_b32 v{DACC+i}, 0")
        if E("DPRIO", 1):
            lq = k.new("dp")
            k(f"s_cmp_ge_u32 s{CW}, 4\ns_cbranch_scc1 {lq}\ns_setprio 1")
            k.label(lq)
    end_phase(2, f3_out, 2, lambda: k(f"s_lshl_b32 s47, s{MT128}, 4"), 16, between=d_between)
    k.mark(8)
    def readsD(ks, st):
        b = DBUF + 12*ks + 24*st
        kk = 2*st + ks
        return [f"ds_read_b64_tr_b16 {vr(b+8+2*t,2)}, v{CWA} offset:{kk*2048 + t*1024}" for t in range(2)] + \
               [f"ds_read_b128 {vr(b,4)}, v{CA} offset:{kk*1024}", f"ds_read_b128 {vr(b+4,4)}, v{CA} offset:{4096+kk*1024}"]
    def workD(ks, st):
        b = DBUF + 12*ks + 24*st
        return [k.mfma_s(DACC, b+8, b), k.mfma_s(DACC+16, b+8, b+4)]
    def updD():
        ring_step(k, 33, 16384, D_DA*16384)
        ring_step(k, 35, 16384, D_DW*16384)
        k(f"v_add_u32 v{CA}, s33, v{AA}\nv_add_u32 v{CWA}, s35, v{AW}")
    OA, MB = 96, 100
    def tailD():
        k(f"""
        ds_read_b128 {vr(OA,4)}, v{DT}
        ds_read_b128 {vr(MB,4)}, v{DT+1}
        ds_read_b128 {vr(MB+4,4)}, v{DT+1} offset:1024
        """)
    def tailD2():
        k(f"""
        v_mov_b32 v{RS}, v{MB+3}
        v_mov_b32 v{RS+1}, v{MB+7}
        v_mov_b32 v{MB+3}, 0
        v_mov_b32 v{MB+7}, 0
        s_nop 0
        """)
        k.mfma(DACC, OA, MB)
        k.mfma(DACC+16, OA, MB+4)
    if DLAG:
        ly, lj = k.new("dy"), k.new("dj")
        k(f"s_cmp_ge_u32 s{CW}, 4\ns_cbranch_scc1 {ly}")
        b1 = k.bars
        compute_loop(k, 16, 2, readsD, workD, updD, 34, pair=True, tail=(tailD, tailD2))
        nb = k.bars - b1
        k(f"s_setprio 0\ns_branch {lj}")
        k.label(ly)
        k.bars = b1
        compute_loop(k, 16 - 2*DLAG, 2, readsD, workD, updD, 34, pair=True)
        updD()
        k.idle_bars(DLAG)
        assert k.bars - b1 == nb
        k(f"s_setprio {E('DYP', 0)}")
        compute_loop(k, 2*DLAG, 2, readsD, workD, updD, 34, pair=True, nobar=True, tail=(tailD, tailD2), hook=lambda: k("s_setprio 2"))
        k("s_setprio 0")
        k.label(lj)
        k.bars += 1
    else:
        compute_loop(k, 16, 2, readsD, workD, updD, 34, pair=True, tail=(tailD, tailD2), mbar=True)
    k.mark(9)
    k("s_nop 11")
    U, PP, U2 = DBUF, DBUF+16, DBUF+32
    for ms in range(2):
        a = DACC + 16*ms
        for i in range(16): k(f"v_mul_f32 v{a+i}, v{a+i}, v{RS+ms}")
        for i in range(16): k(f"v_exp_f32 v{U+i}, v{a+i}")
        if DLAG and ms == 0:
            l = k.new("mb")
            k(f"s_cmp_lt_u32 s{CW}, 4\ns_cbranch_scc1 {l}\ns_barrier")
            k.label(l)
        if MISH2:
            for i in range(16): k(f"v_fma_f32 v{U2+i}, v{U+i}, -0.5, -1.0")
            for i in range(16): k(f"v_fma_f32 v{U+i}, v{U+i}, v{U2+i}, -1.0")
            for i in range(16): k(f"v_rcp_f32 v{U+i}, v{U+i}")
            for i in range(16): k(f"v_fmac_f32 v{a+i}, v{a+i}, v{U+i}")
        else:
            for i in range(16): k(f"v_add_f32 v{U+i}, 1.0, v{U+i}")
            for i in range(16): k(f"v_fma_f32 v{U+i}, v{U+i}, v{U+i}, 1.0")
            for i in range(16): k(f"v_rcp_f32 v{U+i}, v{U+i}")
            for i in range(16): k(f"v_fmaak_f32 v{U+i}, v{U+i}, v{DT+2}, {f32(LN2)}")
            for i in range(16): k(f"v_mul_f32 v{a+i}, v{a+i}, v{U+i}")
        for i in range(8): k(f"v_cvt_pk_bf16_f32 v{PP+8*ms+i}, v{a+2*i}, v{a+2*i+1}")
        so = "s38" if ms == 0 else "s39"
        k(f"buffer_store_dwordx4 {vr(PP+8*ms,4)}, v{L16}, s[12:15], {so} offen {HO}")
        k(f"buffer_store_dwordx4 {vr(PP+8*ms+4,4)}, v{L16}, s[12:15], {so} offen offset:1024 {HO}")
        if DLAG and ms == E("DXB", 1):
            l = k.new("mb")
            k(f"s_cmp_ge_u32 s{CW}, 4\ns_cbranch_scc1 {l}\ns_barrier")
            k.label(l)
    k.mark(10)
    k("s_setprio 0")
    end_phase(3, lambda: k(f"s_lshl_b32 s46, s{MT128}, 4\ns_add_u32 s46, s46, s{NT14}"), 3, f4_in, 14, between=e_between, after_prio=3)
    cnt['Dextra'] = k.bars - b0 - bskip
    k.label(lE)
    k.mark(11)
    lhi = k.new("hiE")
    k(f"s_cmp_ge_u32 s{CW}, 4\ns_cbranch_scc1 {lhi}")
    b0 = k.bars
    def updE():
        ring_step(k, 33, 16384, E_DA*16384)
        ring_step(k, 35, 8192, E_DW*8192)
        k(f"v_add_u32 v{CA}, s33, v{AA}\nv_add_u32 v{CWA}, s35, v{AW}")
    P2 = 96
    def rdE(st, aoff):
        out = []
        for ks in range(4):
            b = BUF + 8*ks + 32*st
            out += [f"ds_read_b128 {vr(b,4)}, v{CA} offset:{aoff + ks*1024}"] + \
                   [f"ds_read_b64_tr_b16 {vr(b+4+2*t,2)}, v{CWA} offset:{ks*2048 + t*1024}" for t in range(2)]
        return out
    wkE = lambda st: [x for ks in range(4) for x in work64(ks, st)]
    def stageE(st, bar, aoff=0, extra=()):
        k("s_waitcnt lgkmcnt(0)")
        if bar: k("s_barrier")
        w = wkE(1-st)
        for x in interleave(w[:3], rdE(st, aoff)) + [w[3]] + list(extra): k(x)
    updW = lambda: (ring_step(k, 35, 8192, E_DW*8192), k(f"v_add_u32 v{CWA}, s35, v{AW}"))
    k.bar()
    for x in rdE(0, 0): k(x)
    updE()
    k("s_mov_b32 s34, 6")
    lg = k.new("gl")
    k.label(lg)
    stageE(1, True); updE()
    k("s_sub_u32 s34, s34, 1")
    stageE(0, True)
    k("s_cmp_eq_u32 s34, 0")
    lgx = k.new("gx")
    k(f"s_cbranch_scc1 {lgx}")
    updE()
    k(f"s_branch {lg}")
    k.label(lgx)
    k.bars += 12
    updW()
    stageE(1, ETAIL, 8192)
    updE()
    stageE(0, True)
    updW()
    stageE(1, ETAIL, 8192)
    k.bars += 3 if ETAIL else 1
    w = wkE(1)
    k("s_waitcnt lgkmcnt(6)")
    k(w[0])
    for kh in range(2):
        for g in range(4): k(f"ds_read_b128 {vr(P2+16*kh+4*g,4)}, v14 offset:{kh*16384 + g*1024}")
    k(w[1])
    k("s_waitcnt lgkmcnt(11)")
    k(w[2])
    k("s_waitcnt lgkmcnt(8)")
    k(w[3])
    k("s_waitcnt lgkmcnt(0)")
    for i in range(16): k(f"v_add_f32 v{P2+i}, v{P2+i}, v{P2+16+i}")
    if MISH2:
        for i in range(16): k(f"v_fma_f32 v{P2+i}, v{P2+i}, v152, v{136+i}")
    cnt['total'] = k.bars
    PQ = 128
    for p in range(2):
        for i in range(8*p, 8*p+8): k(f"v_fma_f32 v{ACC+i}, v{ACC+i}, v152, v{P2+i}" if MISH2 else f"v_add_f32 v{ACC+i}, v{ACC+i}, v{P2+i}")
        for i in range(4*p, 4*p+4): k(f"v_cvt_pk_bf16_f32 v{PQ+i}, v{ACC+2*i}, v{ACC+2*i+1}")
        k("s_nop 1")
        k(f"v_permlane32_swap_b32 v{PQ+4*p}, v{PQ+4*p+2}\nv_permlane32_swap_b32 v{PQ+4*p+1}, v{PQ+4*p+3}")
        k(f"buffer_store_dwordx4 {vr(PQ+4*p,4)}, v15, s[16:19], s38 offen offset:{32*p} {os.environ.get('OUTF', '')}")
    if E("DBGT", 0):
        k.srd(16, PDBG, 256)
        k("""
        s_waitcnt vmcnt(0)
        s_memrealtime s[44:45]
        v_mov_b32 v4, 0
        buffer_load_dword v5, v4, s[16:19], 0 offen sc1
        s_waitcnt vmcnt(0) lgkmcnt(0)
        v_sub_u32 v5, s44, v5
        s_mov_b64 exec, 1
        buffer_atomic_umax v5, v4, s[16:19], 0 offen offset:16
        """)
    stamp_out(k)
    k("s_endpgm")
    k.label(lhi)
    k.bars = b0
    ops = Ops(k)
    def iAE(s):
        b = E_A + (s % E_DA)*16384
        g0 = E_NR*4096 + (s - E_NR)*4096 if s >= E_NR else E_NR*4096
        g1 = g0 + 4096 if s >= E_NR else 0
        parts = [(0, g0), (4096, g0 + 112*1024), (8192, g1), (12288, g1 + 112*1024)]
        for (lo, go) in parts:
            k(f"s_add_u32 m0, s33, {b + lo}\ns_add_u32 s32, s41, {go}")
            k(f"buffer_load_dwordx4 v{L16}, s[12:15], s32 offen {HOL} lds")
        k("s_add_u32 s41, s41, 4096")
        ops.add(("A", s), len(parts))
    def iWE(mm):
        b = E_W + (mm % E_DW)*8192
        for e in range(2):
            k(f"s_add_u32 m0, s35, {b + e*1024}\ns_add_u32 s32, s40, {e*8192}")
            k("buffer_load_dwordx4 v14, s[16:19], s32 offen lds")
        k("s_add_u32 s40, s40, 65536")
        ops.add(("W", 12 + (mm-12)//2), 2)
    WD = E("E_WD", 1)
    ab = {WD + 2*i: (lambda i=i: iWE(12+i)) for i in range(4)}
    if E("EMARK", 0): ab.update({s: (lambda s=s: k.mark(s//2)) for s in range(0, 14, 2)})
    if ETAIL: ab[12] = lambda: k.bar()
    ring_loader_main(k, ops, E_S, E_DA, 99, E("E_LA", 3), iAE, None, 0, E_S, after_bar=ab)
    if ETAIL: k.bars += 1
    assert k.bars == cnt['total']
    stamp_out(k)
    k("s_endpgm")
    return cnt

def build(path):
    k = K()
    if STAMP:
        k("s_memrealtime s[60:61]\ns_memtime s[62:63]\ns_waitcnt lgkmcnt(0)\ns_mov_b32 s63, s60")
        for i in range(12): k(f"s_mov_b32 s{88+i}, 0")
    k(f"""
    s_cmp_ge_u32 s2, 256
    s_cbranch_scc1 Lexit
    {"s_and_b32 s3, s2, 31" if E("BADMAP", 0) else ""}
    {"s_lshl_b32 s3, s3, 3" if E("BADMAP", 0) else ""}
    {"s_lshr_b32 s2, s2, 5" if E("BADMAP", 0) else ""}
    {"s_or_b32 s2, s2, s3" if E("BADMAP", 0) else ""}
    s_load_dwordx16 s[64:79], s[0:1], 0
    s_load_dwordx4 s[80:83], s[0:1], 64
    """)
    if E("CODEPF", 2) == 2:
        k(f"""
        s_getpc_b64 s[40:41]
        v_lshlrev_b32 v5, 7, v0
        v_cmp_gt_u32 vcc, CODE_SPAN - 128, v5
        s_and_saveexec_b64 s[42:43], vcc
        s_cbranch_execz Lnopf
        global_load_dword v6, v5, s[40:41]
        Lnopf:
        s_mov_b64 exec, -1
        """)
    k(f"""
    v_lshrrev_b32 v1, 6, v0
    v_and_b32 v0, 63, v0
    s_and_b32 s20, s2, 7
    v_readfirstlane_b32 s3, v1
    s_lshr_b32 s21, s2, 3
    v_lshrrev_b32 v{HH}, 5, v0
    v_lshlrev_b32 v{L16}, 4, v0
    v_and_b32 v{MM}, 31, v0
    s_and_b32 s28, s20, 3
    s_lshr_b32 s29, s20, 2
    s_lshl_b32 s{MTA}, s28, 3
    s_and_b32 s30, s21, 7
    s_add_u32 s{MTA}, s{MTA}, s30
    s_lshl_b32 s{NTA}, s29, 2
    s_lshr_b32 s30, s21, 3
    s_add_u32 s{NTA}, s{NTA}, s30
    s_lshl_b32 s{HEAD}, s20, 2
    s_and_b32 s30, s21, 3
    s_add_u32 s{HEAD}, s{HEAD}, s30
    s_lshr_b32 s{QB}, s21, 2
    s_mov_b32 s{MT64}, s{HEAD}
    s_mov_b32 s{NT8}, s{QB}
    s_lshl_b32 s{MT128}, s28, 2
    s_add_u32 s{MT128}, s{MT128}, s30
    s_mul_i32 s{NT14}, s29, 7
    s_add_u32 s{NT14}, s{NT14}, s{QB}
    """)
    if E("CFIRST", 1):
        k("s_cmp_lt_u32 s3, 4\ns_cbranch_scc1 Lloader")
        k.bars = 0
        c2 = compute(k)
        k.label("Lloader")
        k.bars = 0
        c1 = loader(k)
    else:
        k("s_cmp_ge_u32 s3, 4\ns_cbranch_scc1 Lcompute")
        k.bars = 0
        c1 = loader(k)
        k.label("Lcompute")
        k.bars = 0
        c2 = compute(k)
    assert c1 == c2, (c1, c2)
    k.label("Lexit")
    k("s_endpgm")
    ref = open(f"cdna_kernels/{NAME}.s.ref").read().split("\n")
    head = [l for l in ref if l.startswith(";") and "@launch" not in l]
    out = "\n".join(head) + f"\n; @launch grid=(256,1,1) block=(768,1,1) lds={LDS_TOTAL}\n"
    out += f'.amdgcn_target "amdgcn-amd-amdhsa--gfx950"\n.text\n.globl {NAME}_kernel\n.p2align 8\n.type {NAME}_kernel,@function\n{NAME}_kernel:\n'
    out += "\n".join(k.L).replace("CODE_SPAN", f"Lexit - {NAME}_kernel - 4") + "\n"
    out += f""".section .rodata,"a"
.p2align 6
.amdhsa_kernel {NAME}_kernel
  .amdhsa_next_free_vgpr 168
  .amdhsa_next_free_sgpr 102
  .amdhsa_accum_offset 168
  .amdhsa_group_segment_fixed_size 0
  .amdhsa_kernarg_size 80
  .amdhsa_user_sgpr_count 2
  .amdhsa_user_sgpr_kernarg_segment_ptr 1
  .amdhsa_system_sgpr_workgroup_id_x 1
.end_amdhsa_kernel
"""
    open(path, "w").write(out)
    print("barriers", c1, "lines", len(k.L))
if __name__ == "__main__":
    build(sys.argv[1])
```
